```python
import torch

def _softmax(x, axis=-1):
    return torch.softmax(x, dim=axis)
def _gelu(x):
    return torch.nn.functional.gelu(x, approximate="tanh")
def _silu(x):
    return torch.nn.functional.silu(x)
def _sigmoid(x):
    return torch.sigmoid(x)
def _layernorm(x, axis=-1, eps=1e-5):
    m = x.mean(dim=axis, keepdim=True)
    v = x.var(dim=axis, keepdim=True, unbiased=False)
    return (x - m) / torch.sqrt(v + eps)
def _scatter_add(tgt, idx, src, axis=0):
    return tgt.clone().index_add_(axis, idx, src)
def _segment_sum(src, seg, n):
    out = torch.zeros((n,) + src.shape[1:], dtype=src.dtype)
    return out.index_add_(0, seg, src)
def _pad(x, pw):
    flat = tuple(v for pair in reversed(pw) for v in pair)
    return torch.nn.functional.pad(x, flat)

kernel_name = 'recurrent_scan__ssm_conv_s4__mixer_channel_mlp__prompt'

def setup_inputs():

    _w = (lambda a: (lambda t: t.to(torch.bfloat16) if t.is_floating_point() else t)(torch.as_tensor(a)))
    def _A_setup():
        B, L, D, N = 1, 2048, 448, 256
        A_re = -(lambda _x: torch.exp(torch.as_tensor(_x)))((lambda *s: torch.randn(*s, dtype=torch.bfloat16) * 3.2)(D, N))
        A_im = torch.pi * (lambda *s: torch.randn(*s, dtype=torch.bfloat16) * 0.2)(D, N)
        B_re = (lambda *s: torch.randn(*s, dtype=torch.bfloat16) * 0.2)(D, N)
        B_im = (lambda *s: torch.randn(*s, dtype=torch.bfloat16) * 0.2)(D, N)
        C_re = (lambda *s: torch.randn(*s, dtype=torch.bfloat16) * 0.2)(D, N)
        C_im = (lambda *s: torch.randn(*s, dtype=torch.bfloat16) * 0.2)(D, N)
        log_dt = (lambda *s: torch.randn(*s, dtype=torch.bfloat16) * 0.2)(D) * 0.5 - 4.0
        Dskip = (lambda *s: torch.randn(*s, dtype=torch.bfloat16) * 0.2)(D)
        return {
            "u": _w((lambda *s: torch.randn(*s, dtype=torch.bfloat16) * 0.05)(B, L, D)),
            "A_re": _w(A_re),
            "A_im": _w(A_im),
            "B_re": _w(B_re),
            "B_im": _w(B_im),
            "C_re": _w(C_re),
            "C_im": _w(C_im),
            "log_dt": _w(log_dt),
            "Dskip": _w(Dskip),
        }
    _A_in = _A_setup()

    def _B_setup():
        B, S, D, F = 1, 2048, 448, 1792
        return {
            "x": _w((lambda *s: torch.randn(*s, dtype=torch.bfloat16) * 0.05)(B, S, D)),
            "w1": _w((lambda *s: torch.randn(*s, dtype=torch.bfloat16) * 3.2)(D, F) * (D ** -0.5)),
            "b1": _w((lambda *s: torch.randn(*s, dtype=torch.bfloat16) * 1.6)(F)),
            "w2": _w((lambda *s: torch.randn(*s, dtype=torch.bfloat16) * 0.1)(F, D) * (F ** -0.5)),
            "b2": _w((lambda *s: torch.randn(*s, dtype=torch.bfloat16) * 0.2)(D)),
        }
    _B_in = _B_setup()

    return {
        "A_u": _A_in["u"],
        "A_A_re": _A_in["A_re"],
        "A_A_im": _A_in["A_im"],
        "A_B_re": _A_in["B_re"],
        "A_B_im": _A_in["B_im"],
        "A_C_re": _A_in["C_re"],
        "A_C_im": _A_in["C_im"],
        "A_log_dt": _A_in["log_dt"],
        "A_Dskip": _A_in["Dskip"],
        "B_x": _B_in["x"],
        "B_w1": _B_in["w1"],
        "B_b1": _B_in["b1"],
        "B_w2": _B_in["w2"],
        "B_b2": _B_in["b2"],
    }

def reference(A_u, A_A_re, A_A_im, A_B_re, A_B_im, A_C_re, A_C_im, A_log_dt, A_Dskip, B_x, B_w1, B_b1, B_w2, B_b2):
    def _A_ref(u, A_re, A_im, B_re, B_im, C_re, C_im, log_dt, Dskip):
        Bsz, L, D = u.shape
        dt = torch.exp(log_dt)[:, None]
        A = A_re + 1j * A_im
        Bc = B_re + 1j * B_im
        Cc = C_re + 1j * C_im
        logdA = dt * A
        dB = dt * Bc
        l = (lambda x, dt: x.to(dt))(torch.arange(L), A_re.dtype)
        P = torch.exp(logdA[:, :, None] * l[None, None, :])
        K = torch.einsum("dn,dnl,dn->dl", Cc, P, dB).real
        L2 = 2 * L
        Kp = _pad(K, ((0, 0), (0, L)))
        up = (lambda x, *d: x.permute(*d))(u, 0, 2, 1)
        up = _pad(up, ((0, 0), (0, 0), (0, L)))
        Kf = (lambda x, axes=(-2,-1): torch.fft.rfft2(x.float(), dim=axes))(Kp[:, None, :], axes=(-2, -1))
        Uf = (lambda x, axes=(-2,-1): torch.fft.rfft2(x.float(), dim=axes))(up[:, :, None, :], axes=(-2, -1))
        Yf = Uf * Kf[None, :, :, :]
        y = (lambda x, s, axes=(-2,-1): torch.fft.irfft2(x, s=s, dim=axes).to(torch.bfloat16))(Yf, (1, L2), axes=(-2, -1))[:, :, 0, :L]
        y = (lambda x, *d: x.permute(*d))(y, 0, 2, 1) + u * Dskip[None, None, :]
        return y

    def _B_ref(x, w1, b1, w2, b2):
        y = _layernorm(x, axis=-1)
        h = _gelu(torch.einsum("bsd,df->bsf", y, w1) + b1)
        return torch.einsum("bsf,fd->bsd", h, w2) + b2

    x = A_u
    xn = _layernorm(x, axis=-1)
    s = _A_ref(xn, A_A_re, A_A_im, A_B_re, A_B_im, A_C_re, A_C_im, A_log_dt, A_Dskip)
    g = _silu(_B_ref(xn, B_w1, B_b1, B_w2, B_b2))
    return x + s * g
```

```python
import re, copy
TRANS = ('v_exp_f32','v_log_f32','v_rcp_f32','v_rsq_f32','v_sqrt_f32','v_sin_f32','v_cos_f32')
NODST_S = ('s_cmp','s_waitcnt','s_barrier','s_nop','s_cbranch','s_branch','s_endpgm','s_setprio','s_sleep','s_bitcmp')
RE_REG = re.compile(r'^[-|]*([vas])(?:(\d+)|\[(\d+):(\d+)\])\|?$')
def regs(op):
    op = op.strip()
    m = RE_REG.match(op)
    if m:
        k = m.group(1)
        if m.group(2) is not None: return {(k, int(m.group(2)))}
        return {(k, i) for i in range(int(m.group(3)), int(m.group(4)) + 1)}
    if op in ('vcc', 'vcc_lo', 'vcc_hi'): return {('s', 'vcc')}
    if op in ('exec', 'exec_lo', 'exec_hi'): return {('s', 'exec')}
    if op == 'm0': return {('s', 'm0')}
    return set()
class Ins:
    def __init__(s, text):
        s.text = text
        t = text.split(';')[0].strip()
        p = t.split(None, 1)
        s.mn = mn = p[0]
        rest = p[1] if len(p) > 1 else ''
        parts = [x.strip() for x in re.split(r',(?![^\[]*\])', rest)] if rest else []
        mods = ''
        if parts:
            last = parts[-1].split(None, 1)
            parts[-1] = last[0]
            mods = last[1] if len(last) > 1 else ''
        s.ops, s.mods = parts, mods
        R = [regs(x) for x in parts]
        U = lambda l: set().union(*l) if l else set()
        s.cls = 'other'; s.d = set(); s.u = set(); s.c = set(); s.dpp = False; s.passes = 0; s.q = None; s.wide = False
        if mn.startswith('v_mfma'):
            s.cls = 'mfma'; s.d = R[0]; s.u = U(R[1:3]); s.c = R[3]; s.passes = 8 if '32x32' in mn else 4
        elif mn.startswith('v_'):
            s.cls = 'valu'
            base = re.sub(r'_(e32|e64|dpp|sdwa)$', '', mn)
            if base in TRANS: s.cls = 'trans'
            if base.startswith('v_dot'): s.cls = 'dot'
            s.d = R[0]; s.u = U(R[1:])
            if base.startswith(('v_swap', 'v_permlane')): s.d = s.u = U(R); s.cls = 'perm' if 'perml' in base else 'valu'
            if base.startswith(('v_fmac', 'v_dot2c', 'v_mac', 'v_pk_fmac')): s.u = s.u | s.d
            if base.startswith('v_cndmask') and len(parts) == 3: s.u |= {('s', 'vcc')}
            if base.startswith(('v_readfirstlane', 'v_readlane')): s.cls = 'rdlane'
            if re.search(r'quad_perm|row_|wave_', mods): s.dpp = True; s.u = s.u | s.d
        elif mn.startswith('ds_'):
            s.cls = 'ds'; s.q = 'lgkm'
            if mn.startswith(('ds_read', 'ds_bperm', 'ds_swizzle')): s.d = R[0]; s.u = U(R[1:])
            else: s.u = U(R)
        elif mn.startswith(('buffer_', 'global_')):
            s.cls = 'vmem'; s.q = 'vm'
            if 'load' in mn and not re.search(r'\blds\b', mods) and 'load_lds' not in mn:
                s.d = R[0]; s.u = U(R[1:])
                if 'd16' in mn: s.u = s.u | s.d
            else:
                s.u = U(R)
                if 'load' in mn: s.u |= {('s', 'm0')}; s.cls = 'dma'
                elif mn.endswith(('x4', 'x3')): s.wide = True; s.c = R[0] if mn.startswith('buffer') else R[1]
        elif mn.startswith(('s_load', 's_memtime', 's_memrealtime')):
            s.cls = 'smem'; s.q = 'lgkm'; s.d = R[0]; s.u = U(R[1:])
        elif mn.startswith('s_'):
            s.cls = 'salu'
            if mn.startswith(NODST_S): s.u = U(R)
            else:
                s.d = R[0]; s.u = U(R[1:])
                if 'saveexec' in mn: s.d = s.d | {('s', 'exec')}
class Asm:
    def __init__(s):
        s.out = []; s.t = 0; s.vm = []; s.lg = []; s.w = {}; s.cread = {}; s.stw = {}; s.n = 0; s.nops = 0; s.uid = 0
    def raw(s, txt): s.out.append(txt)
    def label(s, name): s.out.append(name + ':')
    def _emit(s, txt, states=1): s.out.append('    ' + txt); s.t += states; s.n += 1
    def nop(s, k):
        while k > 0:
            n = min(k, 16); s._emit(f's_nop {n-1}', n); k -= n; s.nops += 1
    def waitcnt(s, vm=None, lg=None):
        a = []
        if vm is not None and vm < len(s.vm):
            assert vm <= 63; a.append(f'vmcnt({vm})'); s.vm = s.vm[len(s.vm) - vm:] if vm else []
        if lg is not None and lg < len(s.lg):
            if any(e[2] for e in s.lg): lg = 0
            lg = min(lg, 15); a.append(f'lgkmcnt({lg})'); s.lg = s.lg[len(s.lg) - lg:] if lg else []
        if a: s._emit('s_waitcnt ' + ' '.join(a))
    def wait(s, *toks):
        vm = lg = None
        for tok in toks:
            if tok is None: continue
            for i, e in enumerate(s.vm):
                if e[0] == tok: k = len(s.vm) - i - 1; vm = k if vm is None else min(vm, k)
            for i, e in enumerate(s.lg):
                if e[0] == tok: k = len(s.lg) - i - 1; lg = k if lg is None else min(lg, k)
        s.waitcnt(vm, lg)
    def need(s, i):
        n = 0
        def dist(r, pred, k):
            nonlocal n
            e = s.w.get(r)
            if e and pred(e): n = max(n, k - (s.t - e[1]))
        isv = i.cls in ('valu', 'trans', 'dot', 'perm', 'rdlane')
        VAL = ('valu', 'trans', 'perm', 'dot', 'rdlane')
        for r in i.u | i.c | i.d:
            e = s.w.get(r)
            if not e: continue
            c, t0, p, full = e
            k = 0
            rd = r in i.u or r in i.c
            if c == 'mfma':
                big = 12 if p == 8 else 8
                if i.cls == 'mfma':
                    if r in i.u: k = big
                    elif r in i.c or r in i.d: k = 0 if (i.c == full and i.passes == p) else (big - 2 if r in i.c else big)
                    if r in i.d and r not in i.c: k = max(k, big)
                else: k = big
            elif c in VAL and r[0] in 'va':
                if rd:
                    if i.cls == 'mfma': k = 3 if c == 'dot' else 2
                    elif i.cls == 'perm' or i.dpp: k = 2
                    elif i.cls == 'rdlane': k = 1
                    if c == 'trans' and isv and i.cls != 'trans': k = max(k, 1)
                    if c == 'trans' and not isv: k = max(k, 1)
                if c == 'dot' and not (i.cls == 'dot' and r in i.d and r not in (regs(i.ops[1]) | regs(i.ops[2]))): k = max(k, 3)
            elif c in VAL and r[0] == 's' and rd:
                if i.cls in ('vmem', 'dma'): k = 5
                elif i.cls == 'rdlane': k = 4
                elif isv or i.cls == 'mfma': k = 5 if (r[1] == 'exec') else 2
                elif i.cls in ('salu', 'smem'): k = 1
            elif c == 'salu' and r == ('s', 'm0') and i.cls == 'dma': k = 1
            n = max(n, k - (s.t - t0))
        if isv:
            for r in i.d:
                e = s.cread.get(r)
                if e: n = max(n, (7 if e[1] == 8 else 3) - (s.t - e[0]))
        for r in i.d:
            e = s.stw.get(r)
            if e is not None: n = max(n, 2 - (s.t - e))
        return n
    def __call__(s, text):
        i = Ins(text)
        touch = i.u | i.d | i.c
        vm = lg = None
        for k, e in enumerate(s.vm):
            if e[1] & touch: vm = len(s.vm) - k - 1
        for k, e in enumerate(s.lg):
            if e[1] & touch: lg = len(s.lg) - k - 1
        s.waitcnt(vm, lg)
        if i.q == 'vm' and len(s.vm) >= 63: s.waitcnt(vm=62)
        s.nop(s.need(i))
        s._emit(text)
        for r in i.d: s.w[r] = (i.cls, s.t, i.passes, i.d)
        if i.cls == 'mfma':
            for r in i.c: s.cread[r] = (s.t, i.passes)
        if i.wide:
            for r in i.c: s.stw[r] = s.t
        s.uid += 1
        if i.q == 'vm': s.vm.append((s.uid, i.d, False))
        if i.q == 'lgkm': s.lg.append((s.uid, i.d, i.cls == 'smem'))
        return s.uid
    def settle(s):
        n = 0
        for r, (c, t0, p, f) in s.w.items():
            k = {'mfma': 12 if p == 8 else 8, 'salu': 1 if r == ('s', 'm0') else 0}.get(c, 0)
            if c in ('valu', 'trans', 'perm', 'dot', 'rdlane'): k = 5 if r[0] == 's' else 3
            n = max(n, k - (s.t - t0))
        for r, (t0, p) in s.cread.items(): n = max(n, (7 if p == 8 else 3) - (s.t - t0))
        for r, t0 in s.stw.items(): n = max(n, 2 - (s.t - t0))
        s.nop(n)
    def snap(s): return copy.deepcopy((s.t, s.vm, s.lg, s.w, s.cread, s.stw))
    def restore(s, st): s.t, s.vm, s.lg, s.w, s.cread, s.stw = copy.deepcopy(st)
    def ifelse(s, name, fa, fb):
        s.settle(); s._emit(f's_cbranch_scc1 {name}_b'); st = s.snap(); u0 = s.uid
        fa(); s.settle(); s._emit(f's_branch {name}_j'); a = s.snap()
        s.label(f'{name}_b'); s.restore(st); s.uid = u0; fb(); s.settle(); s.label(f'{name}_j')
        assert len(a[1]) == len(s.vm) and len(a[2]) == len(s.lg), (name, len(a[1]), len(s.vm), len(a[2]), len(s.lg))
        s.vm = [(x[0], x[1] | y[1], x[2]) for x, y in zip(a[1], s.vm)]
        s.lg = [(x[0], x[1] | y[1], x[2]) for x, y in zip(a[2], s.lg)]
    def barrier(s):
        s.waitcnt(lg=0); s._emit('s_barrier')
    def text(s): return '\n'.join(s.out) + '\n'
def V(a, n=1): return f'v{a}' if n == 1 else f'v[{a}:{a+n-1}]'
def A(a, n=1): return f'a{a}' if n == 1 else f'a[{a}:{a+n-1}]'
def S(a, n=1): return f's{a}' if n == 1 else f's[{a}:{a+n-1}]'
```

```python
from gen import *
def rest(L):
    a = I = L['a']; stamp, poll, cmp_flag, flag_store, unpack, fin, gemm, tk, xnorm, srd = (L[k] for k in
        'stamp poll cmp_flag flag_store unpack fin gemm tk xnorm srd'.split())
    stop = L['stop']; vG2, vTR, ACC = L['vG2'], L['vTR'], L['ACC']
    WS = f's[{SWS}:{SWS+3}]'
    tw, tr, dt, hb = 14, 15, 16, 18
    I(f's_mul_i32 s{sT0}, s{sW}, 17408')
    I(f'v_mul_u32_u24 v{tw}, 272, v0'); I(f'v_add_u32 v{tw}, s{sT0}, v{tw}')
    I(f'v_lshrrev_b32 v{hb}, 5, v0'); I(f'v_bfe_u32 v17, v0, 3, 1'); I(f'v_lshl_add_u32 v17, v{hb}, 2, v17'); I(f'v_mul_u32_u24 v17, {8*272}, v17')
    I(f'v_bfe_u32 v{tr}, v0, 2, 1'); I(f'v_lshl_add_u32 v{tr}, v{tr}, 6, v{vTR}'); I(f'v_add3_u32 v{tr}, v{tr}, v17, s{sT0}')
    I(f's_lshl_b32 s{sT1}, s{sC}, 4'); I(f's_lshr_b32 s{sT1}, s{sLD}, s{sT1}'); I(f's_lshl_b32 s{sT1}, s{sT1}, 16')
    I(f'v_mov_b32 v{dt}, {f2u(math.log2(math.e))}'); I(f'v_mul_f32 v{dt}, s{sT1}, v{dt}'); I(f'v_exp_f32 v{dt}, v{dt}')
    I(f'v_cvt_pk_bf16_f32 v{dt}, v{dt}, v{dt}'); I(f'v_lshlrev_b32 v{dt}, 16, v{dt}')
    I(f's_lshr_b32 s{sT1}, s2, 3'); I(f's_lshl_b32 s{sT1}, s{sT1}, 12'); I(f's_add_u32 s{sT1}, s{sT1}, {XF}')
    vXF, vXFa, vHF, vHFa = 56, 57, 58, 59
    I(f'v_and_b32 v{vXFa}, 31, v0'); I(f'v_lshlrev_b32 v{vXFa}, 7, v{vXFa}'); I(f'v_add_u32 v{vXFa}, s{sT1}, v{vXFa}')
    ldXF = lambda: I(f'buffer_load_dword v{vXF}, v{vXFa}, {WS}, 0 offen sc1')
    ldXF()
    I(f's_lshl_b32 s{sT1}, s{sR}, 2'); I(f's_add_u32 s{sT1}, s{sT1}, s{sW}'); I(f's_lshl_b32 s{sT1}, s{sT1}, 10'); I(f's_add_u32 s{sT1}, s{sT1}, {HF}')
    I(f'v_and_b32 v{vHFa}, 7, v0'); I(f'v_min_u32 v{vHFa}, 6, v{vHFa}'); I(f'v_lshlrev_b32 v{vHFa}, 7, v{vHFa}'); I(f'v_add_u32 v{vHFa}, s{sT1}, v{vHFa}')
    ldHF = lambda: I(f'buffer_load_dword v{vHF}, v{vHFa}, {WS}, 0 offen sc1')
    I(f's_lshl_b32 s{sT2}, s{sJ}, 7'); I(f's_add_u32 s{sT2}, s{sT2}, s{sT1}')
    I(f's_lshl_b32 s{sT1}, s2, 1'); I(f's_add_u32 s{sT1}, s{sT1}, s{sC}'); I(f's_lshl_b32 s{sT1}, s{sT1}, 12')
    I(f's_add_u32 s{SU}, s36, s{sT1}'); I(f's_addc_u32 s{SU+1}, s37, 0'); I(f's_mov_b32 s{SU+2}, 4096'); I(f's_mov_b32 s{SU+3}, 0x00020000')
    sY = sLD
    I(f's_lshl_b32 s{sT0}, s{sP}, 11'); I(f's_add_u32 s{sY}, s{sT1}, s{sT0}'); I(f's_add_u32 s{sY}, s{sY}, {YT}')
    a.barrier()
    def cmuls(lst):
        for d, p, q in lst: I(f'v_pk_mul_f32 {V(d,2)}, {V(p,2)}, {V(q,2)} op_sel:[0,0] op_sel_hi:[0,1]')
        for d, p, q in lst: I(f'v_pk_fma_f32 {V(d,2)}, {V(p,2)}, {V(q,2)}, {V(d,2)} op_sel:[1,1,0] op_sel_hi:[1,0,1] neg_lo:[1,0,0]')
    G = lambda b: 64 + 2*(b & 15) if b < 16 else 96 + 2*(b - 16)
    Sx = lambda i: 128 + 2*i
    HH = {}; nx = 146
    for o in (256, 258, 260, 262, 264, 512, 516, 520, 768, 772, 776, 1024, 1032, 1280, 1288, 1536, 1544, 1792, 1800): HH[o] = nx; nx += 2
    for i in range(9): HH[i] = Sx(i)
    g1, g256, g2 = 20, 22, 24; er, ph = 26, 27; PK = 32; KD = 192; KF = 208
    h0 = [0,1,2,3,4,5,6,7, 512,516,520, 1024,1032,1280,1288, None]
    h1 = [256,256,258,260,260,260,262,264, 768,772,776, 1536,1544,1792,1800, None]
    pkn = [0]
    def wr8(srcs, off, neg):
        for comp in range(2):
            p = PK + 4*(pkn[0] % 4); pkn[0] += 1
            n = '-' if (neg and comp) else ''
            for e in range(4):
                x, y = srcs[2*e], srcs[2*e+1]
                if y is None: y = x
                I(f'v_cvt_pk_bf16_f32 v{p+e}, {n}v{x+comp}, {n}v{y+comp}')
            I(f'ds_write_b128 v{tw}, {V(p,4)} offset:{off + 64*comp}')
    U0 = 40
    uE, uA, u3 = 28, 29, 30
    for bt in range(2):
        P = 48
        for i in range(6): I(f'v_lshlrev_b32 v{P+i}, 16, v{vPAR+i}' if bt == 0 else f'v_and_b32 v{P+i}, 0xffff0000, v{vPAR+i}')
        for i in range(4): I(f'v_mul_f32 v{P+i}, v{dt}, v{P+i}')
        I(f'v_mul_f32 v{er}, {f2u(math.log2(math.e))}, v{P}'); I(f'v_mul_f32 v{ph}, 0.15915494, v{P+1}')
        cmuls([(Sx(0), P+4, P+2)])
        for d, sc in ((g1, 1.0), (G(1), 8.0), (g256, 256.0)):
            if sc != 1.0:
                I(f'v_mul_f32 v{P}, {f2u(sc)}, v{er}'); I(f'v_mul_f32 v{P+1}, {f2u(sc)}, v{ph}')
            I(f'v_exp_f32 v{P}, v{P if sc != 1.0 else er}'); I(f'v_fract_f32 v{P+1}, v{P+1 if sc != 1.0 else ph}')
            I(f'v_cos_f32 v{d}, v{P+1}'); I(f'v_sin_f32 v{d+1}, v{P+1}')
            I(f'v_pk_mul_f32 {V(d,2)}, {V(d,2)}, {V(P,2)} op_sel_hi:[1,0]')
        I(f'v_mov_b32 v{G(0)}, 1.0'); I(f'v_mov_b32 v{G(0)+1}, 0')
        cmuls([(G(2), G(1), G(1)), (g2, g1, g1), (Sx(1), Sx(0), g1), (Sx(8), Sx(0), G(1))])
        cmuls([(G(3), G(2), G(1)), (G(4), G(2), G(2)), (Sx(2), Sx(0), g2), (Sx(3), Sx(1), g2)])
        cmuls([(G(5), G(4), G(1)), (G(6), G(4), G(2)), (G(7), G(4), G(3)), (G(8), G(4), G(4)), (Sx(4), Sx(2), g2), (Sx(5), Sx(3), g2)])
        wr8([G(b) for b in range(8)], 128, False)
        cmuls([(G(8+i), G(8), G(i)) for i in range(1, 9)] + [(Sx(6), Sx(4), g2), (Sx(7), Sx(5), g2)])
        wr8([G(b) for b in range(8, 16)], 144, False)
        cmuls([(G(16+i), G(16), G(i)) for i in range(1, 8)] + [(HH[256+i], Sx(i), g256) for i in (0, 2, 4, 6, 8)])
        wr8([G(b) for b in range(16, 24)], 160, False)
        cmuls([(G(16+i), G(16), G(i)) for i in range(8, 16)] + [(HH[512+i], HH[256+i], g256) for i in (0, 4, 8)])
        wr8([G(b) for b in range(24, 32)], 176, False)
        cmuls([(HH[768+i], HH[512+i], g256) for i in (0, 4, 8)])
        for q in range(2): wr8([HH[o] for o in h0[4*q:4*q+4] + h1[4*q:4*q+4]], 16*q, True)
        for o in (1024, 1280, 1536, 1792): cmuls([(HH[o+i], HH[o-256+i], g256) for i in (0, 8)])
        for q in range(2, 4): wr8([HH.get(o) for o in h0[4*q:4*q+4] + h1[4*q:4*q+4]], 16*q, True)
        if bt == 0:
            a.wait(tk['h']); flag_store(sT2)
            poll(vXF, ldXF, cmp_flag(vXF))
        def kreads(s):
            b = KF + 8*(s & 1)
            for o, x in ((0, 0), (2, 16*272), (4, 128), (6, 16*272+128)): I(f'ds_read_b64_tr_b16 {V(b+o,2)}, v{tr} offset:{x + 272*s}')
        kreads(0)
        for s in range(8):
            if s < 7: kreads(s+1)
            b = KF + 8*(s & 1)
            I(f'v_mfma_f32_32x32x16_bf16 {V(KD,16)}, {V(b,4)}, {V(b+4,4)}, {0 if (bt == 0 and s == 0) else V(KD,16)}')
        if bt == 0: ldHF()
    I(f's_lshl_b32 s{sT0}, s{sP}, 11'); I(f'v_add_u32 v{uE}, s{sT0}, v{vL16}'); I(f'v_add_u32 v{uA}, -16, v{uE}')
    I(f's_cmp_eq_u32 s{sP}, 0'); I(f's_cselect_b32 s{sT1}, -16, 4080'); I(f'v_mov_b32 v{u3}, s{sT1}')
    UU = f's[{SU}:{SU+3}]'
    I(f'buffer_load_dwordx4 {V(U0,4)}, v{uA}, {UU}, 0 offen sc1'); I(f'buffer_load_dwordx2 {V(U0+4,2)}, v{uE}, {UU}, 0 offen sc1')
    I(f'buffer_load_dwordx4 {V(U0+6,4)}, v{uE}, {UU}, 0 offen offset:1008 sc1'); I(f'buffer_load_dwordx2 {V(U0+10,2)}, v{uE}, {UU}, 0 offen offset:1024 sc1')
    I(f'buffer_load_dwordx4 {V(U0+12,4)}, v{u3}, {UU}, 0 offen sc1')
    poll(vHF, ldHF, cmp_flag(vHF))
    I(f'v_add_u32 v24, 4096, v{vL16}')
    for n in range(1, 7):
        for f in range(8):
            I(f'buffer_load_dwordx4 {A(32*(n-1)+4*f,4)}, v{vL16 if f < 4 else 24}, {WS}, s{sH+n} offen offset:{1024*(f&3)} sc1')
    xk, xp, k1, k2, kz, bm = 20, 21, 22, 23, 25, 26
    I(f's_mul_i32 s{sT0}, s{sC}, 34816'); I(f's_lshl_b32 s{sT1}, s{sP}, 15'); I(f's_add_u32 s{sT2}, s{sT0}, s{sT1}'); I(f'v_add_u32 v{xk}, s{sT2}, v{vL16}')
    I(f's_sub_u32 s{sT2}, s{sT0}, s{sT1}'); I(f's_add_u32 s{sT2}, s{sT2}, 32768'); I(f'v_add_u32 v{xp}, s{sT2}, v{vL16}')
    sKB = sT2
    I(f's_mul_i32 s{sKB}, s{sC}, 4608'); I(f's_add_u32 s{sKB}, s{sKB}, {LB}')
    I(f'v_and_b32 v27, 31, v0'); I(f'v_sub_u32 v27, 255, v27'); I(f'v_and_b32 v{bm}, 1, v27'); I(f'v_lshrrev_b32 v27, 1, v27')
    I(f'v_mul_u32_u24 v{k1}, 2304, v{bm}'); I(f'v_lshl_add_u32 v{k1}, v27, 4, v{k1}'); I(f'v_add_u32 v{k1}, s{sKB}, v{k1}')
    I(f'v_sub_u32 v{bm}, 0, v{bm}')
    I(f'v_lshlrev_b32 v27, 8, v{hb}'); I(f'v_sub_u32 v{k1}, v{k1}, v27'); I(f'v_sub_u32 v{k2}, v{k1}, v27')
    I(f'v_add_u32 v{k1}, -512, v{k1}'); I(f'v_add_u32 v{k2}, -1280, v{k2}')
    I(f'v_bfe_u32 v{kz}, v0, 4, 1'); I(f'v_mul_u32_u24 v{kz}, 2304, v{kz}'); I(f'v_and_b32 v27, 15, v0'); I(f'v_lshl_add_u32 v{kz}, v27, 4, v{kz}')
    I(f'v_add_u32 v{kz}, s{sKB}, v{kz}')
    I(f's_cmp_eq_u32 s{sP}, 1')
    def snd(o):
        def f():
            I(f'ds_write_b128 v{xk}, {V(KD+o,4)}'); I(f'ds_write_b128 v{xk}, {V(KD+o+4,4)} offset:1024')
        return f
    a.ifelse('KS', snd(8), snd(0))
    a.barrier()
    E = 208; T = 216
    I(f'ds_read_b128 {V(E,4)}, v{xp}'); I(f'ds_read_b128 {V(E+4,4)}, v{xp} offset:1024')
    uw = 27
    I(f's_mul_i32 s{sT0}, s{sC}, 34816'); I(f's_add_u32 s{sT0}, s{sT0}, {2048+16}'); I(f'v_add_u32 v{uw}, s{sT0}, v{uE}')
    def copies(d, e5, addr, off):
        R = [d, d+1, d+2, d+3] + ([e5, e5+1] if e5 else [None, None])
        rr = lambda i: f'v{R[i]}' if R[i] is not None else '0'
        I(f'ds_write_b128 v{addr}, {V(d,4)} offset:{off}')
        for e in range(4): I(f'v_alignbit_b32 v{64+e}, {rr(e+1)}, {rr(e)}, 16')
        for e in range(4): I(f'v_mov_b32 v{68+e}, {rr(e+1)}')
        for e in range(3): I(f'v_mov_b32 v{72+e}, v{64+e+1}')
        I(f'v_alignbit_b32 v75, {rr(5)}, {rr(4)}, 16' if e5 else 'v_mov_b32 v75, 0')
        for s in range(1, 4): I(f'ds_write_b128 v{addr}, {V(60+4*s,4)} offset:{off + 4160*s}')
    copies(U0, U0+4, uw, 0); copies(U0+6, U0+10, uw, 1024)
    I(f's_mul_i32 s{sT1}, s{sP}, {257*16}'); I(f's_add_u32 s{sT1}, s{sT1}, s{sT0}'); I(f's_sub_u32 s{sT1}, s{sT1}, 16'); I(f'v_mov_b32 v{u3}, s{sT1}')
    I('s_mov_b64 exec, 1'); copies(U0+12, None, u3, 0); I('s_mov_b64 exec, -1')
    I(f's_cmp_eq_u32 s{sP}, 1')
    def ex0():
        for e in range(8): I(f'v_add_f32 v{E+e}, v{E+e}, v{KD+e}')
        for e in range(4): I(f'v_cvt_pk_bf16_f32 v{T+e}, v{E+7-2*e}, v{E+6-2*e}')
        I(f'ds_write_b128 v{k1}, {V(T,4)} offset:512')
        for e in range(4): I(f'v_mov_b32 v{T+4+e}, 0')
        I(f'ds_write_b128 v{kz}, {V(T+4,4)} offset:2048'); I(f'ds_write_b128 v{kz}, {V(T+4,4)} offset:2048')
    def ex1():
        for e in range(7): I(f'v_add_f32 v{E+e}, v{E+e}, v{KD+8+e}')
        for e, (x, y) in enumerate(((2, 2), (1, 1), (1, 0), (0, 0))): I(f'v_cvt_pk_bf16_f32 v{T+e}, v{E+x}, v{E+y}')
        I(f'ds_write_b128 v{k1}, {V(T,4)}')
        for z, (v0_, off) in enumerate(((E+3, 256), (E+5, 0))):
            t = T + 4 if z == 0 else KD
            I(f'v_bfi_b32 v{E+7}, v{bm}, v{v0_}, v{v0_+1}')
            I(f'v_cvt_pk_bf16_f32 v{t}, v{v0_+1}, v{v0_+1}'); I(f'v_cvt_pk_bf16_f32 v{t+1}, v{v0_+1}, v{E+7}')
            I(f'v_cvt_pk_bf16_f32 v{t+2}, v{v0_}, v{v0_}'); I(f'v_cvt_pk_bf16_f32 v{t+3}, v{v0_}, v{v0_}')
            I(f'ds_write_b128 v{k2}, {V(t,4)} offset:{off}')
    a.ifelse('KE', ex0, ex1)
    cu0, cu1, ck, ys = 20, 21, 22, 23
    I(f'v_and_b32 v25, 15, v0'); I(f'v_add_u32 v26, 1, v25'); I(f'v_and_b32 v27, 3, v26'); I(f'v_sub_u32 v26, v26, v27')
    I(f'v_mul_u32_u24 v27, 4160, v27'); I(f'v_lshl_add_u32 v27, v26, 1, v27'); I(f'v_lshrrev_b32 v26, 4, v0'); I(f'v_lshl_add_u32 v27, v26, 4, v27')
    I(f's_lshl_b32 s{sT1}, s{sP}, 8'); I(f's_add_u32 s{sT1}, s{sT1}, s{sT0}'); I(f's_sub_u32 s{sT1}, s{sT1}, 16')
    I(f'v_add_u32 v{cu0}, s{sT1}, v27'); I(f'v_add_u32 v{cu1}, 2048, v{cu0}')
    I(f'v_and_b32 v26, 1, v26'); I(f'v_sub_u32 v27, v{hb}, v25'); I(f'v_add_u32 v27, 15, v27'); I(f'v_mul_u32_u24 v{ck}, 2304, v26')
    I(f'v_lshl_add_u32 v{ck}, v27, 4, v{ck}'); I(f's_lshl_b32 s{sT1}, s{sP}, 7'); I(f's_add_u32 s{sT1}, s{sT1}, s{sKB}'); I(f'v_add_u32 v{ck}, s{sT1}, v{ck}')
    I(f'v_lshlrev_b32 v{ys}, 9, v26'); I(f'v_lshl_add_u32 v{ys}, v25, 5, v{ys}'); I(f'v_lshl_add_u32 v{ys}, v{hb}, 4, v{ys}')
    a.barrier()
    stamp()
    if stop == 2:
        I(f's_mul_i32 s{sT0}, s2, 9216'); I(f's_add_u32 s{sT0}, s{sT0}, 0xD00000'); I(f'v_add_u32 v25, {LB}, v{vL16}')
        for i in range(9):
            I(f'ds_read_b128 v[64:67], v25 offset:{1024*i}'); I(f'buffer_store_dwordx4 v[64:67], v{vL16}, {WS}, s{sT0} offen'); I(f's_add_u32 s{sT0}, s{sT0}, 1024')
            a.waitcnt(vm=0)
        fin(); return
    CA, CBf = [96, 128], [160, 192]
    def creads(st):
        r = []
        for i in range(8):
            o = 8*st + 64*(i & 3)
            r.append(f'ds_read_b128 {V(CBf[st&1]+4*i,4)}, v{ck} offset:{256*(7-i) + 32*st}')
            r.append(f'ds_read2_b64 {V(CA[st&1]+4*i,4)}, v{cu0 if i < 4 else cu1} offset0:{o} offset1:{o+1}')
        return r
    r0 = creads(0)
    for x in [r0[1]] + r0[0::2] + r0[3::2]: I(x)
    for st in range(4):
        nx = creads(st+1) if st < 3 else []
        nx = nx[1:2] + nx[0::2] + nx[3::2]
        c = 0
        for i in range(8):
            for cb in range(i, 8):
                d = V(ACC+4*cb, 4)
                I(f'v_mfma_f32_16x16x32_bf16 {d}, {V(CA[st&1]+4*i,4)}, {V(CBf[st&1]+4*(cb-i),4)}, {0 if (st == 0 and i == 0) else d}')
                c += 1
                if c >= 4 and c % 2 == 0 and nx: I(nx.pop(0))
        assert not nx
    xc, xq = 25, 26
    I(f's_lshl_b32 s{sT0}, s{sW}, 12'); I(f's_add_u32 s{sT1}, s{sT0}, 53504'); I(f'v_add_u32 v{xc}, s{sT1}, v{vL16}')
    I(f's_xor_b32 s{sT0}, s{sT0}, 4096'); I(f's_add_u32 s{sT1}, s{sT0}, 53504'); I(f'v_add_u32 v{xq}, s{sT1}, v{vL16}')
    I(f's_cmp_eq_u32 s{sP}, 1')
    def csnd(o):
        def f():
            for q in range(4): I(f'ds_write_b128 v{xc}, {V(ACC+o+4*q,4)} offset:{1024*q}')
        return f
    a.ifelse('CS', csnd(16), csnd(0))
    a.barrier()
    E = 96; T = 112
    for q in range(4): I(f'ds_read_b128 {V(E+4*q,4)}, v{xq} offset:{1024*q}')
    I(f's_cmp_eq_u32 s{sP}, 1')
    def cadd(o):
        def f():
            for e in range(16): I(f'v_add_f32 v{E+e}, v{E+e}, v{ACC+o+e}')
        return f
    a.ifelse('CA', cadd(0), cadd(16))
    for e in range(8): I(f'v_cvt_pk_bf16_f32 v{T+e}, v{E+2*e}, v{E+2*e+1}')
    for pr in range(2):
        for e in range(2): I(f'v_permlane16_swap_b32 v{T+4*pr+e}, v{T+4*pr+2+e}')
    for pr in range(2): tk['y'] = I(f'buffer_store_dwordx4 {V(T+4*pr,4)}, v{ys}, {WS}, s{sY} offen offset:{1024*pr} sc1')
    stamp()
    I(f's_lshl_b32 s{sT1}, s2, 2'); I(f's_add_u32 s{sT1}, s{sT1}, s{sW}'); I(f's_lshl_b32 s{sT1}, s{sT1}, 7'); I(f's_add_u32 s{sT1}, s{sT1}, {YF}')
    if stop == 3:
        fin(); return
    vG3, vYF, vYFa, vX, vBD = 14, 15, 16, 17, 19
    XE, B2, DS, YR, MRs = 128, 136, 144, 152, 160
    I(f'v_xor_b32 v{vG3}, 64, v{vG2}')
    ldYF = lambda: I(f'buffer_load_dword v{vYF}, v{vYFa}, {WS}, 0 offen sc1')
    def e_y0():
        a.wait(tk['y']); flag_store(sT1)
    def e_a():
        I(f's_lshl_b32 s{sT2}, s{sJ}, 1'); I(f's_add_u32 s{sT2}, s{sT2}, s{sP}')
        I(f's_lshl_b32 s{sT1}, s{sR}, 1'); I(f's_add_u32 s{sT1}, s{sT1}, s{sC}')
        I(f's_mul_i32 s{sXO}, s{sT1}, {32*896}'); I(f's_lshl_b32 s{sK}, s{sT2}, 6'); I(f's_add_u32 s{sXO}, s{sXO}, s{sK}')
    def e_b():
        I(f'v_and_b32 v{vX}, 31, v0'); I(f'v_mul_u32_u24 v{vX}, 896, v{vX}'); I(f'v_lshl_add_u32 v{vX}, v{hb}, 3, v{vX}')
        I(f'v_lshlrev_b32 v{vBD}, 3, v{hb}'); I(f'v_add_u32 v{vBD}, s{sK}, v{vBD}')
    def e_c():
        for q in range(4): I(f'buffer_load_dwordx2 {V(XE+2*q,2)}, v{vX}, s[{SX}:{SX+3}], s{sXO} offen offset:{16*q}')
    def e_d():
        for q in range(4): I(f'global_load_dwordx2 {V(B2+2*q,2)}, v{vBD}, s[30:31] offset:{16*q}')
    def e_e():
        for q in range(4): I(f'global_load_dwordx2 {V(DS+2*q,2)}, v{vBD}, s[20:21] offset:{16*q}')
    def e_f():
        I(f's_lshl_b32 s{sK}, s{sT2}, 13'); I(f's_add_u32 s{sK}, s{sK}, {YF}'); I(f'v_lshlrev_b32 v{vYFa}, 7, v0'); I(f'v_add_u32 v{vYFa}, s{sK}, v{vYFa}')
        I(f's_lshl_b32 s{sT2}, s{sT2}, 17'); I(f's_lshl_b32 s{sK}, s{sT1}, 6'); I(f's_add_u32 s{sT2}, s{sT2}, s{sK}'); I(f's_add_u32 s{sT2}, s{sT2}, {YT}')
    ya, yw, yr, sa, rw = 20, 21, 22, 23, 25
    def e_g():
        I(f'v_lshrrev_b32 v{ya}, 2, v0'); I(f'v_lshlrev_b32 v{ya}, 12, v{ya}'); I(f'v_and_b32 v{yw}, 3, v0'); I(f'v_lshl_add_u32 v{ya}, v{yw}, 4, v{ya}')
        I(f's_lshl_b32 s{sK}, s{sW}, 11'); I(f's_add_u32 s{sK}, s{sK}, {LB}'); I(f'v_add_u32 v{yw}, s{sK}, v{vL16}')
    def e_h():
        I(f'v_bfe_u32 v{yr}, v0, 2, 2'); I(f'v_lshl_add_u32 v{yr}, v{hb}, 2, v{yr}'); I(f'v_lshl_add_u32 v{yr}, v{yr}, 6, v{vTR}'); I(f'v_add_u32 v{yr}, s{sK}, v{yr}')
        I(f'v_and_b32 v{sa}, 31, v0'); I(f's_lshl_b32 s{sK}, s{sC}, 8'); I(f's_add_u32 s{sK}, s{sK}, {LSTAT}'); I(f'v_lshl_add_u32 v{sa}, v{sa}, 3, s{sK}')
    def e_i():
        I(f'ds_read_b64 {V(MRs,2)}, v{sa}')
        I(f's_lshl_b32 s{sK}, s{sW}, 12'); I(f'v_add_u32 v{rw}, s{sK}, v{vL16}')
        for x in range(1, 4): I(f'v_xor_b32 v{rw+x}, {4096*x}, v{rw}')
        I(f's_add_u32 s{sK}, s{sT2}, 65536')
    def hfrag(k, tb):
        n, sg = divmod(k, 4)
        return V(HOWN + 16*tb + 4*sg, 4) if n == 0 else A(32*(n-1) + 16*tb + 4*sg, 4)
    gemm(28, hfrag, lambda k: [], lambda fb: '0', vG2, vG3, 1024,
         {6: e_y0, 7: e_a, 8: e_b, 9: e_c, 10: e_d, 11: e_e, 12: e_f, 13: e_g, 14: e_h, 15: e_i, 22: ldYF})
    stamp()
    poll(vYF, ldYF, cmp_flag(vYF))
    I(f'buffer_load_dwordx4 {V(YR,4)}, v{ya}, {WS}, s{sT2} offen sc1'); I(f'buffer_load_dwordx4 {V(YR+4,4)}, v{ya}, {WS}, s{sK} offen sc1')
    for x in range(1, 4):
        o = ACC + 32*(x >> 1) + 16*(x & 1)
        for q in range(4): I(f'ds_write_b128 v{rw+x}, {V(o+4*q,4)} offset:{16384*(x-1) + 1024*q}')
    XF32, XN, t = 164, 180, 196
    for e in range(8): unpack(XF32+2*e, XF32+2*e+1, XE+e)
    xnorm(XE, 8, MRs, XN)
    for e in range(8): I(f'v_cvt_pk_bf16_f32 v{XE+e}, v{XN+2*e}, v{XN+2*e+1}')
    for e in range(8): unpack(XN+2*e, XN+2*e+1, XE+e)
    for e in range(8): unpack(t+2*e, t+2*e+1, DS+e)
    for e in range(8): I(f'v_pk_mul_f32 {V(XN+2*e,2)}, {V(XN+2*e,2)}, {V(t+2*e,2)}')
    for e in range(8): unpack(t+2*e, t+2*e+1, B2+e)
    for e in range(8): I(f'v_pk_add_f32 {V(ACC+2*e,2)}, {V(ACC+2*e,2)}, {V(t+2*e,2)}')
    a.barrier()
    for x in range(1, 4):
        for q in range(4): I(f'ds_read_b128 {V(ACC+16*x+4*q,4)}, v{rw} offset:{16384*(x-1) + 1024*q}')
    for x in range(1, 4):
        for e in range(8): I(f'v_pk_add_f32 {V(ACC+2*e,2)}, {V(ACC+2*e,2)}, {V(ACC+16*x+2*e,2)}')
    I(f'ds_write_b128 v{yw}, {V(YR,4)}'); I(f'ds_write_b128 v{yw}, {V(YR+4,4)} offset:1024')
    for q in range(4): I(f'ds_read_b64_tr_b16 {V(YR+2*q,2)}, v{yr} offset:{512*q}')
    I(f's_mov_b32 s{sK}, {f2u(-math.log2(math.e))}')
    for e in range(8): I(f'v_pk_mul_f32 {V(t+2*e,2)}, {V(ACC+2*e,2)}, s[{sK}:{sK+1}] op_sel_hi:[1,0]')
    for e in range(16): I(f'v_exp_f32 v{t+e}, v{t+e}')
    for e in range(8): I(f'v_pk_add_f32 {V(t+2*e,2)}, {V(t+2*e,2)}, 1.0 op_sel_hi:[1,0]')
    for e in range(16): I(f'v_rcp_f32 v{t+e}, v{t+e}')
    for e in range(8): I(f'v_pk_mul_f32 {V(ACC+2*e,2)}, {V(ACC+2*e,2)}, {V(t+2*e,2)}')
    for e in range(8): unpack(t+2*e, t+2*e+1, YR+e)
    for e in range(8): I(f'v_pk_add_f32 {V(XN+2*e,2)}, {V(XN+2*e,2)}, {V(t+2*e,2)}')
    for e in range(8): I(f'v_pk_fma_f32 {V(XN+2*e,2)}, {V(XN+2*e,2)}, {V(ACC+2*e,2)}, {V(XF32+2*e,2)}')
    for e in range(8): I(f'v_cvt_pk_bf16_f32 v{YR+e}, v{XN+2*e}, v{XN+2*e+1}')
    I(f'v_lshl_add_u32 v{vX}, v{hb}, 3, v{vX}')
    for pr in range(2):
        for e in range(2): I(f'v_permlane32_swap_b32 v{YR+4*pr+e}, v{YR+4*pr+2+e}')
    for pr in range(2): I(f'buffer_store_dwordx4 {V(YR+4*pr,4)}, v{vX}, s[{SOUT}:{SOUT+3}], s{sXO} offen offset:{32*pr}')
    stamp()
    fin()
```

```python
import sys, struct, math
sys.path.insert(0, 'work')
from asmlib import *
NAME = 'recurrent_scan__ssm_conv_s4__mixer_channel_mlp__prompt'
def f2u(x): return '0x%08x' % struct.unpack('<I', struct.pack('<f', x))[0]
LA, LB, LRING, LSTAT, LEND = 0, 69888, 79104, 161024, 161536
Y2S = 912; NSLOT = 10
XNT, YT, HB, FL, STAMP = 0, 0x200000, 0x400000, 0xB00000, 0xC00000
XF, HF, YF = FL, FL + 0x20000, FL + 0x40000
SX, SW1, SW2, SWS, SOUT, SU, SDBG = 40, 44, 48, 52, 56, 60, 64
sJ, sR, sW, sNON, sRING, sT0, sT1, sT2 = 68, 69, 70, 71, 72, 73, 74, 75
sW2 = 76
sH = 83
sK = 90
sXO = 92
sLD = 93; sP = 94; sC = 95
sST = 96
vL, vD1, vD2, vA0, vA1, vB0, vB1, vPAR, vL16, vT = 0, 1, 2, 3, 4, 5, 6, 7, 13, 14
HOWN = 224

def gen(stop=99, stamps=False):
    a = Asm(); I = a
    nst = [0]
    def stamp():
        if not stamps: return
        I(f's_memtime s[{sST}:{sST+1}]'); a.waitcnt(lg=0)
        I(f'v_mov_b32 v63, s{sST}'); I(f's_lshl_b32 s{sST+2}, s2, 2'); I(f's_add_u32 s{sST+2}, s{sST+2}, s{sW}')
        I(f's_lshl_b32 s{sST+2}, s{sST+2}, 7'); I(f's_add_u32 s{sST+2}, s{sST+2}, {STAMP + 4*nst[0]}')
        I('s_mov_b64 exec, 1'); I(f'buffer_store_dword v63, off, s[{SWS}:{SWS+3}], s{sST+2}'); I('s_mov_b64 exec, -1')
        nst[0] += 1
    def srd(d, b, n):
        I(f's_mov_b32 s{d}, s{b}'); I(f's_mov_b32 s{d+1}, s{b+1}'); I(f's_mov_b32 s{d+2}, {n}'); I(f's_mov_b32 s{d+3}, 0x00020000')
    def fin():
        a.waitcnt(vm=0, lg=0); a._emit('s_endpgm')
    lab = [0]
    def poll(vf, reload, cmp):
        lab[0] += 1; n = f'P{lab[0]}'
        cmp(); a.settle(); a._emit(f's_cbranch_scc0 {n}_ok'); st = a.snap()
        I(f's_mov_b32 s{sST+3}, 0x40000'); a.label(f'{n}_lp')
        reload(); a._emit('s_waitcnt vmcnt(0)'); a.vm = []
        I(f's_sub_u32 s{sST+3}, s{sST+3}, 1'); a._emit(f's_cbranch_scc1 {n}_ok')
        cmp(); a.settle(); a._emit(f's_cbranch_scc1 {n}_lp')
        a.label(f'{n}_ok'); a.restore(st)
    def cmp_flag(vf):
        def f():
            I(f'v_cmp_ne_u32 vcc, s{sNON}, v{vf}'); I('s_and_b64 vcc, vcc, exec')
        return f
    def flag_store(soff):
        I(f'v_mov_b32 v62, s{sNON}'); I('s_mov_b64 exec, 1')
        I(f'buffer_store_dword v62, off, s[{SWS}:{SWS+3}], s{soff} sc1'); I('s_mov_b64 exec, -1')
    def unpack(dlo, dhi, src):
        I(f'v_lshlrev_b32 v{dlo}, 16, v{src}'); I(f'v_and_b32 v{dhi}, 0xffff0000, v{src}')
    def rne2(x, y, t):
        I(f'v_cvt_pk_bf16_f32 v{t}, v{x}, v{y}'); unpack(x, y, t)

    I('s_cmp_ge_u32 s2, 224'); a._emit('s_cbranch_scc1 END')
    I('s_load_dwordx16 s[4:19], s[0:1], 0'); I('s_load_dwordx16 s[20:35], s[0:1], 64'); I('s_load_dwordx2 s[36:37], s[0:1], 128')
    I('s_memrealtime s[38:39]')
    I('v_lshrrev_b32 v1, 6, v0'); I('v_and_b32 v0, 63, v0'); I(f'v_readfirstlane_b32 s{sW}, v1')
    I(f's_and_b32 s{sT0}, s2, 1'); I(f's_mul_i32 s{sT0}, s{sT0}, 28'); I(f's_lshr_b32 s{sT1}, s2, 3'); I(f's_add_u32 s{sT0}, s{sT0}, s{sT1}')
    I(f's_lshr_b32 s{sJ}, s{sT0}, 3'); I(f's_and_b32 s{sT0}, s{sT0}, 7'); I(f's_and_b32 s{sT1}, s2, 6'); I(f's_lshl_b32 s{sT1}, s{sT1}, 2')
    I(f's_add_u32 s{sR}, s{sT0}, s{sT1}')
    I(f's_and_b32 s{sP}, s{sW}, 1'); I(f's_lshr_b32 s{sC}, s{sW}, 1')
    rho, c8, xa, xb = 14, 15, 16, 17
    I(f'v_lshrrev_b32 v{rho}, 3, v0'); I(f'v_and_b32 v{c8}, 7, v0')
    I(f'v_lshlrev_b32 v{vL16}, 4, v0')
    I(f'v_mul_u32_u24 v{xa}, 896, v{rho}'); I(f'v_lshl_add_u32 v{xa}, v{c8}, 4, v{xa}'); I(f'v_add_u32 v{xb}, 7168, v{xa}')
    I(f's_lshl_b32 s{sT0}, s{sR}, 2'); I(f's_add_u32 s{sT0}, s{sT0}, s{sW}'); I(f's_mul_i32 s{sT0}, s{sT0}, {16*896}')
    I(f's_lshl_b32 s{sT1}, s{sJ}, 7'); I(f's_add_u32 s{sT1}, s{sT1}, s{sT0}')
    I(f'v_lshrrev_b32 v18, 2, v0'); I(f'v_and_b32 v18, 4, v18'); I(f'v_xor_b32 v18, v18, v{c8}'); I('v_lshlrev_b32 v18, 4, v18')
    I(f'v_mul_u32_u24 v{vD1}, 3584, v{rho}'); I(f'v_add_u32 v{vD1}, v{vD1}, v18')
    I(f'v_mul_u32_u24 v{vD2}, 896, v{rho}'); I(f'v_add_u32 v{vD2}, v{vD2}, v18')
    I(f's_lshl_b32 s{sT2}, s{sJ}, 2'); I(f's_add_u32 s{sT2}, s{sT2}, s{sW}'); I(f's_lshl_b32 s{sT2}, s{sT2}, 7')
    I(f'v_add_u32 v{vD1}, s{sT2}, v{vD1}')
    I(f's_mul_i32 s{sRING}, s{sW}, {NSLOT*2048}'); I(f's_add_u32 s{sRING}, s{sRING}, {LRING}')
    srd(SX, 4, 2048*896)
    X0, X1, O0, O1 = 64, 92, 120, 124
    for i in range(7):
        I(f'buffer_load_dwordx4 {V(X0+4*i,4)}, v{xa}, s[{SX}:{SX+3}], s{sT0} offen offset:{128*i}')
        I(f'buffer_load_dwordx4 {V(X1+4*i,4)}, v{xb}, s[{SX}:{SX+3}], s{sT0} offen offset:{128*i}')
    I(f'buffer_load_dwordx4 {V(O0,4)}, v{xa}, s[{SX}:{SX+3}], s{sT1} offen')
    I(f'buffer_load_dwordx4 {V(O1,4)}, v{xb}, s[{SX}:{SX+3}], s{sT1} offen')
    srd(SW1, 24, 448*3584); srd(SWS, 36, 0x1000000); srd(SDBG, 34, 256)
    I(f's_or_b32 s{sNON}, s2, s{sW}'); I(f's_cmp_lg_u32 s{sNON}, 0'); a.settle(); a._emit('s_cbranch_scc1 NONCE')
    st = a.snap(); I('s_or_b32 s38, s38, 1'); I('v_mov_b32 v62, s38'); I('s_mov_b64 exec, 1')
    I(f'buffer_store_dword v62, off, s[{SDBG}:{SDBG+3}], 0 sc1'); I('s_mov_b64 exec, -1'); a.settle()
    a.label('NONCE'); a.restore(st)
    dtok = {}
    def dma(step):
        slot = step % NSLOT
        for hh in range(2):
            I(f's_add_u32 m0, s{sRING}, {slot*2048 + hh*1024}')
            if step < 28:
                I(f's_mov_b32 s{sT0}, {(16*step + 8*hh)*3584}')
                dtok[step] = I(f'buffer_load_dwordx4 v{vD1}, s[{SW1}:{SW1+3}], s{sT0} offen lds')
            else:
                n, sg = divmod(step - 28, 4)
                I(f's_add_u32 s{sT0}, s{sW2+n}, {(16*sg + 8*hh)*896}')
                dtok[step] = I(f'buffer_load_dwordx4 v{vD2}, s[{SW2}:{SW2+3}], s{sT0} offen lds')
    for k in range(NSLOT): dma(k)
    hb = 18
    I(f'v_lshrrev_b32 v{hb}, 5, v0'); I(f'v_lshlrev_b32 v19, 3, v{hb}'); I(f'v_add_u32 v19, s{sT2}, v19')
    B1R = 128
    for fb in range(2):
        for q in range(4):
            I(f'global_load_dwordx2 {V(B1R+8*fb+2*q,2)}, v19, s[26:27] offset:{64*fb+16*q}')
    I(f's_lshl_b32 s{sT0}, s2, 10'); I(f's_lshl_b32 s{sT1}, s{sW}, 8'); I(f's_add_u32 s{sT0}, s{sT0}, s{sT1}')
    I(f'v_lshlrev_b32 v19, 2, v0'); I(f'v_add_u32 v19, s{sT0}, v19')
    for i in range(6): I(f'global_load_dword v{vPAR+i}, v19, s[{6+2*i}:{7+2*i}]')
    I(f's_lshl_b32 s{sT0}, s2, 2'); I(f's_load_dword s{sLD}, s[18:19], s{sT0}')
    srd(SW2, 28, 1792*896); srd(SOUT, 32, 2048*896)
    I(f's_mul_i32 s{sT0}, s{sW}, {64*896}'); I(f's_lshl_b32 s{sT1}, s{sJ}, 7'); I(f's_add_u32 s{sT0}, s{sT0}, s{sT1}')
    I(f'v_add_u32 v{vD2}, s{sT0}, v{vD2}')
    I(f's_mul_i32 s{sT1}, s{sR}, 28'); I(f's_add_u32 s{sT1}, s{sT1}, s{sW}'); I(f's_lshl_b32 s{sT1}, s{sT1}, 13'); I(f's_add_u32 s{sT1}, s{sT1}, {HB}')
    for n in range(7):
        I(f's_add_u32 s{sT0}, s{sJ}, {n}'); I(f's_cmp_ge_u32 s{sT0}, 7'); I(f's_cselect_b32 s{sT2}, 7, 0'); I(f's_sub_u32 s{sT0}, s{sT0}, s{sT2}')
        I(f's_mul_i32 s{sW2+n}, s{sT0}, {256*896}'); I(f's_lshl_b32 s{sT0}, s{sT0}, 15'); I(f's_add_u32 s{sH+n}, s{sT0}, s{sT1}')
    g, r4, c4 = 19, 20, 21
    I(f'v_bfe_u32 v{g}, v0, 4, 1'); I(f'v_bfe_u32 v{r4}, v0, 2, 2'); I(f'v_and_b32 v{c4}, 3, v0')
    I(f'v_lshlrev_b32 v22, 5, v{g}'); I(f'v_lshl_add_u32 v22, v{c4}, 3, v22')
    I(f'v_bfe_u32 v23, v0, 3, 1'); I('v_lshl_or_b32 v23, v23, 6, v22')
    I(f'v_lshl_add_u32 v23, v{r4}, 7, v23'); I(f'v_add_u32 v23, s{sRING}, v23')
    I(f'v_lshl_add_u32 v{vA0}, v{hb}, 10, v23'); I(f'v_xor_b32 v{vA1}, 64, v{vA0}')
    vG2, vTR = 60, 61
    I(f'v_lshl_add_u32 v{vG2}, v{hb}, 9, v23'); I(f's_lshl_b32 s{sT0}, s{sP}, 6'); I(f'v_xor_b32 v{vG2}, s{sT0}, v{vG2}')
    I(f'v_mov_b32 v{vTR}, v22')
    I(f'v_and_b32 v23, 31, v0'); I(f'v_mul_u32_u24 v23, {Y2S}, v23'); I(f'v_lshl_add_u32 v23, v{hb}, 4, v23')
    I(f's_mul_i32 s{sT0}, s{sC}, {32*Y2S}'); I(f'v_add_u32 v{vB0}, s{sT0}, v23'); I(f's_sub_u32 s{sT0}, {32*Y2S}, s{sT0}'); I(f'v_add_u32 v{vB1}, s{sT0}, v23')
    wy, wx, wst = 24, 25, 26
    I(f's_lshl_b32 s{sT0}, s{sW}, 4'); I(f'v_add_u32 v27, s{sT0}, v{rho}')
    I(f'v_mul_u32_u24 v{wy}, {Y2S}, v27'); I(f'v_lshl_add_u32 v{wy}, v{c8}, 4, v{wy}')
    I(f'v_mul_u32_u24 v{wx}, 144, v27'); I(f'v_lshl_add_u32 v{wx}, v{c8}, 4, v{wx}'); I(f'v_add_u32 v{wx}, {LB}, v{wx}')
    I(f'v_lshlrev_b32 v{wst}, 3, v27'); I(f'v_add_u32 v{wst}, {LSTAT}, v{wst}')
    stamp()
    s0, s1, q0, q1 = 28, 29, 30, 31
    for r in (s0, s1, q0, q1): I(f'v_mov_b32 v{r}, 0')
    I(f's_mov_b32 s{sT0}, 0x3f803f80')
    for i in range(28):
        I(f'v_dot2c_f32_bf16 v{s0}, s{sT0}, v{X0+i}'); I(f'v_dot2c_f32_bf16 v{q0}, v{X0+i}, v{X0+i}')
        I(f'v_dot2c_f32_bf16 v{s1}, s{sT0}, v{X1+i}'); I(f'v_dot2c_f32_bf16 v{q1}, v{X1+i}, v{X1+i}')
    for m in ('quad_perm:[1,0,3,2]', 'quad_perm:[2,3,0,1]', 'row_half_mirror'):
        for r in (s0, s1, q0, q1): I(f'v_add_f32_dpp v{r}, v{r}, v{r} {m} row_mask:0xf bank_mask:0xf')
    MR0, MR1, AB0, AB1 = 32, 34, 36, 38
    t = 40
    for r in (s0, s1, q0, q1): I(f'v_mul_f32 v{r}, {f2u(1/448)}, v{r}')
    for s_, q_ in ((s0, q0), (s1, q1)): I(f'v_fma_f32 v{q_}, -v{s_}, v{s_}, v{q_}')
    for q_ in (q0, q1): I(f'v_max_f32 v{q_}, 0, v{q_}')
    def rstd(va, vb, oa, ob):
        I(f'v_cvt_pk_bf16_f32 v{t}, v{va}, v{vb}'); unpack(oa, ob, t)
        for o in (oa, ob): I(f'v_add_f32 v{o}, {f2u(1e-5)}, v{o}')
        rne2(oa, ob, t)
        for o in (oa, ob): I(f'v_sqrt_f32 v{o}, v{o}')
        rne2(oa, ob, t)
        for o in (oa, ob): I(f'v_rcp_f32 v{o}, v{o}')
    I(f'v_cvt_pk_bf16_f32 v{t}, v{s0}, v{s1}'); unpack(MR0, MR1, t)
    rstd(q0, q1, MR0+1, MR1+1)
    for s_, q_, M in ((s0, q0, MR0), (s1, q1, MR1)):
        I(f'v_sub_f32 v{s_}, v{s_}, v{M}'); I(f'v_mul_f32 v{q_}, v{q_}, v{M+1}')
    for s_, q_, M in ((s0, q0, MR0), (s1, q1, MR1)):
        I(f'v_mul_f32 v{s_}, v{s_}, v{M+1}'); I(f'v_mul_f32 v{q_}, v{q_}, v{M+1}')
    I(f'ds_write_b64 v{wst}, {V(MR0,2)}'); I(f'ds_write_b64 v{wst}, {V(MR1,2)} offset:64')
    rne2(s0, s1, t)
    rstd(q0, q1, AB0+1, AB1+1)
    for s_, M, AB in ((s0, MR0, AB0), (s1, MR1, AB1)):
        I(f'v_mul_f32 v{AB}, v{M+1}, v{AB+1}'); I(f'v_mul_f32 v{s_}, v{s_}, v{AB+1}')
    for s_, M, AB in ((s0, MR0, AB0), (s1, MR1, AB1)):
        I(f'v_fma_f32 v{AB+1}, -v{M}, v{AB}, -v{s_}')
    for i in range(7):
        for X, AB, off in ((X0, AB0, 0), (X1, AB1, 8*Y2S)):
            for e in range(4): unpack(t+2*e, t+2*e+1, X+4*i+e)
            for e in range(4): I(f'v_pk_fma_f32 {V(t+2*e,2)}, {V(t+2*e,2)}, {V(AB,2)}, {V(AB,2)} op_sel:[0,0,1] op_sel_hi:[1,0,1]')
            for e in range(4): I(f'v_cvt_pk_bf16_f32 v{X+4*i+e}, v{t+2*e}, v{t+2*e+1}')
            I(f'ds_write_b128 v{wy}, {V(X+4*i,4)} offset:{off+128*i}')
    def xnorm(src, n, M, t):
        for e in range(n): unpack(t+2*e, t+2*e+1, src+e)
        for e in range(n): I(f'v_pk_add_f32 {V(t+2*e,2)}, {V(t+2*e,2)}, {V(M,2)} op_sel_hi:[1,0] neg_lo:[0,1] neg_hi:[0,1]')
        for e in range(n): I(f'v_cvt_pk_bf16_f32 v{src+e}, v{t+2*e}, v{t+2*e+1}')
        for e in range(n): unpack(t+2*e, t+2*e+1, src+e)
        for e in range(n): I(f'v_pk_mul_f32 {V(t+2*e,2)}, {V(t+2*e,2)}, {V(M,2)} op_sel:[0,1] op_sel_hi:[1,1]')
    for O, M, off in ((O0, MR0, 0), (O1, MR1, 8*144)):
        xnorm(O, 4, M, t)
        for e in range(4): I(f'v_cvt_pk_bf16_f32 v{O+e}, v{t+2*e}, v{t+2*e+1}')
        I(f'ds_write_b128 v{wx}, {V(O,4)} offset:{off}')
    CB = 144
    for fb in range(2):
        for q in range(4):
            for e in range(2): unpack(CB+16*fb+4*q+2*e, CB+16*fb+4*q+2*e+1, B1R+8*fb+2*q+e)
    xr, xs = 24, 25
    I(f'v_lshrrev_b32 v27, 4, v0'); I(f'v_lshl_add_u32 v{xr}, v27, 3, v{r4}'); I(f'v_mul_u32_u24 v{xr}, 144, v{xr}')
    I(f'v_lshl_add_u32 v{xr}, v{c4}, 3, v{xr}'); I(f's_lshl_b32 s{sT0}, s{sW}, 5'); I(f's_add_u32 s{sT0}, s{sT0}, {LB}'); I(f'v_add_u32 v{xr}, s{sT0}, v{xr}')
    I(f'v_and_b32 v{xs}, 15, v0'); I(f'v_lshlrev_b32 v{xs}, 12, v{xs}'); I(f'v_lshl_add_u32 v{xs}, v27, 4, v{xs}')
    I(f's_lshl_b32 s{sT1}, s{sJ}, 2'); I(f's_add_u32 s{sT1}, s{sT1}, s{sW}'); I(f's_lshl_b32 s{sT2}, s{sT1}, 5'); I(f's_add_u32 s{sT2}, s{sT2}, s{sR}')
    I(f's_lshl_b32 s{sT2}, s{sT2}, 7'); I(f's_add_u32 s{sT2}, s{sT2}, {XF}')
    I(f's_lshl_b32 s{sT1}, s{sT1}, 16'); I(f's_lshl_b32 s{sXO}, s{sR}, 7'); I(f's_add_u32 s{sT1}, s{sT1}, s{sXO}')
    a.barrier()
    stamp()
    ACC = 64; FA = [176, 184]; FBr = [192, 200]
    def a_reads(step, buf, va0, va1, second):
        so = (step % NSLOT) * 2048
        return [f'ds_read_b64_tr_b16 {V(FA[buf]+o,2)}, v{va} offset:{so+x}' for va, o0 in ((va0, 0), (va1, 4)) for o, x in ((o0, 0), (o0+2, second))]
    def gemm(base, bfrag, breads, cinit, va0, va1, second, extra):
        def reads(k):
            a.wait(dtok[base+k]); r = a_reads(base+k, k & 1, va0, va1, second); b = breads(k)
            return r[:2] + b[:1] + r[2:] + b[1:]
        for x in reads(0): I(x)
        for k in range(28):
            for mi, (fb, tb) in enumerate(((0, 0), (1, 0), (0, 1), (1, 1))):
                d = V(ACC + 32*tb + 16*fb, 16)
                I(f'v_mfma_f32_32x32x16_bf16 {d}, {V(FA[k&1]+4*fb,4)}, {bfrag(k, tb)}, {cinit(fb) if k == 0 else d}')
                if mi == 0 and k < 27:
                    for x in reads(k+1): I(x)
                if mi == 1 and base + k + NSLOT < 56: dma(base + k + NSLOT)
                if mi == 2 and k in extra: extra[k]()
    XT = 208; vNON = 216; tk = {}
    def e_xn0():
        for i, o in enumerate((0, 576, 4608, 5184)): I(f'ds_read_b64_tr_b16 {V(XT+2*i,2)}, v{xr} offset:{o}')
        I(f'buffer_load_dword v{vNON}, off, s[{SDBG}:{SDBG+3}], 0 sc1')
    def e_xn1():
        I(f'buffer_store_dwordx4 {V(XT,4)}, v{xs}, s[{SWS}:{SWS+3}], s{sT1} offen sc1')
        tk['xn'] = I(f'buffer_store_dwordx4 {V(XT+4,4)}, v{xs}, s[{SWS}:{SWS+3}], s{sT1} offen offset:64 sc1')
    def e_xn2():
        def cm(): I(f'v_readfirstlane_b32 s{sNON}, v{vNON}'); I(f's_cmp_eq_u32 s{sNON}, 0')
        poll(vNON, lambda: I(f'buffer_load_dword v{vNON}, off, s[{SDBG}:{SDBG+3}], 0 sc1'), cm)
        a.wait(tk['xn']); flag_store(sT2)
    gemm(0, lambda k, tb: V(FBr[k&1]+4*tb, 4),
         lambda k: [f'ds_read_b128 {V(FBr[k&1]+4*tb,4)}, v{vb} offset:{32*k}' for tb, vb in ((0, vB0), (1, vB1))],
         lambda fb: V(CB+16*fb, 16), vA0, vA1, 512, {0: e_xn0, 1: e_xn1, 12: e_xn2})
    stamp()
    k0 = -2*math.sqrt(2/math.pi)*math.log2(math.e)
    I(f's_mov_b32 s{sK}, {f2u(k0*0.044715)}'); I(f's_mov_b32 s{sK+1}, {f2u(k0)}')
    I(f'v_add_u32 v24, 4096, v{vL16}')
    t = 128
    for tb in range(2):
        for sg in range(4):
            x = ACC + 32*tb + 8*sg; P = lambda e: V(t+2*e, 2); Xp = lambda e: V(x+2*e, 2)
            for e in range(4): I(f'v_pk_mul_f32 {P(e)}, {Xp(e)}, {Xp(e)}')
            for e in range(4): I(f'v_pk_fma_f32 {P(e)}, {P(e)}, s[{sK}:{sK+1}], s[{sK}:{sK+1}] op_sel:[0,0,1] op_sel_hi:[1,0,1]')
            for e in range(4): I(f'v_pk_mul_f32 {P(e)}, {P(e)}, {Xp(e)}')
            for e in range(8): I(f'v_exp_f32 v{t+e}, v{t+e}')
            for e in range(4): I(f'v_pk_add_f32 {P(e)}, {P(e)}, 1.0 op_sel_hi:[1,0]')
            for e in range(8): I(f'v_rcp_f32 v{t+e}, v{t+e}')
            for e in range(4): I(f'v_pk_mul_f32 {P(e)}, {P(e)}, {Xp(e)}')
            f = 4*tb + sg
            for e in range(4): I(f'v_cvt_pk_bf16_f32 v{HOWN+4*f+e}, v{t+2*e}, v{t+2*e+1}')
            tk['h'] = I(f'buffer_store_dwordx4 {V(HOWN+4*f,4)}, v{vL16 if tb == 0 else 24}, s[{SWS}:{SWS+3}], s{sH} offen offset:{1024*sg} sc1')
    stamp()
    if stop == 1:
        fin(); return a
    from gen2 import rest
    rest(locals())
    return a

def build(stop=99, stamps=False):
    a = gen(stop, stamps)
    ref = open(f'cdna_kernels/{NAME}.s.ref').read()
    head = ref[:ref.index('; @launch')]
    txt = head + f'; @launch grid=(224,1,1) block=(256,1,1) lds={LEND}\n'
    txt += f'.amdgcn_target "amdgcn-amd-amdhsa--gfx950"\n.text\n.globl {NAME}_kernel\n.p2align 8\n.type {NAME}_kernel,@function\n{NAME}_kernel:\n'
    txt += a.text() + 'END:\n    s_endpgm\n'
    txt += f'''.section .rodata,"a"
.p2align 6
.amdhsa_kernel {NAME}_kernel
  .amdhsa_next_free_vgpr 512
  .amdhsa_next_free_sgpr 102
  .amdhsa_accum_offset 256
  .amdhsa_group_segment_fixed_size 0
  .amdhsa_kernarg_size 136
  .amdhsa_user_sgpr_count 2
  .amdhsa_user_sgpr_kernarg_segment_ptr 1
  .amdhsa_system_sgpr_workgroup_id_x 1
.end_amdhsa_kernel
'''
    return txt, a
if __name__ == '__main__':
    stop = int(sys.argv[2]) if len(sys.argv) > 2 else 99
    stamps = len(sys.argv) > 3 and sys.argv[3] == '1'
    txt, a = build(stop, stamps)
    open(sys.argv[1], 'w').write(txt)
    print('instrs', a.n, 'nops', a.nops)
```

```python
from gen import *
def rest(L):
    a = I = L['a']; stamp, poll, cmp_flag, flag_store, unpack, fin, gemm, tk, xnorm, srd = (L[k] for k in
        'stamp poll cmp_flag flag_store unpack fin gemm tk xnorm srd'.split())
    stop = L['stop']; vG2, vTR, ACC = L['vG2'], L['vTR'], L['ACC']
    WS = f's[{SWS}:{SWS+3}]'
    tw, tr, dt, hb = 14, 15, 16, 18
    I(f's_mul_i32 s{sT0}, s{sW}, 17408')
    I(f'v_mul_u32_u24 v{tw}, 272, v0'); I(f'v_add_u32 v{tw}, s{sT0}, v{tw}')
    I(f'v_lshrrev_b32 v{hb}, 5, v0'); I(f'v_bfe_u32 v17, v0, 3, 1'); I(f'v_lshl_add_u32 v17, v{hb}, 2, v17'); I(f'v_mul_u32_u24 v17, {8*272}, v17')
    I(f'v_bfe_u32 v{tr}, v0, 2, 1'); I(f'v_lshl_add_u32 v{tr}, v{tr}, 6, v{vTR}'); I(f'v_add3_u32 v{tr}, v{tr}, v17, s{sT0}')
    I(f's_lshl_b32 s{sT1}, s{sC}, 4'); I(f's_lshr_b32 s{sT1}, s{sLD}, s{sT1}'); I(f's_lshl_b32 s{sT1}, s{sT1}, 16')
    I(f'v_mov_b32 v{dt}, {f2u(math.log2(math.e))}'); I(f'v_mul_f32 v{dt}, s{sT1}, v{dt}'); I(f'v_exp_f32 v{dt}, v{dt}')
    I(f'v_cvt_pk_bf16_f32 v{dt}, v{dt}, v{dt}'); I(f'v_lshlrev_b32 v{dt}, 16, v{dt}')
    I(f's_lshr_b32 s{sT1}, s2, 3'); I(f's_lshl_b32 s{sT1}, s{sT1}, 12'); I(f's_add_u32 s{sT1}, s{sT1}, {XF}')
    vXF, vXFa, vHF, vHFa = 56, 57, 58, 59
    I(f'v_and_b32 v{vXFa}, 31, v0'); I(f'v_lshlrev_b32 v{vXFa}, 7, v{vXFa}'); I(f'v_add_u32 v{vXFa}, s{sT1}, v{vXFa}')
    ldXF = lambda: I(f'buffer_load_dword v{vXF}, v{vXFa}, {WS}, 0 offen sc1')
    ldXF()
    I(f's_lshl_b32 s{sT1}, s{sR}, 2'); I(f's_add_u32 s{sT1}, s{sT1}, s{sW}'); I(f's_lshl_b32 s{sT1}, s{sT1}, 10'); I(f's_add_u32 s{sT1}, s{sT1}, {HF}')
    I(f'v_and_b32 v{vHFa}, 7, v0'); I(f'v_min_u32 v{vHFa}, 6, v{vHFa}'); I(f'v_lshlrev_b32 v{vHFa}, 7, v{vHFa}'); I(f'v_add_u32 v{vHFa}, s{sT1}, v{vHFa}')
    ldHF = lambda: I(f'buffer_load_dword v{vHF}, v{vHFa}, {WS}, 0 offen sc1')
    I(f's_lshl_b32 s{sT2}, s{sJ}, 7'); I(f's_add_u32 s{sT2}, s{sT2}, s{sT1}')
    I(f's_lshl_b32 s{sT1}, s2, 1'); I(f's_add_u32 s{sT1}, s{sT1}, s{sC}'); I(f's_lshl_b32 s{sT1}, s{sT1}, 12')
    I(f's_add_u32 s{SU}, s36, s{sT1}'); I(f's_addc_u32 s{SU+1}, s37, 0'); I(f's_mov_b32 s{SU+2}, 4096'); I(f's_mov_b32 s{SU+3}, 0x00020000')
    sY = sLD
    I(f's_lshl_b32 s{sT0}, s{sP}, 11'); I(f's_add_u32 s{sY}, s{sT1}, s{sT0}'); I(f's_add_u32 s{sY}, s{sY}, {YT}')
    a.barrier()
    def cmuls(lst):
        for d, p, q in lst: I(f'v_pk_mul_f32 {V(d,2)}, {V(p,2)}, {V(q,2)} op_sel:[0,0] op_sel_hi:[0,1]')
        for d, p, q in lst: I(f'v_pk_fma_f32 {V(d,2)}, {V(p,2)}, {V(q,2)}, {V(d,2)} op_sel:[1,1,0] op_sel_hi:[1,0,1] neg_lo:[1,0,0]')
    G = lambda b: 64 + 2*(b & 15) if b < 16 else 96 + 2*(b - 16)
    Sx = lambda i: 128 + 2*i
    HH = {}; nx = 146
    for o in (256, 258, 260, 262, 264, 512, 516, 520, 768, 772, 776, 1024, 1032, 1280, 1288, 1536, 1544, 1792, 1800): HH[o] = nx; nx += 2
    for i in range(9): HH[i] = Sx(i)
    g1, g256, g2 = 20, 22, 24; er, ph = 26, 27; PK = 32; KD = 192; KF = 208
    h0 = [0,1,2,3,4,5,6,7, 512,516,520, 1024,1032,1280,1288, None]
    h1 = [256,256,258,260,260,260,262,264, 768,772,776, 1536,1544,1792,1800, None]
    pkn = [0]
    def wr8(srcs, off, neg):
        for comp in range(2):
            p = PK + 4*(pkn[0] % 4); pkn[0] += 1
            n = '-' if (neg and comp) else ''
            for e in range(4):
                x, y = srcs[2*e], srcs[2*e+1]
                if y is None: y = x
                I(f'v_cvt_pk_bf16_f32 v{p+e}, {n}v{x+comp}, {n}v{y+comp}')
            I(f'ds_write_b128 v{tw}, {V(p,4)} offset:{off + 64*comp}')
    U0 = 40
    uE, uA, u3 = 28, 29, 30
    for bt in range(2):
        P = 48
        for i in range(6): I(f'v_lshlrev_b32 v{P+i}, 16, v{vPAR+i}' if bt == 0 else f'v_and_b32 v{P+i}, 0xffff0000, v{vPAR+i}')
        for i in range(4): I(f'v_mul_f32 v{P+i}, v{dt}, v{P+i}')
        I(f'v_mul_f32 v{er}, {f2u(math.log2(math.e))}, v{P}'); I(f'v_mul_f32 v{ph}, 0.15915494, v{P+1}')
        cmuls([(Sx(0), P+4, P+2)])
        for d, sc in ((g1, 1.0), (G(1), 8.0), (g256, 256.0)):
            if sc != 1.0:
                I(f'v_mul_f32 v{P}, {f2u(sc)}, v{er}'); I(f'v_mul_f32 v{P+1}, {f2u(sc)}, v{ph}')
            I(f'v_exp_f32 v{P}, v{P if sc != 1.0 else er}'); I(f'v_fract_f32 v{P+1}, v{P+1 if sc != 1.0 else ph}')
            I(f'v_cos_f32 v{d}, v{P+1}'); I(f'v_sin_f32 v{d+1}, v{P+1}')
            I(f'v_pk_mul_f32 {V(d,2)}, {V(d,2)}, {V(P,2)} op_sel_hi:[1,0]')
        I(f'v_mov_b32 v{G(0)}, 1.0'); I(f'v_mov_b32 v{G(0)+1}, 0')
        cmuls([(G(2), G(1), G(1)), (g2, g1, g1), (Sx(1), Sx(0), g1), (Sx(8), Sx(0), G(1))])
        cmuls([(G(3), G(2), G(1)), (G(4), G(2), G(2)), (Sx(2), Sx(0), g2), (Sx(3), Sx(1), g2)])
        cmuls([(G(5), G(4), G(1)), (G(6), G(4), G(2)), (G(7), G(4), G(3)), (G(8), G(4), G(4)), (Sx(4), Sx(2), g2), (Sx(5), Sx(3), g2)])
        wr8([G(b) for b in range(8)], 128, False)
        cmuls([(G(8+i), G(8), G(i)) for i in range(1, 9)] + [(Sx(6), Sx(4), g2), (Sx(7), Sx(5), g2)])
        wr8([G(b) for b in range(8, 16)], 144, False)
        cmuls([(G(16+i), G(16), G(i)) for i in range(1, 8)] + [(HH[256+i], Sx(i), g256) for i in (0, 2, 4, 6, 8)])
        wr8([G(b) for b in range(16, 24)], 160, False)
        cmuls([(G(16+i), G(16), G(i)) for i in range(8, 16)] + [(HH[512+i], HH[256+i], g256) for i in (0, 4, 8)])
        wr8([G(b) for b in range(24, 32)], 176, False)
        cmuls([(HH[768+i], HH[512+i], g256) for i in (0, 4, 8)])
        for q in range(2): wr8([HH[o] for o in h0[4*q:4*q+4] + h1[4*q:4*q+4]], 16*q, True)
        for o in (1024, 1280, 1536, 1792): cmuls([(HH[o+i], HH[o-256+i], g256) for i in (0, 8)])
        for q in range(2, 4): wr8([HH.get(o) for o in h0[4*q:4*q+4] + h1[4*q:4*q+4]], 16*q, True)
        stamp(2)
        if bt == 0:
            a.wait(tk['h']); flag_store(sT2); stamp(2)
            poll(vXF, ldXF, cmp_flag(vXF)); stamp(2)
        def kreads(s):
            b = KF + 8*(s & 1)
            for o, x in ((0, 0), (2, 16*272), (4, 128), (6, 16*272+128)): I(f'ds_read_b64_tr_b16 {V(b+o,2)}, v{tr} offset:{x + 272*s}')
        kreads(0)
        for s in range(8):
            if s < 7: kreads(s+1)
            b = KF + 8*(s & 1)
            I(f'v_mfma_f32_32x32x16_bf16 {V(KD,16)}, {V(b,4)}, {V(b+4,4)}, {0 if (bt == 0 and s == 0) else V(KD,16)}')
        if bt == 0: ldHF()
        stamp(2)
    I(f's_lshl_b32 s{sT0}, s{sP}, 11'); I(f'v_add_u32 v{uE}, s{sT0}, v{vL16}'); I(f'v_add_u32 v{uA}, -16, v{uE}')
    I(f's_cmp_eq_u32 s{sP}, 0'); I(f's_cselect_b32 s{sT1}, -16, 4080'); I(f'v_mov_b32 v{u3}, s{sT1}')
    UU = f's[{SU}:{SU+3}]'
    I(f'buffer_load_dwordx4 {V(U0,4)}, v{uA}, {UU}, 0 offen sc1'); I(f'buffer_load_dwordx2 {V(U0+4,2)}, v{uE}, {UU}, 0 offen sc1')
    I(f'buffer_load_dwordx4 {V(U0+6,4)}, v{uE}, {UU}, 0 offen offset:1008 sc1'); I(f'buffer_load_dwordx2 {V(U0+10,2)}, v{uE}, {UU}, 0 offen offset:1024 sc1')
    I(f'buffer_load_dwordx4 {V(U0+12,4)}, v{u3}, {UU}, 0 offen sc1')
    poll(vHF, ldHF, cmp_flag(vHF)); stamp()
    I(f'v_add_u32 v24, 4096, v{vL16}')
    for n in range(1, 7):
        for f in range(8):
            I(f'buffer_load_dwordx4 {A(32*(n-1)+4*f,4)}, v{vL16 if f < 4 else 24}, {WS}, s{sH+n} offen offset:{1024*(f&3)} sc1')
    stamp()
    xk, xp, k1, k2, kz, bm = 20, 21, 22, 23, 25, 26
    I(f's_mul_i32 s{sT0}, s{sC}, 34816'); I(f's_lshl_b32 s{sT1}, s{sP}, 15'); I(f's_add_u32 s{sT2}, s{sT0}, s{sT1}'); I(f'v_add_u32 v{xk}, s{sT2}, v{vL16}')
    I(f's_sub_u32 s{sT2}, s{sT0}, s{sT1}'); I(f's_add_u32 s{sT2}, s{sT2}, 32768'); I(f'v_add_u32 v{xp}, s{sT2}, v{vL16}')
    sKB = sT2
    I(f's_mul_i32 s{sKB}, s{sC}, 4608'); I(f's_add_u32 s{sKB}, s{sKB}, {LB}')
    I(f'v_and_b32 v27, 31, v0'); I(f'v_sub_u32 v27, 255, v27'); I(f'v_and_b32 v{bm}, 1, v27'); I(f'v_lshrrev_b32 v27, 1, v27')
    I(f'v_mul_u32_u24 v{k1}, 2304, v{bm}'); I(f'v_lshl_add_u32 v{k1}, v27, 4, v{k1}'); I(f'v_add_u32 v{k1}, s{sKB}, v{k1}')
    I(f'v_sub_u32 v{bm}, 0, v{bm}')
    I(f'v_lshlrev_b32 v27, 8, v{hb}'); I(f'v_sub_u32 v{k1}, v{k1}, v27'); I(f'v_sub_u32 v{k2}, v{k1}, v27')
    I(f'v_add_u32 v{k1}, -512, v{k1}'); I(f'v_add_u32 v{k2}, -1280, v{k2}')
    I(f'v_bfe_u32 v{kz}, v0, 4, 1'); I(f'v_mul_u32_u24 v{kz}, 2304, v{kz}'); I(f'v_and_b32 v27, 15, v0'); I(f'v_lshl_add_u32 v{kz}, v27, 4, v{kz}')
    I(f'v_add_u32 v{kz}, s{sKB}, v{kz}')
    I(f's_cmp_eq_u32 s{sP}, 1')
    def snd(o):
        def f():
            I(f'ds_write_b128 v{xk}, {V(KD+o,4)}'); I(f'ds_write_b128 v{xk}, {V(KD+o+4,4)} offset:1024')
        return f
    a.ifelse('KS', snd(8), snd(0))
    a.barrier()
    stamp()
    E = 208; T = 216
    I(f'ds_read_b128 {V(E,4)}, v{xp}'); I(f'ds_read_b128 {V(E+4,4)}, v{xp} offset:1024')
    uw = 27
    I(f's_mul_i32 s{sT0}, s{sC}, 34816'); I(f's_add_u32 s{sT0}, s{sT0}, {2048+16}'); I(f'v_add_u32 v{uw}, s{sT0}, v{uE}')
    def copies(d, e5, addr, off):
        R = [d, d+1, d+2, d+3] + ([e5, e5+1] if e5 else [None, None])
        rr = lambda i: f'v{R[i]}' if R[i] is not None else '0'
        I(f'ds_write_b128 v{addr}, {V(d,4)} offset:{off}')
        for e in range(4): I(f'v_alignbit_b32 v{64+e}, {rr(e+1)}, {rr(e)}, 16')
        for e in range(4): I(f'v_mov_b32 v{68+e}, {rr(e+1)}')
        for e in range(3): I(f'v_mov_b32 v{72+e}, v{64+e+1}')
        I(f'v_alignbit_b32 v75, {rr(5)}, {rr(4)}, 16' if e5 else 'v_mov_b32 v75, 0')
        for s in range(1, 4): I(f'ds_write_b128 v{addr}, {V(60+4*s,4)} offset:{off + 4160*s}')
    copies(U0, U0+4, uw, 0); copies(U0+6, U0+10, uw, 1024)
    I(f's_mul_i32 s{sT1}, s{sP}, {257*16}'); I(f's_add_u32 s{sT1}, s{sT1}, s{sT0}'); I(f's_sub_u32 s{sT1}, s{sT1}, 16'); I(f'v_mov_b32 v{u3}, s{sT1}')
    I('s_mov_b64 exec, 1'); copies(U0+12, None, u3, 0); I('s_mov_b64 exec, -1')
    I(f's_cmp_eq_u32 s{sP}, 1')
    def ex0():
        for e in range(8): I(f'v_add_f32 v{E+e}, v{E+e}, v{KD+e}')
        for e in range(4): I(f'v_cvt_pk_bf16_f32 v{T+e}, v{E+7-2*e}, v{E+6-2*e}')
        I(f'ds_write_b128 v{k1}, {V(T,4)} offset:512')
        for e in range(4): I(f'v_mov_b32 v{T+4+e}, 0')
        I(f'ds_write_b128 v{kz}, {V(T+4,4)} offset:2048'); I(f'ds_write_b128 v{kz}, {V(T+4,4)} offset:2048')
    def ex1():
        for e in range(7): I(f'v_add_f32 v{E+e}, v{E+e}, v{KD+8+e}')
        for e, (x, y) in enumerate(((2, 2), (1, 1), (1, 0), (0, 0))): I(f'v_cvt_pk_bf16_f32 v{T+e}, v{E+x}, v{E+y}')
        I(f'ds_write_b128 v{k1}, {V(T,4)}')
        for z, (v0_, off) in enumerate(((E+3, 256), (E+5, 0))):
            t = T + 4 if z == 0 else KD
            I(f'v_bfi_b32 v{E+7}, v{bm}, v{v0_}, v{v0_+1}')
            I(f'v_cvt_pk_bf16_f32 v{t}, v{v0_+1}, v{v0_+1}'); I(f'v_cvt_pk_bf16_f32 v{t+1}, v{v0_+1}, v{E+7}')
            I(f'v_cvt_pk_bf16_f32 v{t+2}, v{v0_}, v{v0_}'); I(f'v_cvt_pk_bf16_f32 v{t+3}, v{v0_}, v{v0_}')
            I(f'ds_write_b128 v{k2}, {V(t,4)} offset:{off}')
    a.ifelse('KE', ex0, ex1)
    cu0, cu1, ck, ys = 20, 21, 22, 23
    I(f'v_and_b32 v25, 15, v0'); I(f'v_add_u32 v26, 1, v25'); I(f'v_and_b32 v27, 3, v26'); I(f'v_sub_u32 v26, v26, v27')
    I(f'v_mul_u32_u24 v27, 4160, v27'); I(f'v_lshl_add_u32 v27, v26, 1, v27'); I(f'v_lshrrev_b32 v26, 4, v0'); I(f'v_lshl_add_u32 v27, v26, 4, v27')
    I(f's_lshl_b32 s{sT1}, s{sP}, 8'); I(f's_add_u32 s{sT1}, s{sT1}, s{sT0}'); I(f's_sub_u32 s{sT1}, s{sT1}, 16')
    I(f'v_add_u32 v{cu0}, s{sT1}, v27'); I(f'v_add_u32 v{cu1}, 2048, v{cu0}')
    I(f'v_and_b32 v26, 1, v26'); I(f'v_sub_u32 v27, v{hb}, v25'); I(f'v_add_u32 v27, 15, v27'); I(f'v_mul_u32_u24 v{ck}, 2304, v26')
    I(f'v_lshl_add_u32 v{ck}, v27, 4, v{ck}'); I(f's_lshl_b32 s{sT1}, s{sP}, 7'); I(f's_add_u32 s{sT1}, s{sT1}, s{sKB}'); I(f'v_add_u32 v{ck}, s{sT1}, v{ck}')
    I(f'v_lshlrev_b32 v{ys}, 9, v26'); I(f'v_lshl_add_u32 v{ys}, v25, 5, v{ys}'); I(f'v_lshl_add_u32 v{ys}, v{hb}, 4, v{ys}')
    a.barrier()
    stamp()
    if stop == 2:
        I(f's_mul_i32 s{sT0}, s2, 9216'); I(f's_add_u32 s{sT0}, s{sT0}, 0xD00000'); I(f'v_add_u32 v25, {LB}, v{vL16}')
        for i in range(9):
            I(f'ds_read_b128 v[64:67], v25 offset:{1024*i}'); I(f'buffer_store_dwordx4 v[64:67], v{vL16}, {WS}, s{sT0} offen'); I(f's_add_u32 s{sT0}, s{sT0}, 1024')
            a.waitcnt(vm=0)
        fin(); return
    CA, CBf = [96, 128], [160, 192]
    def creads(st):
        r = []
        for i in range(8):
            o = 8*st + 64*(i & 3)
            r.append(f'ds_read_b128 {V(CBf[st&1]+4*i,4)}, v{ck} offset:{256*(7-i) + 32*st}')
            r.append(f'ds_read2_b64 {V(CA[st&1]+4*i,4)}, v{cu0 if i < 4 else cu1} offset0:{o} offset1:{o+1}')
        return r
    r0 = creads(0)
    for x in [r0[1]] + r0[0::2] + r0[3::2]: I(x)
    for st in range(4):
        nx = creads(st+1) if st < 3 else []
        nx = nx[1:2] + nx[0::2] + nx[3::2]
        c = 0
        for i in range(8):
            for cb in range(i, 8):
                d = V(ACC+4*cb, 4)
                I(f'v_mfma_f32_16x16x32_bf16 {d}, {V(CA[st&1]+4*i,4)}, {V(CBf[st&1]+4*(cb-i),4)}, {0 if (st == 0 and i == 0) else d}')
                c += 1
                if c >= 4 and c % 2 == 0 and nx: I(nx.pop(0))
        assert not nx
    xc, xq = 25, 26
    I(f's_lshl_b32 s{sT0}, s{sW}, 12'); I(f's_add_u32 s{sT1}, s{sT0}, 53504'); I(f'v_add_u32 v{xc}, s{sT1}, v{vL16}')
    I(f's_xor_b32 s{sT0}, s{sT0}, 4096'); I(f's_add_u32 s{sT1}, s{sT0}, 53504'); I(f'v_add_u32 v{xq}, s{sT1}, v{vL16}')
    I(f's_cmp_eq_u32 s{sP}, 1')
    def csnd(o):
        def f():
            for q in range(4): I(f'ds_write_b128 v{xc}, {V(ACC+o+4*q,4)} offset:{1024*q}')
        return f
    a.ifelse('CS', csnd(16), csnd(0))
    a.barrier()
    E = 96; T = 112
    for q in range(4): I(f'ds_read_b128 {V(E+4*q,4)}, v{xq} offset:{1024*q}')
    I(f's_cmp_eq_u32 s{sP}, 1')
    def cadd(o):
        def f():
            for e in range(16): I(f'v_add_f32 v{E+e}, v{E+e}, v{ACC+o+e}')
        return f
    a.ifelse('CA', cadd(0), cadd(16))
    for e in range(8): I(f'v_cvt_pk_bf16_f32 v{T+e}, v{E+2*e}, v{E+2*e+1}')
    for pr in range(2):
        for e in range(2): I(f'v_permlane16_swap_b32 v{T+4*pr+e}, v{T+4*pr+2+e}')
    for pr in range(2): tk['y'] = I(f'buffer_store_dwordx4 {V(T+4*pr,4)}, v{ys}, {WS}, s{sY} offen offset:{1024*pr} sc1')
    stamp()
    I(f's_lshl_b32 s{sT1}, s2, 2'); I(f's_add_u32 s{sT1}, s{sT1}, s{sW}'); I(f's_lshl_b32 s{sT1}, s{sT1}, 7'); I(f's_add_u32 s{sT1}, s{sT1}, {YF}')
    if stop == 3:
        fin(); return
    vG3, vYF, vYFa, vX, vBD = 14, 15, 16, 17, 19
    XE, B2, DS, YR, MRs = 128, 136, 144, 152, 160
    I(f'v_xor_b32 v{vG3}, 64, v{vG2}')
    ldYF = lambda: I(f'buffer_load_dword v{vYF}, v{vYFa}, {WS}, 0 offen sc1')
    def e_y0():
        a.wait(tk['y']); flag_store(sT1)
    def e_a():
        I(f's_lshl_b32 s{sT2}, s{sJ}, 1'); I(f's_add_u32 s{sT2}, s{sT2}, s{sP}')
        I(f's_lshl_b32 s{sT1}, s{sR}, 1'); I(f's_add_u32 s{sT1}, s{sT1}, s{sC}')
        I(f's_mul_i32 s{sXO}, s{sT1}, {32*896}'); I(f's_lshl_b32 s{sK}, s{sT2}, 6'); I(f's_add_u32 s{sXO}, s{sXO}, s{sK}')
    def e_b():
        I(f'v_and_b32 v{vX}, 31, v0'); I(f'v_mul_u32_u24 v{vX}, 896, v{vX}'); I(f'v_lshl_add_u32 v{vX}, v{hb}, 3, v{vX}')
        I(f'v_lshlrev_b32 v{vBD}, 3, v{hb}'); I(f'v_add_u32 v{vBD}, s{sK}, v{vBD}')
    def e_c():
        for q in range(4): I(f'buffer_load_dwordx2 {V(XE+2*q,2)}, v{vX}, s[{SX}:{SX+3}], s{sXO} offen offset:{16*q}')
    def e_d():
        for q in range(4): I(f'global_load_dwordx2 {V(B2+2*q,2)}, v{vBD}, s[30:31] offset:{16*q}')
    def e_e():
        for q in range(4): I(f'global_load_dwordx2 {V(DS+2*q,2)}, v{vBD}, s[20:21] offset:{16*q}')
    def e_f():
        I(f's_lshl_b32 s{sK}, s{sT2}, 13'); I(f's_add_u32 s{sK}, s{sK}, {YF}'); I(f'v_lshlrev_b32 v{vYFa}, 7, v0'); I(f'v_add_u32 v{vYFa}, s{sK}, v{vYFa}')
        I(f's_lshl_b32 s{sT2}, s{sT2}, 17'); I(f's_lshl_b32 s{sK}, s{sT1}, 6'); I(f's_add_u32 s{sT2}, s{sT2}, s{sK}'); I(f's_add_u32 s{sT2}, s{sT2}, {YT}')
    ya, yw, yr, sa, rw = 20, 21, 22, 23, 25
    def e_g():
        I(f'v_lshrrev_b32 v{ya}, 2, v0'); I(f'v_lshlrev_b32 v{ya}, 12, v{ya}'); I(f'v_and_b32 v{yw}, 3, v0'); I(f'v_lshl_add_u32 v{ya}, v{yw}, 4, v{ya}')
        I(f's_lshl_b32 s{sK}, s{sW}, 11'); I(f's_add_u32 s{sK}, s{sK}, {LB}'); I(f'v_add_u32 v{yw}, s{sK}, v{vL16}')
    def e_h():
        I(f'v_bfe_u32 v{yr}, v0, 2, 2'); I(f'v_lshl_add_u32 v{yr}, v{hb}, 2, v{yr}'); I(f'v_lshl_add_u32 v{yr}, v{yr}, 6, v{vTR}'); I(f'v_add_u32 v{yr}, s{sK}, v{yr}')
        I(f'v_and_b32 v{sa}, 31, v0'); I(f's_lshl_b32 s{sK}, s{sC}, 8'); I(f's_add_u32 s{sK}, s{sK}, {LSTAT}'); I(f'v_lshl_add_u32 v{sa}, v{sa}, 3, s{sK}')
    def e_i():
        I(f'ds_read_b64 {V(MRs,2)}, v{sa}')
        I(f's_lshl_b32 s{sK}, s{sW}, 12'); I(f'v_add_u32 v{rw}, s{sK}, v{vL16}')
        for x in range(1, 4): I(f'v_xor_b32 v{rw+x}, {4096*x}, v{rw}')
        I(f's_add_u32 s{sK}, s{sT2}, 65536')
    def hfrag(k, tb):
        n, sg = divmod(k, 4)
        return V(HOWN + 16*tb + 4*sg, 4) if n == 0 else A(32*(n-1) + 16*tb + 4*sg, 4)
    gemm(28, hfrag, lambda k: [], lambda fb: '0', vG2, vG3, 1024,
         {6: e_y0, 7: e_a, 8: e_b, 9: e_c, 10: e_d, 11: e_e, 12: e_f, 13: e_g, 14: e_h, 15: e_i, 22: ldYF})
    stamp()
    poll(vYF, ldYF, cmp_flag(vYF)); stamp(2)
    I(f'buffer_load_dwordx4 {V(YR,4)}, v{ya}, {WS}, s{sT2} offen sc1'); I(f'buffer_load_dwordx4 {V(YR+4,4)}, v{ya}, {WS}, s{sK} offen sc1')
    for x in range(1, 4):
        o = ACC + 32*(x >> 1) + 16*(x & 1)
        for q in range(4): I(f'ds_write_b128 v{rw+x}, {V(o+4*q,4)} offset:{16384*(x-1) + 1024*q}')
    XF32, XN, t = 164, 180, 196
    for e in range(8): unpack(XF32+2*e, XF32+2*e+1, XE+e)
    xnorm(XE, 8, MRs, XN)
    for e in range(8): I(f'v_cvt_pk_bf16_f32 v{XE+e}, v{XN+2*e}, v{XN+2*e+1}')
    for e in range(8): unpack(XN+2*e, XN+2*e+1, XE+e)
    for e in range(8): unpack(t+2*e, t+2*e+1, DS+e)
    for e in range(8): I(f'v_pk_mul_f32 {V(XN+2*e,2)}, {V(XN+2*e,2)}, {V(t+2*e,2)}')
    for e in range(8): unpack(t+2*e, t+2*e+1, B2+e)
    for e in range(8): I(f'v_pk_add_f32 {V(ACC+2*e,2)}, {V(ACC+2*e,2)}, {V(t+2*e,2)}')
    a.barrier()
    for x in range(1, 4):
        for q in range(4): I(f'ds_read_b128 {V(ACC+16*x+4*q,4)}, v{rw} offset:{16384*(x-1) + 1024*q}')
    for x in range(1, 4):
        for e in range(8): I(f'v_pk_add_f32 {V(ACC+2*e,2)}, {V(ACC+2*e,2)}, {V(ACC+16*x+2*e,2)}')
    I(f'ds_write_b128 v{yw}, {V(YR,4)}'); I(f'ds_write_b128 v{yw}, {V(YR+4,4)} offset:1024')
    for q in range(4): I(f'ds_read_b64_tr_b16 {V(YR+2*q,2)}, v{yr} offset:{512*q}')
    I(f's_mov_b32 s{sK}, {f2u(-math.log2(math.e))}')
    for e in range(8): I(f'v_pk_mul_f32 {V(t+2*e,2)}, {V(ACC+2*e,2)}, s[{sK}:{sK+1}] op_sel_hi:[1,0]')
    for e in range(16): I(f'v_exp_f32 v{t+e}, v{t+e}')
    for e in range(8): I(f'v_pk_add_f32 {V(t+2*e,2)}, {V(t+2*e,2)}, 1.0 op_sel_hi:[1,0]')
    for e in range(16): I(f'v_rcp_f32 v{t+e}, v{t+e}')
    for e in range(8): I(f'v_pk_mul_f32 {V(ACC+2*e,2)}, {V(ACC+2*e,2)}, {V(t+2*e,2)}')
    for e in range(8): unpack(t+2*e, t+2*e+1, YR+e)
    for e in range(8): I(f'v_pk_add_f32 {V(XN+2*e,2)}, {V(XN+2*e,2)}, {V(t+2*e,2)}')
    for e in range(8): I(f'v_pk_fma_f32 {V(XN+2*e,2)}, {V(XN+2*e,2)}, {V(ACC+2*e,2)}, {V(XF32+2*e,2)}')
    for e in range(8): I(f'v_cvt_pk_bf16_f32 v{YR+e}, v{XN+2*e}, v{XN+2*e+1}')
    I(f'v_lshl_add_u32 v{vX}, v{hb}, 3, v{vX}')
    for pr in range(2):
        for e in range(2): I(f'v_permlane32_swap_b32 v{YR+4*pr+e}, v{YR+4*pr+2+e}')
    for pr in range(2): I(f'buffer_store_dwordx4 {V(YR+4*pr,4)}, v{vX}, s[{SOUT}:{SOUT+3}], s{sXO} offen offset:{32*pr}')
    stamp()
    fin()
```

```python
import sys, struct, math
sys.path.insert(0, 'work')
from asmlib import *
NAME = 'recurrent_scan__ssm_conv_s4__mixer_channel_mlp__prompt'
def f2u(x): return '0x%08x' % struct.unpack('<I', struct.pack('<f', x))[0]
LA, LB, LRING, LSTAT, LEND = 0, 69888, 79104, 161024, 161536
Y2S = 912; NSLOT = 10
XNT, YT, HB, FL, STAMP = 0, 0x200000, 0x400000, 0xB00000, 0xC00000
XF, HF, YF = FL, FL + 0x20000, FL + 0x40000
SX, SW1, SW2, SWS, SOUT, SU, SDBG = 40, 44, 48, 52, 56, 60, 64
sJ, sR, sW, sNON, sRING, sT0, sT1, sT2 = 68, 69, 70, 71, 72, 73, 74, 75
sW2 = 76
sH = 83
sK = 90
sXO = 92
sLD = 93; sP = 94; sC = 95
sST = 96
vL, vD1, vD2, vA0, vA1, vB0, vB1, vPAR, vL16, vT = 0, 1, 2, 3, 4, 5, 6, 7, 13, 14
HOWN = 224

import os
LVL = int(os.environ.get('LVL', '1')); SEL = int(os.environ.get('SEL', '100'))
def gen(stop=99, stamps=False):
    a = Asm(); I = a
    nst = [0]
    def stamp(lvl=1, pre=None):
        if not stamps or lvl > LVL: return
        if pre is None: I(f's_memtime s[{sST}:{sST+1}]'); a.waitcnt(lg=0)
        else: I(f's_mov_b32 s{sST}, s{pre}')
        if stamps == 2:
            I(f'v_mov_b32 v63, s{sST}'); I(f's_lshl_b32 s{sST+2}, s2, 2'); I(f's_add_u32 s{sST+2}, s{sST+2}, s{sW}')
            I(f's_cmp_eq_u32 s{sST+2}, {4*SEL}'); I('s_cselect_b64 exec, 1, 0')
            I(f'buffer_store_dword v63, off, s[{SDBG}:{SDBG+3}], 0 offset:{4 + 4*nst[0]}'); I('s_mov_b64 exec, -1')
            nst[0] += 1; return
        I(f'v_mov_b32 v63, s{sST}'); I(f's_lshl_b32 s{sST+2}, s2, 2'); I(f's_add_u32 s{sST+2}, s{sST+2}, s{sW}')
        I(f's_lshl_b32 s{sST+2}, s{sST+2}, 7'); I(f's_add_u32 s{sST+2}, s{sST+2}, {STAMP + 4*nst[0]}')
        I('s_mov_b64 exec, 1'); I(f'buffer_store_dword v63, off, s[{SWS}:{SWS+3}], s{sST+2}'); I('s_mov_b64 exec, -1')
        nst[0] += 1
    def srd(d, b, n):
        I(f's_mov_b32 s{d}, s{b}'); I(f's_mov_b32 s{d+1}, s{b+1}'); I(f's_mov_b32 s{d+2}, {n}'); I(f's_mov_b32 s{d+3}, 0x00020000')
    def fin():
        if stamps == 2:
            I('s_memrealtime s[96:97]'); I('s_not_b32 s38, s38'); I('v_mov_b32 v62, s38'); I('v_mov_b32 v63, s96'); I('s_mov_b64 exec, 1')
            I(f'buffer_atomic_umax v62, off, s[{SDBG}:{SDBG+3}], 0 offset:56'); I(f'buffer_atomic_umax v63, off, s[{SDBG}:{SDBG+3}], 0 offset:60')
        a.waitcnt(vm=0, lg=0); a._emit('s_endpgm')
    lab = [0]
    def poll(vf, reload, cmp):
        lab[0] += 1; n = f'P{lab[0]}'
        cmp(); a.settle(); a._emit(f's_cbranch_scc0 {n}_ok'); st = a.snap()
        I(f's_mov_b32 s{sST+3}, 0x40000'); a.label(f'{n}_lp')
        reload(); a._emit('s_waitcnt vmcnt(0)'); a.vm = []
        I(f's_sub_u32 s{sST+3}, s{sST+3}, 1'); a._emit(f's_cbranch_scc1 {n}_ok')
        cmp(); a.settle(); a._emit(f's_cbranch_scc1 {n}_lp')
        a.label(f'{n}_ok'); a.restore(st)
    def cmp_flag(vf):
        def f():
            I(f'v_cmp_ne_u32 vcc, s{sNON}, v{vf}'); I('s_and_b64 vcc, vcc, exec')
        return f
    def flag_store(soff):
        I(f'v_mov_b32 v62, s{sNON}'); I('s_mov_b64 exec, 1')
        I(f'buffer_store_dword v62, off, s[{SWS}:{SWS+3}], s{soff} sc1'); I('s_mov_b64 exec, -1')
    def unpack(dlo, dhi, src):
        I(f'v_lshlrev_b32 v{dlo}, 16, v{src}'); I(f'v_and_b32 v{dhi}, 0xffff0000, v{src}')
    def rne2(x, y, t):
        I(f'v_cvt_pk_bf16_f32 v{t}, v{x}, v{y}'); unpack(x, y, t)

    I('s_cmp_ge_u32 s2, 224'); a._emit('s_cbranch_scc1 END')
    I('s_load_dwordx16 s[4:19], s[0:1], 0'); I('s_load_dwordx16 s[20:35], s[0:1], 64'); I('s_load_dwordx2 s[36:37], s[0:1], 128')
    I('s_memrealtime s[38:39]')
    if stamps: I('s_memtime s[100:101]')
    I('v_lshrrev_b32 v1, 6, v0'); I('v_and_b32 v0, 63, v0'); I(f'v_readfirstlane_b32 s{sW}, v1')
    I(f's_and_b32 s{sT0}, s2, 1'); I(f's_mul_i32 s{sT0}, s{sT0}, 28'); I(f's_lshr_b32 s{sT1}, s2, 3'); I(f's_add_u32 s{sT0}, s{sT0}, s{sT1}')
    I(f's_lshr_b32 s{sJ}, s{sT0}, 3'); I(f's_and_b32 s{sT0}, s{sT0}, 7'); I(f's_and_b32 s{sT1}, s2, 6'); I(f's_lshl_b32 s{sT1}, s{sT1}, 2')
    I(f's_add_u32 s{sR}, s{sT0}, s{sT1}')
    I(f's_and_b32 s{sP}, s{sW}, 1'); I(f's_lshr_b32 s{sC}, s{sW}, 1')
    rho, c8, xa, xb = 14, 15, 16, 17
    I(f'v_lshrrev_b32 v{rho}, 3, v0'); I(f'v_and_b32 v{c8}, 7, v0')
    I(f'v_lshlrev_b32 v{vL16}, 4, v0')
    I(f'v_mul_u32_u24 v{xa}, 896, v{rho}'); I(f'v_lshl_add_u32 v{xa}, v{c8}, 4, v{xa}'); I(f'v_add_u32 v{xb}, 7168, v{xa}')
    I(f's_lshl_b32 s{sT0}, s{sR}, 2'); I(f's_add_u32 s{sT0}, s{sT0}, s{sW}'); I(f's_mul_i32 s{sT0}, s{sT0}, {16*896}')
    I(f's_lshl_b32 s{sT1}, s{sJ}, 7'); I(f's_add_u32 s{sT1}, s{sT1}, s{sT0}')
    I(f'v_lshrrev_b32 v18, 2, v0'); I(f'v_and_b32 v18, 4, v18'); I(f'v_xor_b32 v18, v18, v{c8}'); I('v_lshlrev_b32 v18, 4, v18')
    I(f'v_mul_u32_u24 v{vD1}, 3584, v{rho}'); I(f'v_add_u32 v{vD1}, v{vD1}, v18')
    I(f'v_mul_u32_u24 v{vD2}, 896, v{rho}'); I(f'v_add_u32 v{vD2}, v{vD2}, v18')
    I(f's_lshl_b32 s{sT2}, s{sJ}, 2'); I(f's_add_u32 s{sT2}, s{sT2}, s{sW}'); I(f's_lshl_b32 s{sT2}, s{sT2}, 7')
    I(f'v_add_u32 v{vD1}, s{sT2}, v{vD1}')
    I(f's_mul_i32 s{sRING}, s{sW}, {NSLOT*2048}'); I(f's_add_u32 s{sRING}, s{sRING}, {LRING}')
    srd(SX, 4, 2048*896)
    X0, X1, O0, O1 = 64, 92, 120, 124
    for i in range(7):
        I(f'buffer_load_dwordx4 {V(X0+4*i,4)}, v{xa}, s[{SX}:{SX+3}], s{sT0} offen offset:{128*i}')
        I(f'buffer_load_dwordx4 {V(X1+4*i,4)}, v{xb}, s[{SX}:{SX+3}], s{sT0} offen offset:{128*i}')
    I(f'buffer_load_dwordx4 {V(O0,4)}, v{xa}, s[{SX}:{SX+3}], s{sT1} offen')
    I(f'buffer_load_dwordx4 {V(O1,4)}, v{xb}, s[{SX}:{SX+3}], s{sT1} offen')
    srd(SW1, 24, 448*3584); srd(SWS, 36, 0x1000000); srd(SDBG, 34, 256)
    I(f's_or_b32 s{sNON}, s2, s{sW}'); I(f's_cmp_lg_u32 s{sNON}, 0'); a.settle(); a._emit('s_cbranch_scc1 NONCE')
    st = a.snap(); I('s_or_b32 s38, s38, 1'); I('v_mov_b32 v62, s38'); I('s_mov_b64 exec, 1')
    I(f'buffer_store_dword v62, off, s[{SDBG}:{SDBG+3}], 0 sc1'); I('s_mov_b64 exec, -1'); a.settle()
    a.label('NONCE'); a.restore(st)
    dtok = {}
    def dma(step):
        slot = step % NSLOT
        for hh in range(2):
            I(f's_add_u32 m0, s{sRING}, {slot*2048 + hh*1024}')
            if step < 28:
                I(f's_mov_b32 s{sT0}, {(16*step + 8*hh)*3584}')
                dtok[step] = I(f'buffer_load_dwordx4 v{vD1}, s[{SW1}:{SW1+3}], s{sT0} offen lds')
            else:
                n, sg = divmod(step - 28, 4)
                I(f's_add_u32 s{sT0}, s{sW2+n}, {(16*sg + 8*hh)*896}')
                dtok[step] = I(f'buffer_load_dwordx4 v{vD2}, s[{SW2}:{SW2+3}], s{sT0} offen lds')
    for k in range(NSLOT): dma(k)
    hb = 18
    I(f'v_lshrrev_b32 v{hb}, 5, v0'); I(f'v_lshlrev_b32 v19, 3, v{hb}'); I(f'v_add_u32 v19, s{sT2}, v19')
    B1R = 128
    for fb in range(2):
        for q in range(4):
            I(f'global_load_dwordx2 {V(B1R+8*fb+2*q,2)}, v19, s[26:27] offset:{64*fb+16*q}')
    I(f's_lshl_b32 s{sT0}, s2, 10'); I(f's_lshl_b32 s{sT1}, s{sW}, 8'); I(f's_add_u32 s{sT0}, s{sT0}, s{sT1}')
    I(f'v_lshlrev_b32 v19, 2, v0'); I(f'v_add_u32 v19, s{sT0}, v19')
    for i in range(6): I(f'global_load_dword v{vPAR+i}, v19, s[{6+2*i}:{7+2*i}]')
    I(f's_lshl_b32 s{sT0}, s2, 2'); I(f's_load_dword s{sLD}, s[18:19], s{sT0}')
    srd(SW2, 28, 1792*896); srd(SOUT, 32, 2048*896)
    I(f's_mul_i32 s{sT0}, s{sW}, {64*896}'); I(f's_lshl_b32 s{sT1}, s{sJ}, 7'); I(f's_add_u32 s{sT0}, s{sT0}, s{sT1}')
    I(f'v_add_u32 v{vD2}, s{sT0}, v{vD2}')
    I(f's_mul_i32 s{sT1}, s{sR}, 28'); I(f's_add_u32 s{sT1}, s{sT1}, s{sW}'); I(f's_lshl_b32 s{sT1}, s{sT1}, 13'); I(f's_add_u32 s{sT1}, s{sT1}, {HB}')
    for n in range(7):
        I(f's_add_u32 s{sT0}, s{sJ}, {n}'); I(f's_cmp_ge_u32 s{sT0}, 7'); I(f's_cselect_b32 s{sT2}, 7, 0'); I(f's_sub_u32 s{sT0}, s{sT0}, s{sT2}')
        I(f's_mul_i32 s{sW2+n}, s{sT0}, {256*896}'); I(f's_lshl_b32 s{sT0}, s{sT0}, 15'); I(f's_add_u32 s{sH+n}, s{sT0}, s{sT1}')
    g, r4, c4 = 19, 20, 21
    I(f'v_bfe_u32 v{g}, v0, 4, 1'); I(f'v_bfe_u32 v{r4}, v0, 2, 2'); I(f'v_and_b32 v{c4}, 3, v0')
    I(f'v_lshlrev_b32 v22, 5, v{g}'); I(f'v_lshl_add_u32 v22, v{c4}, 3, v22')
    I(f'v_bfe_u32 v23, v0, 3, 1'); I('v_lshl_or_b32 v23, v23, 6, v22')
    I(f'v_lshl_add_u32 v23, v{r4}, 7, v23'); I(f'v_add_u32 v23, s{sRING}, v23')
    I(f'v_lshl_add_u32 v{vA0}, v{hb}, 10, v23'); I(f'v_xor_b32 v{vA1}, 64, v{vA0}')
    vG2, vTR = 60, 61
    I(f'v_lshl_add_u32 v{vG2}, v{hb}, 9, v23'); I(f's_lshl_b32 s{sT0}, s{sP}, 6'); I(f'v_xor_b32 v{vG2}, s{sT0}, v{vG2}')
    I(f'v_mov_b32 v{vTR}, v22')
    I(f'v_and_b32 v23, 31, v0'); I(f'v_mul_u32_u24 v23, {Y2S}, v23'); I(f'v_lshl_add_u32 v23, v{hb}, 4, v23')
    I(f's_mul_i32 s{sT0}, s{sC}, {32*Y2S}'); I(f'v_add_u32 v{vB0}, s{sT0}, v23'); I(f's_sub_u32 s{sT0}, {32*Y2S}, s{sT0}'); I(f'v_add_u32 v{vB1}, s{sT0}, v23')
    wy, wx, wst = 24, 25, 26
    I(f's_lshl_b32 s{sT0}, s{sW}, 4'); I(f'v_add_u32 v27, s{sT0}, v{rho}')
    I(f'v_mul_u32_u24 v{wy}, {Y2S}, v27'); I(f'v_lshl_add_u32 v{wy}, v{c8}, 4, v{wy}')
    I(f'v_mul_u32_u24 v{wx}, 144, v27'); I(f'v_lshl_add_u32 v{wx}, v{c8}, 4, v{wx}'); I(f'v_add_u32 v{wx}, {LB}, v{wx}')
    I(f'v_lshlrev_b32 v{wst}, 3, v27'); I(f'v_add_u32 v{wst}, {LSTAT}, v{wst}')
    stamp(1, 100); stamp()
    s0, s1, q0, q1 = 28, 29, 30, 31
    for r in (s0, s1, q0, q1): I(f'v_mov_b32 v{r}, 0')
    I(f's_mov_b32 s{sT0}, 0x3f803f80')
    for i in range(28):
        I(f'v_dot2c_f32_bf16 v{s0}, s{sT0}, v{X0+i}'); I(f'v_dot2c_f32_bf16 v{q0}, v{X0+i}, v{X0+i}')
        I(f'v_dot2c_f32_bf16 v{s1}, s{sT0}, v{X1+i}'); I(f'v_dot2c_f32_bf16 v{q1}, v{X1+i}, v{X1+i}')
    for m in ('quad_perm:[1,0,3,2]', 'quad_perm:[2,3,0,1]', 'row_half_mirror'):
        for r in (s0, s1, q0, q1): I(f'v_add_f32_dpp v{r}, v{r}, v{r} {m} row_mask:0xf bank_mask:0xf')
    MR0, MR1, AB0, AB1 = 32, 34, 36, 38
    t = 40
    for r in (s0, s1, q0, q1): I(f'v_mul_f32 v{r}, {f2u(1/448)}, v{r}')
    for s_, q_ in ((s0, q0), (s1, q1)): I(f'v_fma_f32 v{q_}, -v{s_}, v{s_}, v{q_}')
    for q_ in (q0, q1): I(f'v_max_f32 v{q_}, 0, v{q_}')
    def rstd(va, vb, oa, ob):
        I(f'v_cvt_pk_bf16_f32 v{t}, v{va}, v{vb}'); unpack(oa, ob, t)
        for o in (oa, ob): I(f'v_add_f32 v{o}, {f2u(1e-5)}, v{o}')
        rne2(oa, ob, t)
        for o in (oa, ob): I(f'v_sqrt_f32 v{o}, v{o}')
        rne2(oa, ob, t)
        for o in (oa, ob): I(f'v_rcp_f32 v{o}, v{o}')
    I(f'v_cvt_pk_bf16_f32 v{t}, v{s0}, v{s1}'); unpack(MR0, MR1, t)
    rstd(q0, q1, MR0+1, MR1+1)
    for s_, q_, M in ((s0, q0, MR0), (s1, q1, MR1)):
        I(f'v_sub_f32 v{s_}, v{s_}, v{M}'); I(f'v_mul_f32 v{q_}, v{q_}, v{M+1}')
    for s_, q_, M in ((s0, q0, MR0), (s1, q1, MR1)):
        I(f'v_mul_f32 v{s_}, v{s_}, v{M+1}'); I(f'v_mul_f32 v{q_}, v{q_}, v{M+1}')
    I(f'ds_write_b64 v{wst}, {V(MR0,2)}'); I(f'ds_write_b64 v{wst}, {V(MR1,2)} offset:64')
    rne2(s0, s1, t)
    rstd(q0, q1, AB0+1, AB1+1)
    for s_, M, AB in ((s0, MR0, AB0), (s1, MR1, AB1)):
        I(f'v_mul_f32 v{AB}, v{M+1}, v{AB+1}'); I(f'v_mul_f32 v{s_}, v{s_}, v{AB+1}')
    for s_, M, AB in ((s0, MR0, AB0), (s1, MR1, AB1)):
        I(f'v_fma_f32 v{AB+1}, -v{M}, v{AB}, -v{s_}')
    for i in range(7):
        for X, AB, off in ((X0, AB0, 0), (X1, AB1, 8*Y2S)):
            for e in range(4): unpack(t+2*e, t+2*e+1, X+4*i+e)
            for e in range(4): I(f'v_pk_fma_f32 {V(t+2*e,2)}, {V(t+2*e,2)}, {V(AB,2)}, {V(AB,2)} op_sel:[0,0,1] op_sel_hi:[1,0,1]')
            for e in range(4): I(f'v_cvt_pk_bf16_f32 v{X+4*i+e}, v{t+2*e}, v{t+2*e+1}')
            I(f'ds_write_b128 v{wy}, {V(X+4*i,4)} offset:{off+128*i}')
    def xnorm(src, n, M, t):
        for e in range(n): unpack(t+2*e, t+2*e+1, src+e)
        for e in range(n): I(f'v_pk_add_f32 {V(t+2*e,2)}, {V(t+2*e,2)}, {V(M,2)} op_sel_hi:[1,0] neg_lo:[0,1] neg_hi:[0,1]')
        for e in range(n): I(f'v_cvt_pk_bf16_f32 v{src+e}, v{t+2*e}, v{t+2*e+1}')
        for e in range(n): unpack(t+2*e, t+2*e+1, src+e)
        for e in range(n): I(f'v_pk_mul_f32 {V(t+2*e,2)}, {V(t+2*e,2)}, {V(M,2)} op_sel:[0,1] op_sel_hi:[1,1]')
    for O, M, off in ((O0, MR0, 0), (O1, MR1, 8*144)):
        xnorm(O, 4, M, t)
        for e in range(4): I(f'v_cvt_pk_bf16_f32 v{O+e}, v{t+2*e}, v{t+2*e+1}')
        I(f'ds_write_b128 v{wx}, {V(O,4)} offset:{off}')
    CB = 144
    for fb in range(2):
        for q in range(4):
            for e in range(2): unpack(CB+16*fb+4*q+2*e, CB+16*fb+4*q+2*e+1, B1R+8*fb+2*q+e)
    xr, xs = 24, 25
    I(f'v_lshrrev_b32 v27, 4, v0'); I(f'v_lshl_add_u32 v{xr}, v27, 3, v{r4}'); I(f'v_mul_u32_u24 v{xr}, 144, v{xr}')
    I(f'v_lshl_add_u32 v{xr}, v{c4}, 3, v{xr}'); I(f's_lshl_b32 s{sT0}, s{sW}, 5'); I(f's_add_u32 s{sT0}, s{sT0}, {LB}'); I(f'v_add_u32 v{xr}, s{sT0}, v{xr}')
    I(f'v_and_b32 v{xs}, 15, v0'); I(f'v_lshlrev_b32 v{xs}, 12, v{xs}'); I(f'v_lshl_add_u32 v{xs}, v27, 4, v{xs}')
    I(f's_lshl_b32 s{sT1}, s{sJ}, 2'); I(f's_add_u32 s{sT1}, s{sT1}, s{sW}'); I(f's_lshl_b32 s{sT2}, s{sT1}, 5'); I(f's_add_u32 s{sT2}, s{sT2}, s{sR}')
    I(f's_lshl_b32 s{sT2}, s{sT2}, 7'); I(f's_add_u32 s{sT2}, s{sT2}, {XF}')
    I(f's_lshl_b32 s{sT1}, s{sT1}, 16'); I(f's_lshl_b32 s{sXO}, s{sR}, 7'); I(f's_add_u32 s{sT1}, s{sT1}, s{sXO}')
    a.barrier()
    stamp()
    ACC = 64; FA = [176, 184]; FBr = [192, 200]
    def a_reads(step, buf, va0, va1, second):
        so = (step % NSLOT) * 2048
        return [f'ds_read_b64_tr_b16 {V(FA[buf]+o,2)}, v{va} offset:{so+x}' for va, o0 in ((va0, 0), (va1, 4)) for o, x in ((o0, 0), (o0+2, second))]
    def gemm(base, bfrag, breads, cinit, va0, va1, second, extra):
        def reads(k):
            a.wait(dtok[base+k]); r = a_reads(base+k, k & 1, va0, va1, second); b = breads(k)
            return r[:2] + b[:1] + r[2:] + b[1:]
        for x in reads(0): I(x)
        for k in range(28):
            for mi, (fb, tb) in enumerate(((0, 0), (1, 0), (0, 1), (1, 1))):
                d = V(ACC + 32*tb + 16*fb, 16)
                I(f'v_mfma_f32_32x32x16_bf16 {d}, {V(FA[k&1]+4*fb,4)}, {bfrag(k, tb)}, {cinit(fb) if k == 0 else d}')
                if mi == 0 and k < 27:
                    for x in reads(k+1): I(x)
                if mi == 1 and base + k + NSLOT < 56: dma(base + k + NSLOT)
                if mi == 2 and k in extra: extra[k]()
    XT = 208; vNON = 216; tk = {}
    def e_xn0():
        for i, o in enumerate((0, 576, 4608, 5184)): I(f'ds_read_b64_tr_b16 {V(XT+2*i,2)}, v{xr} offset:{o}')
        I(f'buffer_load_dword v{vNON}, off, s[{SDBG}:{SDBG+3}], 0 sc1')
    def e_xn1():
        I(f'buffer_store_dwordx4 {V(XT,4)}, v{xs}, s[{SWS}:{SWS+3}], s{sT1} offen sc1')
        tk['xn'] = I(f'buffer_store_dwordx4 {V(XT+4,4)}, v{xs}, s[{SWS}:{SWS+3}], s{sT1} offen offset:64 sc1')
    def e_xn2():
        def cm(): I(f'v_readfirstlane_b32 s{sNON}, v{vNON}'); I(f's_cmp_eq_u32 s{sNON}, 0')
        poll(vNON, lambda: I(f'buffer_load_dword v{vNON}, off, s[{SDBG}:{SDBG+3}], 0 sc1'), cm)
        a.wait(tk['xn']); flag_store(sT2)
    gemm(0, lambda k, tb: V(FBr[k&1]+4*tb, 4),
         lambda k: [f'ds_read_b128 {V(FBr[k&1]+4*tb,4)}, v{vb} offset:{32*k}' for tb, vb in ((0, vB0), (1, vB1))],
         lambda fb: V(CB+16*fb, 16), vA0, vA1, 512, {0: e_xn0, 1: e_xn1, 12: e_xn2})
    stamp()
    k0 = -2*math.sqrt(2/math.pi)*math.log2(math.e)
    I(f's_mov_b32 s{sK}, {f2u(k0*0.044715)}'); I(f's_mov_b32 s{sK+1}, {f2u(k0)}')
    I(f'v_add_u32 v24, 4096, v{vL16}')
    t = 128
    for tb in range(2):
        for sg in range(4):
            x = ACC + 32*tb + 8*sg; P = lambda e: V(t+2*e, 2); Xp = lambda e: V(x+2*e, 2)
            for e in range(4): I(f'v_pk_mul_f32 {P(e)}, {Xp(e)}, {Xp(e)}')
            for e in range(4): I(f'v_pk_fma_f32 {P(e)}, {P(e)}, s[{sK}:{sK+1}], s[{sK}:{sK+1}] op_sel:[0,0,1] op_sel_hi:[1,0,1]')
            for e in range(4): I(f'v_pk_mul_f32 {P(e)}, {P(e)}, {Xp(e)}')
            for e in range(8): I(f'v_exp_f32 v{t+e}, v{t+e}')
            for e in range(4): I(f'v_pk_add_f32 {P(e)}, {P(e)}, 1.0 op_sel_hi:[1,0]')
            for e in range(8): I(f'v_rcp_f32 v{t+e}, v{t+e}')
            for e in range(4): I(f'v_pk_mul_f32 {P(e)}, {P(e)}, {Xp(e)}')
            f = 4*tb + sg
            for e in range(4): I(f'v_cvt_pk_bf16_f32 v{HOWN+4*f+e}, v{t+2*e}, v{t+2*e+1}')
            tk['h'] = I(f'buffer_store_dwordx4 {V(HOWN+4*f,4)}, v{vL16 if tb == 0 else 24}, s[{SWS}:{SWS+3}], s{sH} offen offset:{1024*sg} sc1')
    stamp()
    if stop == 1:
        fin(); return a
    from gen2 import rest
    rest(locals())
    return a

def build(stop=99, stamps=False):
    a = gen(stop, stamps)
    ref = open(f'cdna_kernels/{NAME}.s.ref').read()
    head = ref[:ref.index('; @launch')]
    txt = head + f'; @launch grid=(224,1,1) block=(256,1,1) lds={LEND}\n'
    txt += f'.amdgcn_target "amdgcn-amd-amdhsa--gfx950"\n.text\n.globl {NAME}_kernel\n.p2align 8\n.type {NAME}_kernel,@function\n{NAME}_kernel:\n'
    txt += a.text() + 'END:\n    s_endpgm\n'
    txt += f'''.section .rodata,"a"
.p2align 6
.amdhsa_kernel {NAME}_kernel
  .amdhsa_next_free_vgpr 512
  .amdhsa_next_free_sgpr 102
  .amdhsa_accum_offset 256
  .amdhsa_group_segment_fixed_size 0
  .amdhsa_kernarg_size 136
  .amdhsa_user_sgpr_count 2
  .amdhsa_user_sgpr_kernarg_segment_ptr 1
  .amdhsa_system_sgpr_workgroup_id_x 1
.end_amdhsa_kernel
'''
    return txt, a
if __name__ == '__main__':
    stop = int(sys.argv[2]) if len(sys.argv) > 2 else 99
    stamps = int(sys.argv[3]) if len(sys.argv) > 3 else 0
    txt, a = build(stop, stamps)
    open(sys.argv[1], 'w').write(txt)
    print('instrs', a.n, 'nops', a.nops)
```

```python
import re, copy
TRANS = ('v_exp_f32','v_log_f32','v_rcp_f32','v_rsq_f32','v_sqrt_f32','v_sin_f32','v_cos_f32')
NODST_S = ('s_cmp','s_waitcnt','s_barrier','s_nop','s_cbranch','s_branch','s_endpgm','s_setprio','s_sleep','s_bitcmp')
RE_REG = re.compile(r'^[-|]*([vas])(?:(\d+)|\[(\d+):(\d+)\])\|?$')
def regs(op):
    op = op.strip()
    m = RE_REG.match(op)
    if m:
        k = m.group(1)
        if m.group(2) is not None: return {(k, int(m.group(2)))}
        return {(k, i) for i in range(int(m.group(3)), int(m.group(4)) + 1)}
    if op in ('vcc', 'vcc_lo', 'vcc_hi'): return {('s', 'vcc')}
    if op in ('exec', 'exec_lo', 'exec_hi'): return {('s', 'exec')}
    if op == 'm0': return {('s', 'm0')}
    return set()
class Ins:
    def __init__(s, text):
        s.text = text
        t = text.split(';')[0].strip()
        p = t.split(None, 1)
        s.mn = mn = p[0]
        rest = p[1] if len(p) > 1 else ''
        parts = [x.strip() for x in re.split(r',(?![^\[]*\])', rest)] if rest else []
        mods = ''
        if parts:
            last = parts[-1].split(None, 1)
            parts[-1] = last[0]
            mods = last[1] if len(last) > 1 else ''
        s.ops, s.mods = parts, mods
        R = [regs(x) for x in parts]
        U = lambda l: set().union(*l) if l else set()
        s.cls = 'other'; s.d = set(); s.u = set(); s.c = set(); s.dpp = False; s.passes = 0; s.q = None; s.wide = False
        if mn.startswith('v_mfma'):
            s.cls = 'mfma'; s.d = R[0]; s.u = U(R[1:3]); s.c = R[3]; s.passes = 8 if '32x32' in mn else 4
        elif mn.startswith('v_'):
            s.cls = 'valu'
            base = re.sub(r'_(e32|e64|dpp|sdwa)$', '', mn)
            if base in TRANS: s.cls = 'trans'
            if base.startswith('v_dot'): s.cls = 'dot'
            s.d = R[0]; s.u = U(R[1:])
            if base.startswith(('v_swap', 'v_permlane')): s.d = s.u = U(R); s.cls = 'perm' if 'perml' in base else 'valu'
            if base.startswith(('v_fmac', 'v_dot2c', 'v_mac', 'v_pk_fmac')): s.u = s.u | s.d
            if base.startswith('v_cndmask') and len(parts) == 3: s.u |= {('s', 'vcc')}
            if base.startswith(('v_readfirstlane', 'v_readlane')): s.cls = 'rdlane'
            if re.search(r'quad_perm|row_|wave_', mods): s.dpp = True; s.u = s.u | s.d
        elif mn.startswith('ds_'):
            s.cls = 'ds'; s.q = 'lgkm'
            if mn.startswith(('ds_read', 'ds_bperm', 'ds_swizzle')): s.d = R[0]; s.u = U(R[1:])
            else: s.u = U(R)
        elif mn.startswith(('buffer_', 'global_')):
            s.cls = 'vmem'; s.q = 'vm'
            if 'load' in mn and not re.search(r'\blds\b', mods) and 'load_lds' not in mn:
                s.d = R[0]; s.u = U(R[1:])
                if 'd16' in mn: s.u = s.u | s.d
            else:
                s.u = U(R)
                if 'load' in mn: s.u |= {('s', 'm0')}; s.cls = 'dma'
                elif mn.endswith(('x4', 'x3')): s.wide = True; s.c = R[0] if mn.startswith('buffer') else R[1]
        elif mn.startswith(('s_load', 's_memtime', 's_memrealtime')):
            s.cls = 'smem'; s.q = 'lgkm'; s.d = R[0]; s.u = U(R[1:])
        elif mn.startswith('s_'):
            s.cls = 'salu'
            if mn.startswith(NODST_S): s.u = U(R)
            else:
                s.d = R[0]; s.u = U(R[1:])
                if 'saveexec' in mn: s.d = s.d | {('s', 'exec')}
class Asm:
    def __init__(s):
        s.out = []; s.t = 0; s.vm = []; s.lg = []; s.w = {}; s.cread = {}; s.stw = {}; s.n = 0; s.nops = 0; s.uid = 0; s.fill = []; s.every = 0; s.cnt = 0; s.infill = False; s.masked = False
    def raw(s, txt): s.out.append(txt)
    def label(s, name): s.out.append(name + ':')
    def _emit(s, txt, states=1): s.out.append('    ' + txt); s.t += states; s.n += 1
    def nop(s, k):
        while k > 0:
            n = min(k, 16); s._emit(f's_nop {n-1}', n); k -= n; s.nops += 1
    def waitcnt(s, vm=None, lg=None):
        a = []
        if vm is not None and vm < len(s.vm):
            assert vm <= 63; a.append(f'vmcnt({vm})'); s.vm = s.vm[len(s.vm) - vm:] if vm else []
        if lg is not None and lg < len(s.lg):
            if any(e[2] for e in s.lg): lg = 0
            lg = min(lg, 15); a.append(f'lgkmcnt({lg})'); s.lg = s.lg[len(s.lg) - lg:] if lg else []
        if a: s._emit('s_waitcnt ' + ' '.join(a))
    def wait(s, *toks):
        vm = lg = None
        for tok in toks:
            if tok is None: continue
            for i, e in enumerate(s.vm):
                if e[0] == tok: k = len(s.vm) - i - 1; vm = k if vm is None else min(vm, k)
            for i, e in enumerate(s.lg):
                if e[0] == tok: k = len(s.lg) - i - 1; lg = k if lg is None else min(lg, k)
        s.waitcnt(vm, lg)
    def need(s, i):
        n = 0
        def dist(r, pred, k):
            nonlocal n
            e = s.w.get(r)
            if e and pred(e): n = max(n, k - (s.t - e[1]))
        isv = i.cls in ('valu', 'trans', 'dot', 'perm', 'rdlane')
        VAL = ('valu', 'trans', 'perm', 'dot', 'rdlane')
        for r in i.u | i.c | i.d:
            e = s.w.get(r)
            if not e: continue
            c, t0, p, full = e
            k = 0
            rd = r in i.u or r in i.c
            if c == 'mfma':
                big = 12 if p == 8 else 8
                if i.cls == 'mfma':
                    if r in i.u: k = big
                    elif r in i.c or r in i.d: k = 0 if (i.c == full and i.passes == p) else (big - 2 if r in i.c else big)
                    if r in i.d and r not in i.c: k = max(k, big)
                else: k = big
            elif c in VAL and r[0] in 'va':
                if rd:
                    if i.cls == 'mfma': k = 3 if c == 'dot' else 2
                    elif i.cls == 'perm' or i.dpp: k = 2
                    elif i.cls == 'rdlane': k = 1
                    if c == 'trans' and isv and i.cls != 'trans': k = max(k, 1)
                    if c == 'trans' and not isv: k = max(k, 1)
                if c == 'dot' and not (i.cls == 'dot' and r in i.d and r not in (regs(i.ops[1]) | regs(i.ops[2]))): k = max(k, 3)
            elif c in VAL and r[0] == 's' and rd:
                if i.cls in ('vmem', 'dma'): k = 5
                elif i.cls == 'rdlane': k = 4
                elif isv or i.cls == 'mfma': k = 5 if (r[1] == 'exec') else 2
                elif i.cls in ('salu', 'smem'): k = 1
            elif c == 'salu' and r == ('s', 'm0') and i.cls == 'dma': k = 1
            n = max(n, k - (s.t - t0))
        if isv:
            for r in i.d:
                e = s.cread.get(r)
                if e: n = max(n, (7 if e[1] == 8 else 3) - (s.t - e[0]))
        for r in i.d:
            e = s.stw.get(r)
            if e is not None: n = max(n, 2 - (s.t - e))
        return n
    def __call__(s, text):
        i = Ins(text)
        touch = i.u | i.d | i.c
        vm = lg = None
        for k, e in enumerate(s.vm):
            if e[1] & touch: vm = len(s.vm) - k - 1
        for k, e in enumerate(s.lg):
            if e[1] & touch: lg = len(s.lg) - k - 1
        s.waitcnt(vm, lg)
        if i.q == 'vm' and len(s.vm) >= 63: s.waitcnt(vm=62)
        s.nop(s.need(i))
        s._emit(text)
        for r in i.d: s.w[r] = (i.cls, s.t, i.passes, i.d)
        if i.cls == 'mfma':
            for r in i.c: s.cread[r] = (s.t, i.passes)
        if i.wide:
            for r in i.c: s.stw[r] = s.t
        s.uid += 1
        if i.q == 'vm': s.vm.append((s.uid, i.d, False))
        if i.q == 'lgkm': s.lg.append((s.uid, i.d, i.cls == 'smem'))
        uid = s.uid
        if i.mn == 's_mov_b64' and i.ops[0] == 'exec': s.masked = i.ops[1] != '-1'
        if s.fill and not s.infill and not s.masked:
            s.cnt += 1
            if s.cnt >= s.every:
                s.cnt = 0; s.infill = True; s.fill.pop(0)(); s.infill = False
        return uid
    def sprinkle(s, fns, every, first=0):
        assert not s.fill; s.fill = list(fns); s.every = every; s.cnt = every - first if first else 0
    def flush(s):
        s.infill = True
        while s.fill: s.fill.pop(0)()
        s.infill = False
    def pf(s, text):
        i = Ins(text); i.d = set()
        if len(s.vm) >= 63: s.waitcnt(vm=62)
        s.nop(s.need(i)); s._emit(text); s.uid += 1; s.vm.append((s.uid, set(), False))
    def settle(s):
        n = 0
        for r, (c, t0, p, f) in s.w.items():
            k = {'mfma': 12 if p == 8 else 8, 'salu': 1 if r == ('s', 'm0') else 0}.get(c, 0)
            if c in ('valu', 'trans', 'perm', 'dot', 'rdlane'): k = 5 if r[0] == 's' else 3
            n = max(n, k - (s.t - t0))
        for r, (t0, p) in s.cread.items(): n = max(n, (7 if p == 8 else 3) - (s.t - t0))
        for r, t0 in s.stw.items(): n = max(n, 2 - (s.t - t0))
        s.nop(n)
    def snap(s): return copy.deepcopy((s.t, s.vm, s.lg, s.w, s.cread, s.stw))
    def restore(s, st): s.t, s.vm, s.lg, s.w, s.cread, s.stw = copy.deepcopy(st)
    def ifelse(s, name, fa, fb):
        inf = s.infill; s.infill = True
        s.settle(); s._emit(f's_cbranch_scc1 {name}_b'); st = s.snap(); u0 = s.uid
        fa(); s.settle(); s._emit(f's_branch {name}_j'); a = s.snap()
        s.label(f'{name}_b'); s.restore(st); s.uid = u0; fb(); s.settle(); s.label(f'{name}_j')
        assert len(a[1]) == len(s.vm) and len(a[2]) == len(s.lg), (name, len(a[1]), len(s.vm), len(a[2]), len(s.lg))
        s.infill = inf
        s.vm = [(x[0], x[1] | y[1], x[2]) for x, y in zip(a[1], s.vm)]
        s.lg = [(x[0], x[1] | y[1], x[2]) for x, y in zip(a[2], s.lg)]
    def barrier(s):
        s.waitcnt(lg=0); s._emit('s_barrier')
    def text(s): return '\n'.join(s.out) + '\n'
def V(a, n=1): return f'v{a}' if n == 1 else f'v[{a}:{a+n-1}]'
def A(a, n=1): return f'a{a}' if n == 1 else f'a[{a}:{a+n-1}]'
def S(a, n=1): return f's{a}' if n == 1 else f's[{a}:{a+n-1}]'

import subprocess, tempfile, os
def sizes(txt):
    open('_al.s', 'w').write(txt)
    r = subprocess.run(['clang', '-x', 'assembler', '-target', 'amdgcn-amd-amdhsa', '-mcpu=gfx950', '-c', '_al.s', '-o', '_al.o'], capture_output=True, text=True)
    assert r.returncode == 0, r.stderr[:3000]
    d = subprocess.run(['llvm-objdump', '-d', '_al.o'], capture_output=True, text=True).stdout
    return [4*len(m.group(1).split()) for m in re.finditer(r'// [0-9A-F]+: ((?:[0-9A-F]{8} ?)+)', d)]
def promotable(t):
    mn = t.split()[0]
    if not mn.startswith('v_') or mn.endswith(('_e64', '_dpp', '_sdwa')): return False
    return not mn.startswith(('v_readfirstlane', 'v_swap', 'v_permlane', 'v_dot2c', 'v_fmaak', 'v_fmamk', 'v_accvgpr', 'v_nop'))
def align(lines, sz, nopcost=4):
    idx = [i for i, l in enumerate(lines) if l.startswith('    ')]
    assert len(idx) <= len(sz), (len(idx), len(sz))
    INF = 1 << 30; cost = [0, INF]; back = []
    for n, i in enumerate(idx):
        t = lines[i].strip(); nc = [INF, INF]; bk = [None, None]
        for p in (0, 1):
            if cost[p] >= INF: continue
            opts = []
            if sz[n] == 4:
                opts.append((0, p ^ 1, 0))
                if promotable(t): opts.append((p, p, 1))
            else:
                q = p if sz[n] % 8 == 0 else p ^ 1
                opts.append((p, q, 0))
                if p == 1: opts.append((nopcost, q ^ 1, 2))
            for c, q, act in opts:
                if cost[p] + c < nc[q]: nc[q] = cost[p] + c; bk[q] = (p, act)
        cost = nc; back.append(bk)
    p = 0 if cost[0] <= cost[1] else 1; tot = cost[p]; acts = []
    for bk in reversed(back): p, act = bk[p]; acts.append(act)
    acts.reverse(); out = list(lines)
    for n, i in enumerate(idx):
        if acts[n] == 1:
            t = lines[i].strip().split(None, 1); out[i] = '    ' + re.sub(r'_e32$', '', t[0]) + '_e64 ' + t[1]
        elif acts[n] == 2: out[i] = '    s_nop 0\n' + lines[i]
    return out, tot, sum(a == 1 for a in acts), sum(a == 2 for a in acts)
```

```python
from gen import *
def rest(L):
    a = I = L['a']; stamp, poll, cmp_flag, flag_store, unpack, fin, gemm, tk, xnorm, srd = (L[k] for k in
        'stamp poll cmp_flag flag_store unpack fin gemm tk xnorm srd'.split())
    stop = L['stop']; vG2, vTR, ACC = L['vG2'], L['vTR'], L['ACC']
    WS = f's[{SWS}:{SWS+3}]'
    tw, tr, dt, hb = 14, 15, 16, 18
    I(f's_mul_i32 s{sT0}, s{sW}, 17408')
    I(f'v_mul_u32_u24 v{tw}, 272, v0'); I(f'v_add_u32 v{tw}, s{sT0}, v{tw}')
    I(f'v_lshrrev_b32 v{hb}, 5, v0'); I(f'v_bfe_u32 v17, v0, 3, 1'); I(f'v_lshl_add_u32 v17, v{hb}, 2, v17'); I(f'v_mul_u32_u24 v17, {8*272}, v17')
    I(f'v_bfe_u32 v{tr}, v0, 2, 1'); I(f'v_lshl_add_u32 v{tr}, v{tr}, 6, v{vTR}'); I(f'v_add3_u32 v{tr}, v{tr}, v17, s{sT0}')
    I(f's_lshl_b32 s{sT1}, s{sC}, 4'); I(f's_lshr_b32 s{sT1}, s{sLD}, s{sT1}'); I(f's_lshl_b32 s{sT1}, s{sT1}, 16')
    I(f'v_mov_b32 v{dt}, {f2u(math.log2(math.e))}'); I(f'v_mul_f32 v{dt}, s{sT1}, v{dt}'); I(f'v_exp_f32 v{dt}, v{dt}')
    I(f'v_cvt_pk_bf16_f32 v{dt}, v{dt}, v{dt}'); I(f'v_lshlrev_b32 v{dt}, 16, v{dt}')
    I(f's_lshr_b32 s{sT1}, s2, 3'); I(f's_lshl_b32 s{sT1}, s{sT1}, 12'); I(f's_add_u32 s{sT1}, s{sT1}, {XF}')
    vXF, vXFa, vHF, vHFa = 56, 57, 58, 59
    I(f'v_and_b32 v{vXFa}, 31, v0'); I(f'v_lshlrev_b32 v{vXFa}, 7, v{vXFa}'); I(f'v_add_u32 v{vXFa}, s{sT1}, v{vXFa}')
    ldXF = lambda: I(f'buffer_load_dword v{vXF}, v{vXFa}, {WS}, 0 offen sc1')
    ldXF()
    I(f's_lshl_b32 s{sT1}, s{sR}, 2'); I(f's_add_u32 s{sT1}, s{sT1}, s{sW}'); I(f's_lshl_b32 s{sT1}, s{sT1}, 10'); I(f's_add_u32 s{sT1}, s{sT1}, {HF}')
    I(f'v_and_b32 v{vHFa}, 7, v0'); I(f'v_min_u32 v{vHFa}, 6, v{vHFa}'); I(f'v_lshlrev_b32 v{vHFa}, 7, v{vHFa}'); I(f'v_add_u32 v{vHFa}, s{sT1}, v{vHFa}')
    ldHF = lambda: I(f'buffer_load_dword v{vHF}, v{vHFa}, {WS}, 0 offen sc1')
    I(f's_lshl_b32 s{sT2}, s{sJ}, 7'); I(f's_add_u32 s{sT2}, s{sT2}, s{sT1}')
    I(f's_lshl_b32 s{sT1}, s2, 1'); I(f's_add_u32 s{sT1}, s{sT1}, s{sC}'); I(f's_lshl_b32 s{sT1}, s{sT1}, 12')
    I(f's_add_u32 s{SU}, s36, s{sT1}'); I(f's_addc_u32 s{SU+1}, s37, 0'); I(f's_mov_b32 s{SU+2}, 4096'); I(f's_mov_b32 s{SU+3}, 0x00020000')
    sY = sLD
    I(f's_lshl_b32 s{sT0}, s{sP}, 11'); I(f's_add_u32 s{sY}, s{sT1}, s{sT0}'); I(f's_add_u32 s{sY}, s{sY}, {YT}')
    a.barrier()
    def cmuls(lst):
        for d, p, q in lst: I(f'v_pk_mul_f32 {V(d,2)}, {V(p,2)}, {V(q,2)} op_sel:[0,0] op_sel_hi:[0,1]')
        for d, p, q in lst: I(f'v_pk_fma_f32 {V(d,2)}, {V(p,2)}, {V(q,2)}, {V(d,2)} op_sel:[1,1,0] op_sel_hi:[1,0,1] neg_lo:[1,0,0]')
    G = lambda b: 64 + 2*(b & 15) if b < 16 else 96 + 2*(b - 16)
    Sx = lambda i: 128 + 2*i
    HH = {}; nx = 146
    for o in (256, 258, 260, 262, 264, 512, 516, 520, 768, 772, 776, 1024, 1032, 1280, 1288, 1536, 1544, 1792, 1800): HH[o] = nx; nx += 2
    for i in range(9): HH[i] = Sx(i)
    g1, g256, g2 = 20, 22, 24; er, ph = 26, 27; PK = 32; KD = 192; KF = 208
    h0 = [0,1,2,3,4,5,6,7, 512,516,520, 1024,1032,1280,1288, None]
    h1 = [256,256,258,260,260,260,262,264, 768,772,776, 1536,1544,1792,1800, None]
    pkn = [0]
    def wr8(srcs, off, neg):
        for comp in range(2):
            p = PK + 4*(pkn[0] % 4); pkn[0] += 1
            n = '-' if (neg and comp) else ''
            for e in range(4):
                x, y = srcs[2*e], srcs[2*e+1]
                if y is None: y = x
                I(f'v_cvt_pk_bf16_f32 v{p+e}, {n}v{x+comp}, {n}v{y+comp}')
            I(f'ds_write_b128 v{tw}, {V(p,4)} offset:{off + 64*comp}')
    U0 = 40
    uE, uA, u3 = 28, 29, 30
    for bt in range(2):
        P = 48
        for i in range(6): I(f'v_lshlrev_b32 v{P+i}, 16, v{vPAR+i}' if bt == 0 else f'v_and_b32 v{P+i}, s{sHI}, v{vPAR+i}')
        for i in range(4): I(f'v_mul_f32 v{P+i}, v{dt}, v{P+i}')
        I(f'v_mul_f32 v{er}, {f2u(math.log2(math.e))}, v{P}'); I(f'v_mul_f32 v{ph}, 0.15915494, v{P+1}')
        cmuls([(Sx(0), P+4, P+2)])
        for d, sc in ((g1, 1.0), (G(1), 8.0), (g256, 256.0)):
            if sc != 1.0:
                I(f'v_mul_f32 v{P}, {f2u(sc)}, v{er}'); I(f'v_mul_f32 v{P+1}, {f2u(sc)}, v{ph}')
            I(f'v_exp_f32 v{P}, v{P if sc != 1.0 else er}'); I(f'v_fract_f32 v{P+1}, v{P+1 if sc != 1.0 else ph}')
            I(f'v_cos_f32 v{d}, v{P+1}'); I(f'v_sin_f32 v{d+1}, v{P+1}')
            I(f'v_pk_mul_f32 {V(d,2)}, {V(d,2)}, {V(P,2)} op_sel_hi:[1,0]')
        I(f'v_mov_b32 v{G(0)}, 1.0'); I(f'v_mov_b32 v{G(0)+1}, 0')
        cmuls([(G(2), G(1), G(1)), (g2, g1, g1), (Sx(1), Sx(0), g1), (Sx(8), Sx(0), G(1))])
        cmuls([(G(3), G(2), G(1)), (G(4), G(2), G(2)), (Sx(2), Sx(0), g2), (Sx(3), Sx(1), g2)])
        cmuls([(G(5), G(4), G(1)), (G(6), G(4), G(2)), (G(7), G(4), G(3)), (G(8), G(4), G(4)), (Sx(4), Sx(2), g2), (Sx(5), Sx(3), g2)])
        wr8([G(b) for b in range(8)], 128, False)
        cmuls([(G(8+i), G(8), G(i)) for i in range(1, 9)] + [(Sx(6), Sx(4), g2), (Sx(7), Sx(5), g2)])
        wr8([G(b) for b in range(8, 16)], 144, False)
        cmuls([(G(16+i), G(16), G(i)) for i in range(1, 8)] + [(HH[256+i], Sx(i), g256) for i in (0, 2, 4, 6, 8)])
        wr8([G(b) for b in range(16, 24)], 160, False)
        if bt == 0: a.wait(tk['h']); flag_store(sT2)
        cmuls([(G(16+i), G(16), G(i)) for i in range(8, 16)] + [(HH[512+i], HH[256+i], g256) for i in (0, 4, 8)])
        wr8([G(b) for b in range(24, 32)], 176, False)
        cmuls([(HH[768+i], HH[512+i], g256) for i in (0, 4, 8)])
        for q in range(2): wr8([HH[o] for o in h0[4*q:4*q+4] + h1[4*q:4*q+4]], 16*q, True)
        if bt == 1: ldHF()
        for o in (1024, 1280, 1536, 1792): cmuls([(HH[o+i], HH[o-256+i], g256) for i in (0, 8)])
        for q in range(2, 4): wr8([HH.get(o) for o in h0[4*q:4*q+4] + h1[4*q:4*q+4]], 16*q, True)
        stamp(2)
        if bt == 0:
            poll(vXF, ldXF, cmp_flag(vXF))
        def kreads(s):
            b = KF + 8*(s & 1)
            for o, x in ((0, 0), (2, 16*272), (4, 128), (6, 16*272+128)): I(f'ds_read_b64_tr_b16 {V(b+o,2)}, v{tr} offset:{x + 272*s}')
        kreads(0)
        for s in range(8):
            if s < 7: kreads(s+1)
            b = KF + 8*(s & 1)
            I(f'v_mfma_f32_32x32x16_bf16 {V(KD,16)}, {V(b,4)}, {V(b+4,4)}, {0 if (bt == 0 and s == 0) else V(KD,16)}')
        stamp(2)
    I(f's_lshl_b32 s{sT0}, s{sP}, 11'); I(f'v_add_u32 v{uE}, s{sT0}, v{vL16}'); I(f'v_add_u32 v{uA}, -16, v{uE}')
    I(f's_cmp_eq_u32 s{sP}, 0'); I(f's_cselect_b32 s{sT1}, -16, 4080'); I(f'v_mov_b32 v{u3}, s{sT1}')
    UU = f's[{SU}:{SU+3}]'
    I(f'buffer_load_dwordx4 {V(U0,4)}, v{uA}, {UU}, 0 offen sc1'); I(f'buffer_load_dwordx2 {V(U0+4,2)}, v{uE}, {UU}, 0 offen sc1')
    I(f'buffer_load_dwordx4 {V(U0+6,4)}, v{uE}, {UU}, 0 offen offset:1008 sc1'); I(f'buffer_load_dwordx2 {V(U0+10,2)}, v{uE}, {UU}, 0 offen offset:1024 sc1')
    I(f'buffer_load_dwordx4 {V(U0+12,4)}, v{u3}, {UU}, 0 offen sc1')
    poll(vHF, ldHF, cmp_flag(vHF)); stamp()
    I(f'v_add_u32 v24, 4096, v{vL16}')
    hl = [(lambda n=n, f=f: I(f'buffer_load_dwordx4 {A(32*(n-1)+4*f,4)}, v{vL16 if f < 4 else 24}, {WS}, s{sH+n} offen offset:{1024*(f&3)} sc1'))
          for n in range(1, 7) for f in (0, 4, 1, 5, 2, 6, 3, 7)]
    if os.environ.get('NOH'): hl = []
    a.sprinkle(hl[:10], 12); hl = hl[10:]
    stamp()
    xk, xp, k1, k2, kz, bm = 20, 21, 22, 23, 25, 26
    I(f's_mul_i32 s{sT0}, s{sC}, 34816'); I(f's_lshl_b32 s{sT1}, s{sP}, 15'); I(f's_add_u32 s{sT2}, s{sT0}, s{sT1}'); I(f'v_add_u32 v{xk}, s{sT2}, v{vL16}')
    I(f's_sub_u32 s{sT2}, s{sT0}, s{sT1}'); I(f's_add_u32 s{sT2}, s{sT2}, 32768'); I(f'v_add_u32 v{xp}, s{sT2}, v{vL16}')
    sKB = sT2
    I(f's_mul_i32 s{sKB}, s{sC}, 4608'); I(f's_add_u32 s{sKB}, s{sKB}, {LB}')
    I(f'v_and_b32 v27, 31, v0'); I(f'v_sub_u32 v27, 255, v27'); I(f'v_and_b32 v{bm}, 1, v27'); I(f'v_lshrrev_b32 v27, 1, v27')
    I(f'v_mul_u32_u24 v{k1}, 2304, v{bm}'); I(f'v_lshl_add_u32 v{k1}, v27, 4, v{k1}'); I(f'v_add_u32 v{k1}, s{sKB}, v{k1}')
    I(f'v_sub_u32 v{bm}, 0, v{bm}')
    I(f'v_lshlrev_b32 v27, 8, v{hb}'); I(f'v_sub_u32 v{k1}, v{k1}, v27'); I(f'v_sub_u32 v{k2}, v{k1}, v27')
    I(f'v_add_u32 v{k1}, -512, v{k1}'); I(f'v_add_u32 v{k2}, -1280, v{k2}')
    I(f'v_bfe_u32 v{kz}, v0, 4, 1'); I(f'v_mul_u32_u24 v{kz}, 2304, v{kz}'); I(f'v_and_b32 v27, 15, v0'); I(f'v_lshl_add_u32 v{kz}, v27, 4, v{kz}')
    I(f'v_add_u32 v{kz}, s{sKB}, v{kz}')
    I(f's_cmp_eq_u32 s{sP}, 1')
    def snd(o):
        def f():
            I(f'ds_write_b128 v{xk}, {V(KD+o,4)}'); I(f'ds_write_b128 v{xk}, {V(KD+o+4,4)} offset:1024')
        return f
    a.ifelse('KS', snd(8), snd(0))
    a.barrier()
    stamp()
    E = 208; T = 216
    I(f'ds_read_b128 {V(E,4)}, v{xp}'); I(f'ds_read_b128 {V(E+4,4)}, v{xp} offset:1024')
    uw = 27
    I(f's_mul_i32 s{sT0}, s{sC}, 34816'); I(f's_add_u32 s{sT0}, s{sT0}, {2048+16}'); I(f'v_add_u32 v{uw}, s{sT0}, v{uE}')
    def copies(d, e5, addr, off):
        R = [d, d+1, d+2, d+3] + ([e5, e5+1] if e5 else [None, None])
        rr = lambda i: f'v{R[i]}' if R[i] is not None else '0'
        I(f'ds_write_b128 v{addr}, {V(d,4)} offset:{off}')
        for e in range(4): I(f'v_alignbit_b32 v{64+e}, {rr(e+1)}, {rr(e)}, 16')
        for e in range(4): I(f'v_mov_b32 v{68+e}, {rr(e+1)}')
        for e in range(3): I(f'v_mov_b32 v{72+e}, v{64+e+1}')
        I(f'v_alignbit_b32 v75, {rr(5)}, {rr(4)}, 16' if e5 else 'v_mov_b32 v75, 0')
        for s in range(1, 4): I(f'ds_write_b128 v{addr}, {V(60+4*s,4)} offset:{off + 4160*s}')
    copies(U0, U0+4, uw, 0); copies(U0+6, U0+10, uw, 1024)
    I(f's_mul_i32 s{sT1}, s{sP}, {257*16}'); I(f's_add_u32 s{sT1}, s{sT1}, s{sT0}'); I(f's_sub_u32 s{sT1}, s{sT1}, 16'); I(f'v_mov_b32 v{u3}, s{sT1}')
    I('s_mov_b64 exec, 1'); copies(U0+12, None, u3, 0); I('s_mov_b64 exec, -1')
    I(f's_cmp_eq_u32 s{sP}, 1')
    def ex0():
        for e in range(8): I(f'v_add_f32 v{E+e}, v{E+e}, v{KD+e}')
        for e in range(4): I(f'v_cvt_pk_bf16_f32 v{T+e}, v{E+7-2*e}, v{E+6-2*e}')
        I(f'ds_write_b128 v{k1}, {V(T,4)} offset:512')
        for e in range(4): I(f'v_mov_b32 v{T+4+e}, 0')
        I(f'ds_write_b128 v{kz}, {V(T+4,4)} offset:2048'); I(f'ds_write_b128 v{kz}, {V(T+4,4)} offset:2048')
    def ex1():
        for e in range(7): I(f'v_add_f32 v{E+e}, v{E+e}, v{KD+8+e}')
        for e, (x, y) in enumerate(((2, 2), (1, 1), (1, 0), (0, 0))): I(f'v_cvt_pk_bf16_f32 v{T+e}, v{E+x}, v{E+y}')
        I(f'ds_write_b128 v{k1}, {V(T,4)}')
        for z, (v0_, off) in enumerate(((E+3, 256), (E+5, 0))):
            t = T + 4 if z == 0 else KD
            I(f'v_bfi_b32 v{E+7}, v{bm}, v{v0_}, v{v0_+1}')
            I(f'v_cvt_pk_bf16_f32 v{t}, v{v0_+1}, v{v0_+1}'); I(f'v_cvt_pk_bf16_f32 v{t+1}, v{v0_+1}, v{E+7}')
            I(f'v_cvt_pk_bf16_f32 v{t+2}, v{v0_}, v{v0_}'); I(f'v_cvt_pk_bf16_f32 v{t+3}, v{v0_}, v{v0_}')
            I(f'ds_write_b128 v{k2}, {V(t,4)} offset:{off}')
    a.ifelse('KE', ex0, ex1)
    cu0, cu1, ck, ys = 20, 21, 22, 23
    I(f'v_and_b32 v25, 15, v0'); I(f'v_add_u32 v26, 1, v25'); I(f'v_and_b32 v27, 3, v26'); I(f'v_sub_u32 v26, v26, v27')
    I(f'v_mul_u32_u24 v27, 4160, v27'); I(f'v_lshl_add_u32 v27, v26, 1, v27'); I(f'v_lshrrev_b32 v26, 4, v0'); I(f'v_lshl_add_u32 v27, v26, 4, v27')
    I(f's_lshl_b32 s{sT1}, s{sP}, 8'); I(f's_add_u32 s{sT1}, s{sT1}, s{sT0}'); I(f's_sub_u32 s{sT1}, s{sT1}, 16')
    I(f'v_add_u32 v{cu0}, s{sT1}, v27'); I(f'v_add_u32 v{cu1}, 2048, v{cu0}')
    I(f'v_and_b32 v26, 1, v26'); I(f'v_sub_u32 v27, v{hb}, v25'); I(f'v_add_u32 v27, 15, v27'); I(f'v_mul_u32_u24 v{ck}, 2304, v26')
    I(f'v_lshl_add_u32 v{ck}, v27, 4, v{ck}'); I(f's_lshl_b32 s{sT1}, s{sP}, 7'); I(f's_add_u32 s{sT1}, s{sT1}, s{sKB}'); I(f'v_add_u32 v{ck}, s{sT1}, v{ck}')
    I(f'v_lshlrev_b32 v{ys}, 9, v26'); I(f'v_lshl_add_u32 v{ys}, v25, 5, v{ys}'); I(f'v_lshl_add_u32 v{ys}, v{hb}, 4, v{ys}')
    a.flush()
    a.barrier()
    stamp()
    if stop == 2:
        I(f's_mul_i32 s{sT0}, s2, 9216'); I(f's_add_u32 s{sT0}, s{sT0}, 0xD00000'); I(f'v_add_u32 v25, {LB}, v{vL16}')
        for i in range(9):
            I(f'ds_read_b128 v[64:67], v25 offset:{1024*i}'); I(f'buffer_store_dwordx4 v[64:67], v{vL16}, {WS}, s{sT0} offen'); I(f's_add_u32 s{sT0}, s{sT0}, 1024')
            a.waitcnt(vm=0)
        fin(); return
    CA, CBf = [96, 128], [160, 192]
    def creads(st):
        r = []
        for i in range(8):
            o = 64*st + 512*i
            r.append(f'ds_read_b64 {V(CA[st&1]+4*i,2)}, v{cu0} offset:{o}'); r.append(f'ds_read_b64 {V(CA[st&1]+4*i+2,2)}, v{cu0} offset:{o+8}')
        b = [f'ds_read_b128 {V(CBf[st&1]+4*i,4)}, v{ck} offset:{256*(7-i) + 32*st}' for i in range(8)]
        return r[:2] + b + r[2:]
    for x in creads(0): I(x)
    for st in range(4):
        nx = creads(st+1) if st < 3 else []
        c = 0
        for i in range(8):
            for cb in range(i, 8):
                d = V(ACC+4*cb, 4)
                I(f'v_mfma_f32_16x16x32_bf16 {d}, {V(CA[st&1]+4*i,4)}, {V(CBf[st&1]+4*(cb-i),4)}, {0 if (st == 0 and i == 0) else d}')
                c += 1
                if c >= 4 and nx: I(nx.pop(0))
                if c % 5 == 2 and hl: hl.pop(0)()
        assert not nx
    stamp(3)
    xc, xq = 25, 26
    I(f's_lshl_b32 s{sT0}, s{sW}, 12'); I(f's_add_u32 s{sT1}, s{sT0}, 53504'); I(f'v_add_u32 v{xc}, s{sT1}, v{vL16}')
    I(f's_xor_b32 s{sT0}, s{sT0}, 4096'); I(f's_add_u32 s{sT1}, s{sT0}, 53504'); I(f'v_add_u32 v{xq}, s{sT1}, v{vL16}')
    I(f's_cmp_eq_u32 s{sP}, 1')
    def csnd(o):
        def f():
            for q in range(4): I(f'ds_write_b128 v{xc}, {V(ACC+o+4*q,4)} offset:{1024*q}')
        return f
    a.ifelse('CS', csnd(16), csnd(0))
    a.barrier()
    E = 96; T = 112
    for q in range(4): I(f'ds_read_b128 {V(E+4*q,4)}, v{xq} offset:{1024*q}')
    I(f's_cmp_eq_u32 s{sP}, 1')
    def cadd(o):
        def f():
            for e in range(16): I(f'v_add_f32 v{E+e}, v{E+e}, v{ACC+o+e}')
        return f
    a.ifelse('CA', cadd(0), cadd(16))
    for e in range(8): I(f'v_cvt_pk_bf16_f32 v{T+e}, v{E+2*e}, v{E+2*e+1}')
    for pr in range(2):
        for e in range(2): I(f'v_permlane16_swap_b32 v{T+4*pr+e}, v{T+4*pr+2+e}')
    for pr in range(2): tk['y'] = I(f'buffer_store_dwordx4 {V(T+4*pr,4)}, v{ys}, {WS}, s{sY} offen offset:{1024*pr} sc1')
    stamp()
    I(f's_lshl_b32 s{sT1}, s2, 2'); I(f's_add_u32 s{sT1}, s{sT1}, s{sW}'); I(f's_lshl_b32 s{sT1}, s{sT1}, 7'); I(f's_add_u32 s{sT1}, s{sT1}, {YF}')
    if stop == 3:
        fin(); return
    vG3, vYF, vYFa, vX, vBD = 14, 15, 16, 17, 19
    B2, DS, YR, XF32, XN, t = 128, 136, 144, 152, 208, 28
    I(f'v_xor_b32 v{vG3}, 64, v{vG2}')
    ldYF = lambda: I(f'buffer_load_dword v{vYF}, v{vYFa}, {WS}, 0 offen sc1')
    def e_y0():
        a.wait(tk['y']); flag_store(sT1)
    def e_a():
        I(f's_lshl_b32 s{sT2}, s{sJ}, 1'); I(f's_add_u32 s{sT2}, s{sT2}, s{sP}')
        I(f's_lshl_b32 s{sT1}, s{sR}, 1'); I(f's_add_u32 s{sT1}, s{sT1}, s{sC}')
    def e_a2():
        I(f's_mul_i32 s{sXO}, s{sT1}, {32*896}'); I(f's_lshl_b32 s{sK}, s{sT2}, 6'); I(f's_add_u32 s{sXO}, s{sXO}, s{sK}')
    def e_b():
        I(f'v_and_b32 v{vX}, 31, v0'); I(f'v_mul_u32_u24 v{vX}, 896, v{vX}'); I(f'v_lshl_add_u32 v{vX}, v{hb}, 5, v{vX}')
    def e_b2():
        I(f'v_lshlrev_b32 v{vBD}, 5, v{hb}'); I(f'v_add_u32 v{vBD}, s{sK}, v{vBD}')
        I(f's_lshl_b32 s{sK}, s{sT2}, 13'); I(f's_add_u32 s{sK}, s{sK}, {YF}')
    def e_d():
        for q in range(2): I(f'global_load_dwordx4 {V(B2+4*q,4)}, v{vBD}, s[30:31] offset:{16*q}')
    def e_e():
        for q in range(2): I(f'global_load_dwordx4 {V(DS+4*q,4)}, v{vBD}, s[20:21] offset:{16*q}')
    def e_f():
        I(f'v_lshlrev_b32 v{vYFa}, 7, v0'); I(f'v_add_u32 v{vYFa}, s{sK}, v{vYFa}')
    def e_f2():
        I(f's_lshl_b32 s{sT2}, s{sT2}, 17'); I(f's_lshl_b32 s{sK}, s{sT1}, 6'); I(f's_add_u32 s{sT2}, s{sT2}, s{sK}'); I(f's_add_u32 s{sT2}, s{sT2}, {YT}')
    ya, yw, yr, rw = 20, 21, 22, 24
    def e_g():
        I(f'v_lshrrev_b32 v{ya}, 2, v0'); I(f'v_lshlrev_b32 v{ya}, 12, v{ya}'); I(f'v_and_b32 v{yw}, 3, v0'); I(f'v_lshl_add_u32 v{ya}, v{yw}, 4, v{ya}')
    def e_g2():
        I(f's_lshl_b32 s{sK}, s{sW}, 11'); I(f's_add_u32 s{sK}, s{sK}, {LB}'); I(f'v_add_u32 v{yw}, s{sK}, v{vL16}')
    def e_h():
        I(f'v_bfe_u32 v{yr}, v0, 2, 2'); I(f'v_lshl_add_u32 v{yr}, v{hb}, 4, v{yr}'); I(f'v_lshl_add_u32 v{yr}, v{yr}, 6, v{vTR}'); I(f'v_add_u32 v{yr}, s{sK}, v{yr}')
    def e_i():
        I(f's_lshl_b32 s{sK}, s{sW}, 12'); I(f'v_add_u32 v{rw}, s{sK}, v{vL16}'); I(f's_add_u32 s{sK}, s{sT2}, 65536')
    def e_i2():
        for x in range(1, 4): I(f'v_xor_b32 v{rw+x}, {4096*x}, v{rw}')
    def e_acc(o):
        def f():
            for e in range(4): I(f'v_accvgpr_read_b32 v{44+o+e}, a{192+o+e}')
        return f
    def e_unp(dst, src):
        def f():
            for e in range(2): unpack(dst+2*e, dst+2*e+1, src+e)
        return f
    def e_yl():
        poll(vYF, ldYF, cmp_flag(vYF))
        I(f'buffer_load_dwordx4 {V(YR,4)}, v{ya}, {WS}, s{sT2} offen sc1'); I(f'buffer_load_dwordx4 {V(YR+4,4)}, v{ya}, {WS}, s{sK} offen sc1')
    def hfrag(k, tb):
        n, sg = divmod(k, 4)
        return V(HOWN + 16*tb + 4*sg, 4) if n == 0 else A(32*(n-1) + 16*tb + 4*sg, 4)
    ex = {(k, 0): f for k, f in enumerate(hl)}
    lst = [e_a, e_a2, e_b, e_b2, e_f, e_f2, e_g, e_g2, e_h, e_i, e_i2]
    ex[(int(os.environ.get('YFS', '6')), 1)] = e_y0
    for i, f in enumerate(lst): ex[(8 + i, 1)] = f
    ex[(18, 2)] = e_d; ex[(18, 3)] = e_e; ex[(19, 2)] = ldYF
    for i in range(4): ex[(19 + i//2, 3*(i & 1))] = e_acc(4*i)
    lst = [e_unp(XF32 + 4*i, 44 + 2*i) for i in range(4)] + [e_unp(XN + 4*i, 52 + 2*i) for i in range(4)]
    for i, f in enumerate(lst): ex[(21 + i//3, 1 + i % 3)] = f
    ex[(23, 3)] = e_yl
    gemm(28, hfrag, lambda k: [], lambda fb: '0', vG2, vG3, 512, ex, nstep=24)
    stamp()
    FT = 168
    a.wait(L['dtok'][55])
    for fb, va in ((1, vG3), (0, vG2)):
        for s_ in range(4):
            so = ((52 + s_) % NSLOT) * 2048
            for o in (0, 2): I(f'ds_read_b64_tr_b16 {V(FT+16*fb+4*s_+o,2)}, v{va} offset:{so + 256*o}')
    fill = []
    for e in range(8): fill += [f'v_lshlrev_b32 v{t+2*e}, 16, v{DS+e}', f'v_and_b32 v{t+2*e+1}, s{sHI}, v{DS+e}']
    for e in range(16): fill.append(f'v_mul_f32 v{XN+e}, v{XN+e}, v{t+e}')
    for e in range(8): fill += [f'v_lshlrev_b32 v{t+2*e}, 16, v{B2+e}', f'v_and_b32 v{t+2*e+1}, s{sHI}, v{B2+e}']
    prev = None
    for x in (3, 2, 1, 0):
        fb, tb = x & 1, x >> 1; d = V(ACC + 16*x, 16)
        for s_ in range(4):
            I(f'v_mfma_f32_32x32x16_bf16 {d}, {V(FT+16*fb+4*s_,4)}, {hfrag(24+s_, tb)}, {d}')
            if prev and s_ >= 2:
                for q in (2*(s_-2), 2*(s_-2)+1): I(f'ds_write_b128 v{rw+prev}, {V(ACC+16*prev+4*q,4)} offset:{16384*(prev-1) + 1024*q}')
            else:
                for _ in range(5 if prev else 4):
                    if fill: I(fill.pop(0))
        prev = x
    for f in fill: I(f)
    I(f'ds_write_b128 v{yw}, {V(YR,4)}'); I(f'ds_write_b128 v{yw}, {V(YR+4,4)} offset:1024')
    for q in range(4): I(f'ds_read_b64_tr_b16 {V(YR+2*q,2)}, v{yr} offset:{256*q}')
    stamp(3)
    a.barrier()
    stamp(3)
    for x in range(1, 4):
        for q in range(4): I(f'ds_read_b128 {V(ACC+16*x+4*q,4)}, v{rw} offset:{16384*(x-1) + 1024*q}')
    I(f's_mov_b32 s{sK}, {f2u(-math.log2(math.e))}')
    for e in range(8): I(f'v_pk_add_f32 {V(ACC+2*e,2)}, {V(ACC+2*e,2)}, {V(t+2*e,2)}')
    for e in range(8): unpack(t+2*e, t+2*e+1, YR+e)
    for e in range(8): I(f'v_pk_add_f32 {V(XN+2*e,2)}, {V(XN+2*e,2)}, {V(t+2*e,2)}')
    for x in range(1, 4):
        for e in range(8): I(f'v_pk_add_f32 {V(ACC+2*e,2)}, {V(ACC+2*e,2)}, {V(ACC+16*x+2*e,2)}')
    for hf in range(2):
        R8 = range(4*hf, 4*hf+4)
        for e in R8: I(f'v_pk_mul_f32 {V(t+2*e,2)}, {V(ACC+2*e,2)}, s[{sK}:{sK+1}] op_sel_hi:[1,0]')
        for e in range(8*hf, 8*hf+8): I(f'v_exp_f32 v{t+e}, v{t+e}')
        for e in R8: I(f'v_pk_add_f32 {V(t+2*e,2)}, {V(t+2*e,2)}, 1.0 op_sel_hi:[1,0]')
        for e in range(8*hf, 8*hf+8): I(f'v_rcp_f32 v{t+e}, v{t+e}')
        for e in R8: I(f'v_pk_mul_f32 {V(XN+2*e,2)}, {V(XN+2*e,2)}, {V(ACC+2*e,2)}')
        for e in R8: I(f'v_pk_fma_f32 {V(XN+2*e,2)}, {V(XN+2*e,2)}, {V(t+2*e,2)}, {V(XF32+2*e,2)}')
        for e in R8: I(f'v_cvt_pk_bf16_f32 v{YR+e}, v{XN+2*e}, v{XN+2*e+1}')
        I(f'buffer_store_dwordx4 {V(YR+4*hf,4)}, v{vX}, s[{SOUT}:{SOUT+3}], s{sXO} offen offset:{16*hf}')
    stamp()
    fin()
```

```python
import sys, struct, math
sys.path.insert(0, 'work')
from asmlib import *
NAME = 'recurrent_scan__ssm_conv_s4__mixer_channel_mlp__prompt'
def f2u(x): return '0x%08x' % struct.unpack('<I', struct.pack('<f', x))[0]
LA, LB, LRING, LEND = 0, 69888, 79104, 161024
LXS = 58368
Y2S = 912; NSLOT = 10
XNT, YT, HB, FL, STAMP = 0, 0x200000, 0x400000, 0xB00000, 0xC00000
XF, HF, YF = FL, FL + 0x20000, FL + 0x40000
SX, SW1, SW2, SWS, SOUT, SU, SDBG = 40, 44, 48, 52, 56, 60, 64
sJ, sR, sW, sNON, sRING, sT0, sT1, sT2 = 68, 69, 70, 71, 72, 73, 74, 75
sW2 = 76
sH = 83
sK = 90
sXO = 92
sLD = 93; sP = 94; sC = 95
sHI = 3; sY8 = 89
sST = 96
vL, vD1, vD2, vA0, vA1, vB0, vB1, vPAR, vL16, vT = 0, 1, 2, 3, 4, 5, 6, 7, 13, 14
HOWN = 224

import os
ALIGN = int(os.environ.get('ALIGN', '1')); LVL = int(os.environ.get('LVL', '1')); SEL = int(os.environ.get('SEL', '100'))
def gen(stop=99, stamps=False):
    a = Asm(); I = a
    nst = [0]
    def stamp(lvl=1, pre=None):
        if not stamps or lvl > LVL: return
        if pre is None: I(f's_memtime s[{sST}:{sST+1}]'); a.waitcnt(lg=0)
        else: I(f's_mov_b32 s{sST}, s{pre}')
        if stamps == 2:
            I(f'v_mov_b32 v63, s{sST}'); I(f's_lshl_b32 s{sST+2}, s2, 2'); I(f's_add_u32 s{sST+2}, s{sST+2}, s{sW}')
            I(f's_cmp_eq_u32 s{sST+2}, {4*SEL}'); I('s_cselect_b64 exec, 1, 0')
            I(f'buffer_store_dword v63, off, s[{SDBG}:{SDBG+3}], 0 offset:{4 + 4*nst[0]}'); I('s_mov_b64 exec, -1')
            nst[0] += 1; return
        I(f'v_mov_b32 v63, s{sST}'); I(f's_lshl_b32 s{sST+2}, s2, 2'); I(f's_add_u32 s{sST+2}, s{sST+2}, s{sW}')
        I(f's_lshl_b32 s{sST+2}, s{sST+2}, 7'); I(f's_add_u32 s{sST+2}, s{sST+2}, {STAMP + 4*nst[0]}')
        I('s_mov_b64 exec, 1'); I(f'buffer_store_dword v63, off, s[{SWS}:{SWS+3}], s{sST+2}'); I('s_mov_b64 exec, -1')
        nst[0] += 1
    def srd(d, b, n):
        I(f's_mov_b32 s{d}, s{b}'); I(f's_mov_b32 s{d+1}, s{b+1}'); I(f's_mov_b32 s{d+2}, {n}'); I(f's_mov_b32 s{d+3}, 0x00020000')
    def fin():
        if stamps == 1:
            I('v_mov_b32 v62, s101'); I('s_memrealtime s[96:97]'); I('v_mov_b32 v63, s96'); I(f's_lshl_b32 s98, s2, 2'); I(f's_add_u32 s98, s98, s{sW}')
            I('s_lshl_b32 s98, s98, 7'); I(f's_add_u32 s98, s98, {STAMP + 120}'); I(f'buffer_store_dwordx2 v[62:63], off, s[{SWS}:{SWS+3}], s98')
            a.label('PCL'); I('s_getpc_b64 s[96:97]'); I('s_sub_u32 s96, s96, PCL+4-%s_kernel' % NAME); I('s_subb_u32 s97, s97, 0')
            I('v_mov_b32 v62, s96'); I('v_mov_b32 v63, s97'); I('s_mov_b32 s96, 0xCF0000')
            I(f'buffer_store_dwordx2 v[62:63], off, s[{SWS}:{SWS+3}], s96')
        if stamps == 2:
            I('s_memrealtime s[96:97]'); I('s_not_b32 s38, s38'); I('v_mov_b32 v62, s38'); I('v_mov_b32 v63, s96'); I('s_mov_b64 exec, 1')
            I(f'buffer_atomic_umax v62, off, s[{SDBG}:{SDBG+3}], 0 offset:56'); I(f'buffer_atomic_umax v63, off, s[{SDBG}:{SDBG+3}], 0 offset:60')
        a.waitcnt(vm=0, lg=0); a._emit('s_endpgm')
    lab = [0]
    def poll(vf, reload, cmp):
        lab[0] += 1; n = f'P{lab[0]}'; inf = a.infill; a.infill = True
        cmp(); a.settle(); a._emit(f's_cbranch_scc0 {n}_ok'); st = a.snap()
        I(f's_mov_b32 s{sST+3}, 0x40000'); a.label(f'{n}_lp')
        reload(); a._emit('s_waitcnt vmcnt(0)'); a.vm = []
        I(f's_sub_u32 s{sST+3}, s{sST+3}, 1'); a._emit(f's_cbranch_scc1 {n}_ok')
        cmp(); a.settle(); a._emit(f's_cbranch_scc1 {n}_lp')
        a.label(f'{n}_ok'); a.restore(st); a.infill = inf
    def cmp_flag(vf):
        def f():
            I(f'v_cmp_ne_u32 vcc, s{sNON}, v{vf}'); I('s_and_b64 vcc, vcc, exec')
        return f
    def flag_store(soff):
        I(f'v_mov_b32 v62, s{sNON}'); I('s_mov_b64 exec, 1')
        I(f'buffer_store_dword v62, off, s[{SWS}:{SWS+3}], s{soff} sc1'); I('s_mov_b64 exec, -1')
    def unpack(dlo, dhi, src):
        I(f'v_lshlrev_b32 v{dlo}, 16, v{src}'); I(f'v_and_b32 v{dhi}, s{sHI}, v{src}')
    def rne2(x, y, t):
        I(f'v_cvt_pk_bf16_f32 v{t}, v{x}, v{y}'); unpack(x, y, t)

    I('s_load_dwordx16 s[4:19], s[0:1], 0'); I('s_load_dwordx16 s[20:35], s[0:1], 64'); I('s_load_dwordx2 s[36:37], s[0:1], 128')
    I('s_cmp_ge_u32 s2, 224'); a._emit('s_cbranch_scc1 END0')
    I('s_getpc_b64 s[98:99]'); a.label('PC0')
    I(f's_lshl_b32 s{sT0}, s2, 11'); I(f's_and_b32 s{sT0}, s{sT0}, 0x4000'); I(f'v_lshl_add_u32 v1, v0, 6, s{sT0}'); I('v_min_u32 v1, END-PC0, v1')
    a.pf('global_load_dword a255, v1, s[98:99]')
    if stamps: I('s_memtime s[100:101]'); I('s_memrealtime s[96:97]')
    I('v_lshrrev_b32 v1, 6, v0'); I('v_and_b32 v0, 63, v0'); I(f'v_readfirstlane_b32 s{sW}, v1')
    I(f's_and_b32 s{sT0}, s2, 1'); I(f's_mul_i32 s{sT0}, s{sT0}, 28'); I(f's_lshr_b32 s{sT1}, s2, 3'); I(f's_add_u32 s{sT0}, s{sT0}, s{sT1}')
    I(f's_lshr_b32 s{sJ}, s{sT0}, 3'); I(f's_and_b32 s{sK}, s{sT0}, 7'); I(f's_and_b32 s{sT1}, s2, 6'); I(f's_lshl_b32 s{sT1}, s{sT1}, 2')
    I(f's_add_u32 s{sR}, s{sK}, s{sT1}')
    rho, c8, xa, xb = 14, 15, 16, 17
    I(f'v_lshrrev_b32 v{rho}, 3, v0'); I(f'v_and_b32 v{c8}, 7, v0')
    I(f'v_mul_u32_u24 v{xa}, 896, v{rho}'); I(f'v_lshl_add_u32 v{xa}, v{c8}, 4, v{xa}'); I(f'v_add_u32 v{xb}, 7168, v{xa}')
    I(f's_lshl_b32 s{sT0}, s{sR}, 2'); I(f's_add_u32 s{sT0}, s{sT0}, s{sW}'); I(f's_mul_i32 s{sT0}, s{sT0}, {16*896}')
    I(f's_lshl_b32 s{sT1}, s{sJ}, 7'); I(f's_add_u32 s{sT1}, s{sT1}, s{sT0}')
    I(f's_mov_b32 s{SX+2}, {2048*896}'); I(f's_mov_b32 s{SX+3}, 0x00020000')
    I(f'v_mul_u32_u24 v{vD1}, 3584, v{rho}'); I(f'v_lshl_add_u32 v18, v{c8}, 6, v{vD1}')
    I(f's_lshl_b32 s{sT2}, s{sK}, 2'); I(f's_add_u32 s{sT2}, s{sT2}, s{sW}'); I(f's_mul_i32 s{sT2}, s{sT2}, {14*3584}')
    I(f's_lshl_b32 s{sK+1}, s{sJ}, 9'); I(f's_add_u32 s{sT2}, s{sT2}, s{sK+1}')
    I(f's_mov_b32 s{SX}, s4'); I(f's_mov_b32 s{SX+1}, s5')
    X0, X1, O0, O1 = 64, 92, 120, 124
    for i in range(7):
        I(f'buffer_load_dwordx4 {V(X0+4*i,4)}, v{xa}, s[{SX}:{SX+3}], s{sT0} offen offset:{128*i}')
        I(f'buffer_load_dwordx4 {V(X1+4*i,4)}, v{xb}, s[{SX}:{SX+3}], s{sT0} offen offset:{128*i}')
    I(f'buffer_load_dwordx4 {V(O0,4)}, v{xa}, s[{SX}:{SX+3}], s{sT1} offen')
    I(f'buffer_load_dwordx4 {V(O1,4)}, v{xb}, s[{SX}:{SX+3}], s{sT1} offen')
    I('s_memrealtime s[38:39]')
    if stamps and LVL >= 3: I('s_memtime s[94:95]'); a.waitcnt(lg=0); I('s_mov_b32 s101, s94')
    srd(SW1, 24, 448*3584)
    p1 = 40
    I(f'v_add_u32 v{p1}, s{sT2}, v18')
    I(f's_cmp_ge_u32 s{sK}, 4'); I(f's_cselect_b32 s{sT0}, {(-224*3584) & 0xffffffff}, 0'); I(f's_cselect_b32 s{sT1}, 0, {224*3584}')
    I(f's_add_u32 s{sT0}, s{sT0}, s{sT1}'); I(f'v_add_u32 v{p1+1}, s{sT0}, v{p1}'); I(f's_mov_b32 s{sY8}, {8*3584}')
    def w1pf():
        a.pf(f'buffer_load_dword a255, v{p1}, s[{SW1}:{SW1+3}], 0 offen'); a.pf(f'buffer_load_dword a255, v{p1}, s[{SW1}:{SW1+3}], s{sY8} offen')
        I(f's_cmp_lg_u32 s{sJ}, 3'); a._emit('s_cbranch_scc1 NOPF1')
        a._emit(f'buffer_load_dword a255, v{p1+1}, s[{SW1}:{SW1+3}], 0 offen'); a._emit(f'buffer_load_dword a255, v{p1+1}, s[{SW1}:{SW1+3}], s{sY8} offen')
        a.label('NOPF1')
    W1PF = os.environ.get('W1PF', 'x')
    if W1PF == 'x': w1pf()
    I(f's_mov_b32 s{sHI}, 0xffff0000')
    if stamps: I('s_mov_b32 s97, s96')
    I(f's_and_b32 s{sP}, s{sW}, 1'); I(f's_lshr_b32 s{sC}, s{sW}, 1'); I(f'v_lshlrev_b32 v{vL16}, 4, v0')
    srd(SWS, 36, 0x1000000); srd(SDBG, 34, 256)
    I(f's_or_b32 s{sNON}, s2, s{sW}'); I(f's_cmp_lg_u32 s{sNON}, 0'); a.settle(); a._emit('s_cbranch_scc1 NONCE')
    st = a.snap(); I('s_or_b32 s38, s38, 1'); I('v_mov_b32 v62, s38'); I('s_mov_b64 exec, 1')
    I(f'buffer_store_dword v62, off, s[{SDBG}:{SDBG+3}], 0 sc1'); I('s_mov_b64 exec, -1'); a.settle()
    a.label('NONCE'); a.restore(st)
    I(f'v_lshrrev_b32 v18, 2, v0'); I(f'v_and_b32 v18, 4, v18'); I(f'v_xor_b32 v18, v18, v{c8}'); I('v_lshlrev_b32 v18, 4, v18')
    I(f'v_mul_u32_u24 v{vD2}, 896, v{rho}'); I(f'v_add_u32 v{vD2}, v{vD2}, v18')
    I(f's_lshl_b32 s{sT2}, s{sJ}, 2'); I(f's_add_u32 s{sT2}, s{sT2}, s{sW}'); I(f's_lshl_b32 s{sT2}, s{sT2}, 7')
    I(f'v_add3_u32 v{vD1}, s{sT2}, v{vD1}, v18')
    I(f's_mul_i32 s{sRING}, s{sW}, {NSLOT*2048}'); I(f's_add_u32 s{sRING}, s{sRING}, {LRING}')
    dtok = {}
    def dma1(step, hh):
        slot = step % NSLOT
        I(f's_add_u32 m0, s{sRING}, {slot*2048 + hh*1024}')
        if step < 28 or os.environ.get('W2ASW1'):
            I(f's_mov_b32 s{sT0}, {(16*(step%28) + 8*hh)*3584}')
            dtok[step] = I(f'buffer_load_dwordx4 v{vD1}, s[{SW1}:{SW1+3}], s{sT0} offen lds')
        else:
            n, sg = divmod(step - 28, 4)
            I(f's_add_u32 s{sT0}, s{sW2+n}, {(32*(sg>>1) + 8*(sg&1) + 16*hh)*896}')
            dtok[step] = I(f'buffer_load_dwordx4 v{vD2}, s[{SW2}:{SW2+3}], s{sT0} offen lds')
    hb = 18
    I(f'v_lshrrev_b32 v{hb}, 5, v0'); I(f'v_lshlrev_b32 v42, 5, v{hb}'); I(f'v_add_u32 v42, s{sT2}, v42')
    B1R = 128
    I(f's_lshl_b32 s{sT0}, s2, 10'); I(f's_lshl_b32 s{sT1}, s{sW}, 8'); I(f's_add_u32 s{sT0}, s{sT0}, s{sT1}')
    I(f'v_lshlrev_b32 v43, 2, v0'); I(f'v_add_u32 v43, s{sT0}, v43')
    I(f's_lshl_b32 s{sT0}, s2, 2'); I(f's_load_dword s{sLD}, s[18:19], s{sT0}')
    srd(SW2, 28, 1792*896)
    late = []; sA, sB, sD = 38, 39, sXO
    late += [f's_mov_b32 s{SOUT}, s32', f's_mov_b32 s{SOUT+1}, s33', f's_mov_b32 s{SOUT+2}, {2048*896}', f's_mov_b32 s{SOUT+3}, 0x00020000']
    late += [f's_mul_i32 s{sA}, s{sW}, {64*896}', f's_lshl_b32 s{sB}, s{sJ}, 7', f's_add_u32 s{sA}, s{sA}, s{sB}', f'v_add_u32 v{vD2}, s{sA}, v{vD2}']
    late += [f's_mul_i32 s{sB}, s{sR}, 28', f's_add_u32 s{sB}, s{sB}, s{sW}', f's_lshl_b32 s{sB}, s{sB}, 13', f's_add_u32 s{sB}, s{sB}, {HB}']
    late = [late[i:i+4] for i in range(0, len(late), 4)]
    for n in range(7):
        late += [[f's_add_u32 s{sA}, s{sJ}, {n}', f's_cmp_ge_u32 s{sA}, 7', f's_cselect_b32 s{sD}, 7, 0', f's_sub_u32 s{sA}, s{sA}, s{sD}'],
                 [f's_mul_i32 s{sW2+n}, s{sA}, {256*896}', f's_lshl_b32 s{sA}, s{sA}, 15', f's_add_u32 s{sH+n}, s{sA}, s{sB}']]
    g, r4, c4 = 19, 20, 21
    I(f'v_bfe_u32 v{g}, v0, 4, 1'); I(f'v_bfe_u32 v{r4}, v0, 2, 2'); I(f'v_and_b32 v{c4}, 3, v0')
    I(f'v_lshlrev_b32 v22, 5, v{g}'); I(f'v_lshl_add_u32 v22, v{c4}, 3, v22')
    I(f'v_and_b32 v23, 1, v0'); I('v_lshlrev_b32 v23, 5, v23'); I(f'v_lshl_or_b32 v23, v{g}, 4, v23'); I('v_bfe_u32 v27, v0, 1, 1'); I('v_lshl_or_b32 v23, v27, 3, v23')
    I(f'v_bfe_u32 v27, v0, 3, 1'); I('v_lshl_or_b32 v23, v27, 6, v23')
    I(f'v_lshl_add_u32 v23, v{r4}, 7, v23'); I(f'v_add_u32 v23, s{sRING}, v23')
    I(f'v_lshl_add_u32 v{vA0}, v{hb}, 10, v23'); I(f'v_xor_b32 v{vA1}, 64, v{vA0}')
    vG2, vTR = 60, 61
    I(f's_lshl_b32 s{sT0}, s{sP}, 6'); I(f'v_xor_b32 v{vG2}, s{sT0}, v{vA0}')
    I(f'v_mov_b32 v{vTR}, v22')
    I(f'v_and_b32 v23, 31, v0'); I(f'v_mul_u32_u24 v23, {Y2S}, v23'); I(f'v_lshl_add_u32 v23, v{hb}, 4, v23')
    I(f's_mul_i32 s{sT0}, s{sC}, {32*Y2S}'); I(f'v_add_u32 v{vB0}, s{sT0}, v23'); I(f's_sub_u32 s{sT0}, {32*Y2S}, s{sT0}'); I(f'v_add_u32 v{vB1}, s{sT0}, v23')
    wy, wx, wst = 24, 25, 26
    I(f's_lshl_b32 s{sT0}, s{sW}, 4'); I(f'v_add_u32 v27, s{sT0}, v{rho}')
    I(f'v_mul_u32_u24 v{wy}, {Y2S}, v27'); I(f'v_lshl_add_u32 v{wy}, v{c8}, 4, v{wy}')
    I(f'v_mul_u32_u24 v{wx}, 144, v27'); I(f'v_lshl_add_u32 v{wx}, v{c8}, 4, v{wx}'); I(f'v_add_u32 v{wx}, {LXS}, v{wx}')
    I(f'v_and_b32 v{wst}, 31, v0'); I(f'v_mul_u32_u24 v{wst}, 144, v{wst}'); I(f'v_lshl_add_u32 v{wst}, v{hb}, 5, v{wst}')
    I(f's_mul_i32 s{sT0}, s{sC}, {32*144}'); I(f's_lshl_b32 s{sT1}, s{sP}, 6'); I(f's_add_u32 s{sT0}, s{sT0}, s{sT1}'); I(f's_add_u32 s{sT0}, s{sT0}, {LXS}')
    I(f'v_add_u32 v{wst}, s{sT0}, v{wst}')
    xr, xs, p2 = 56, 57, 58
    I(f'v_lshrrev_b32 v27, 4, v0'); I(f'v_lshl_add_u32 v{xr}, v27, 3, v{r4}'); I(f'v_mul_u32_u24 v{xr}, 144, v{xr}')
    I(f'v_lshl_add_u32 v{xr}, v{c4}, 3, v{xr}'); I(f's_lshl_b32 s{sT0}, s{sW}, 5'); I(f's_add_u32 s{sT0}, s{sT0}, {LB}'); I(f'v_add_u32 v{xr}, s{sT0}, v{xr}')
    I(f'v_and_b32 v{xs}, 15, v0'); I(f'v_lshlrev_b32 v{xs}, 12, v{xs}'); I(f'v_lshl_add_u32 v{xs}, v27, 4, v{xs}')
    I(f'v_lshrrev_b32 v{p2}, 1, v0'); I(f'v_mul_u32_u24 v{p2}, 896, v{p2}'); I(f'v_and_b32 v27, 1, v0'); I(f'v_lshl_add_u32 v{p2}, v27, 6, v{p2}')
    I(f's_lshl_b32 s{sT0}, s{sK}, 2'); I(f's_add_u32 s{sT0}, s{sT0}, s{sW}'); I(f's_mul_i32 s{sT0}, s{sT0}, {56*896}')
    I(f's_lshl_b32 s{sK+1}, s{sJ}, 7'); I(f's_add_u32 s{sT0}, s{sT0}, s{sK+1}'); I(f'v_add_u32 v{p2}, s{sT0}, v{p2}')
    I(f's_cmp_ge_u32 s{sK}, 4'); I(f's_cselect_b32 s{sK}, {(-896*896) & 0xffffffff}, 0'); I(f's_cselect_b32 s{sK+1}, 0, {896*896}'); I(f's_add_u32 s{sK}, s{sK}, s{sK+1}')
    I(f'v_add_u32 v{p2+1}, s{sK}, v{p2}')
    I(f's_lshl_b32 s{sT1}, s{sJ}, 2'); I(f's_add_u32 s{sT1}, s{sT1}, s{sW}'); I(f's_lshl_b32 s{sT2}, s{sT1}, 5'); I(f's_add_u32 s{sT2}, s{sT2}, s{sR}')
    I(f's_lshl_b32 s{sT2}, s{sT2}, 7'); I(f's_add_u32 s{sT2}, s{sT2}, {XF}')
    I(f's_lshl_b32 s{sT1}, s{sT1}, 16'); I(f's_lshl_b32 s{sXO}, s{sR}, 7'); I(f's_add_u32 s{sT1}, s{sT1}, s{sXO}')
    I(f's_mov_b32 s{sK}, {32*896}')
    if stamps: I('s_mov_b32 s99, s97')
    stamp(1, 100); stamp(3, 101);
    if stamps: I('s_mov_b32 s101, s99')
    stamp()
    s0, s1, q0, q1 = 28, 29, 30, 31
    for r in (s0, s1, q0, q1): I(f'v_mov_b32 v{r}, 0')
    I(f's_mov_b32 s{sK+1}, 0x3f803f80')
    fl = [(lambda k=k, hh=hh: dma1(k, hh)) for k in range(NSLOT) for hh in range(2)]
    NST = int(os.environ.get('NST', '0'))
    for i in range(7):
        for X, s_, q_ in ((X0, s0, q0), (X1, s1, q1)):
            for e in range(4):
                I(f'v_dot2c_f32_bf16 v{s_}, s{sK+1}, v{X+4*i+e}'); I(f'v_dot2c_f32_bf16 v{q_}, v{X+4*i+e}, v{X+4*i+e}')
            if len(fl) > 20 - NST: fl.pop(0)()
        if W1PF == f's{i}': w1pf()
    I(f'ds_write_b128 v{wx}, {V(O0,4)}'); I(f'ds_write_b128 v{wx}, {V(O1,4)} offset:{8*144}')
    stamp(2)
    def w2pf():
        a.pf(f'buffer_load_dword a255, v{p2}, s[{SW2}:{SW2+3}], 0 offen'); a.pf(f'buffer_load_dword a255, v{p2}, s[{SW2}:{SW2+3}], s{sK} offen')
        I(f's_cmp_lg_u32 s{sJ}, 3'); a._emit('s_cbranch_scc1 NOPF2')
        a._emit(f'buffer_load_dword a255, v{p2+1}, s[{SW2}:{SW2+3}], 0 offen'); a._emit(f'buffer_load_dword a255, v{p2+1}, s[{SW2}:{SW2+3}], s{sK} offen')
        a.label('NOPF2')
    W2PF = os.environ.get('W2PF', 'ln')
    if W1PF == 'ln': w1pf()
    if W2PF == 'ln': w2pf()
    b1l = [(lambda fb=fb, q=q: I(f'global_load_dwordx4 {V(B1R+8*fb+4*q,4)}, v42, s[26:27] offset:{64*fb+16*q}')) for fb in range(2) for q in range(2)]
    prl = [(lambda i=i: I(f'global_load_dword v{vPAR+i}, v43, s[{6+2*i}:{7+2*i}]')) for i in range(6)]
    fl = b1l + fl + prl
    a.sprinkle(fl, int(os.environ.get('LNEV', '16')), 1)
    for m in ('quad_perm:[1,0,3,2]', 'quad_perm:[2,3,0,1]', 'row_half_mirror'):
        for r in (s0, s1, q0, q1): I(f'v_add_f32_dpp v{r}, v{r}, v{r} {m} row_mask:0xf bank_mask:0xf')
    MR0, MR1, AB0, AB1 = 32, 34, 36, 38
    t = 44
    for r in (s0, s1, q0, q1): I(f'v_mul_f32 v{r}, {f2u(1/448)}, v{r}')
    for s_, q_ in ((s0, q0), (s1, q1)): I(f'v_fma_f32 v{q_}, -v{s_}, v{s_}, v{q_}')
    for q_ in (q0, q1): I(f'v_max_f32 v{q_}, 0, v{q_}')
    def rstd(va, vb, oa, ob):
        I(f'v_cvt_pk_bf16_f32 v{t}, v{va}, v{vb}'); unpack(oa, ob, t)
        for o in (oa, ob): I(f'v_add_f32 v{o}, {f2u(1e-5)}, v{o}')
        rne2(oa, ob, t)
        for o in (oa, ob): I(f'v_sqrt_f32 v{o}, v{o}')
        rne2(oa, ob, t)
        for o in (oa, ob): I(f'v_rcp_f32 v{o}, v{o}')
    I(f'v_cvt_pk_bf16_f32 v{t}, v{s0}, v{s1}'); unpack(MR0, MR1, t)
    rstd(q0, q1, MR0+1, MR1+1)
    for s_, q_, M in ((s0, q0, MR0), (s1, q1, MR1)):
        I(f'v_sub_f32 v{s_}, v{s_}, v{M}'); I(f'v_mul_f32 v{q_}, v{q_}, v{M+1}')
    for s_, q_, M in ((s0, q0, MR0), (s1, q1, MR1)):
        I(f'v_mul_f32 v{s_}, v{s_}, v{M+1}'); I(f'v_mul_f32 v{q_}, v{q_}, v{M+1}')
    rne2(s0, s1, t)
    rstd(q0, q1, AB0+1, AB1+1)
    for s_, M, AB in ((s0, MR0, AB0), (s1, MR1, AB1)):
        I(f'v_mul_f32 v{AB}, v{M+1}, v{AB+1}'); I(f'v_mul_f32 v{s_}, v{s_}, v{AB+1}')
    for s_, M, AB in ((s0, MR0, AB0), (s1, MR1, AB1)):
        I(f'v_fma_f32 v{AB+1}, -v{M}, v{AB}, -v{s_}')
    for i in range(7):
        for X, AB, off in ((X0, AB0, 0), (X1, AB1, 8*Y2S)):
            for e in range(4): unpack(t+2*e, t+2*e+1, X+4*i+e)
            for e in range(4): I(f'v_pk_fma_f32 {V(t+2*e,2)}, {V(t+2*e,2)}, {V(AB,2)}, {V(AB,2)} op_sel:[0,0,1] op_sel_hi:[1,0,1]')
            for e in range(4): I(f'v_cvt_pk_bf16_f32 v{X+4*i+e}, v{t+2*e}, v{t+2*e+1}')
            I(f'ds_write_b128 v{wy}, {V(X+4*i,4)} offset:{off+128*i}')
    def xnorm(src, n, M, t):
        for e in range(n): unpack(t+2*e, t+2*e+1, src+e)
        for e in range(n): I(f'v_pk_add_f32 {V(t+2*e,2)}, {V(t+2*e,2)}, {V(M,2)} op_sel_hi:[1,0] neg_lo:[0,1] neg_hi:[0,1]')
        for e in range(n): I(f'v_cvt_pk_bf16_f32 v{src+e}, v{t+2*e}, v{t+2*e+1}')
        for e in range(n): unpack(t+2*e, t+2*e+1, src+e)
        for e in range(n): I(f'v_pk_mul_f32 {V(t+2*e,2)}, {V(t+2*e,2)}, {V(M,2)} op_sel:[0,1] op_sel_hi:[1,1]')
    for O, M, off in ((O0, MR0, 0), (O1, MR1, 8*144)):
        xnorm(O, 4, M, t)
        for e in range(4): I(f'v_cvt_pk_bf16_f32 v{O+e}, v{t+2*e}, v{t+2*e+1}')
        I(f'ds_write_b128 v{wx}, {V(O,4)} offset:{LB-LXS+off}')
    stamp(3)
    a.flush()
    if W2PF == 'end': w2pf()
    CB = 144
    for fb in range(2):
        for e in range(8): unpack(CB+16*fb+2*e, CB+16*fb+2*e+1, B1R+8*fb+e)
    a.barrier()
    stamp()
    ACC = 64; FA = [176, 184]; FBr = [192, 200]
    def a_reads(step, buf, va0, va1, second):
        so = (step % NSLOT) * 2048
        return [f'ds_read_b64_tr_b16 {V(FA[buf]+o,2)}, v{va} offset:{so+x}' for va, o0 in ((va0, 0), (va1, 4)) for o, x in ((o0, 0), (o0+2, second))]
    def gemm(base, bfrag, breads, cinit, va0, va1, second, extra, nstep=28):
        def reads(k):
            r = a_reads(base+k, k & 1, va0, va1, second); b = breads(k)
            return r[:2] + b[:1] + r[2:] + b[1:]
        a.wait(dtok[base])
        for x in reads(0): I(x)
        for k in range(nstep):
            nx = reads(k+1) if k < nstep - 1 else []
            for mi, (fb, tb) in enumerate(((0, 0), (1, 0), (0, 1), (1, 1))):
                d = V(ACC + 32*tb + 16*fb, 16)
                I(f'v_mfma_f32_32x32x16_bf16 {d}, {V(FA[k&1]+4*fb,4)}, {bfrag(k, tb)}, {cinit(fb) if k == 0 else d}')
                if mi == 0 and nx:
                    a.wait(dtok[base+k+1])
                    for x in nx[:len(nx)//2]: I(x)
                if mi == 1:
                    for x in nx[len(nx)//2:]: I(x)
                if mi >= 2 and base + k + NSLOT < 56: dma1(base + k + NSLOT, mi - 2)
                if (k, mi) in extra: extra[(k, mi)]()
            if k in (3, 9, 17): stamp(3)
    XT = 208; vNON = 216; tk = {}
    def e_xn0():
        for i, o in enumerate((0, 576, 4608, 5184)): I(f'ds_read_b64_tr_b16 {V(XT+2*i,2)}, v{xr} offset:{o}')
        I(f'buffer_load_dword v{vNON}, off, s[{SDBG}:{SDBG+3}], 0 sc1')
    def e_xn1():
        I(f'buffer_store_dwordx4 {V(XT,4)}, v{xs}, s[{SWS}:{SWS+3}], s{sT1} offen sc1')
        tk['xn'] = I(f'buffer_store_dwordx4 {V(XT+4,4)}, v{xs}, s[{SWS}:{SWS+3}], s{sT1} offen offset:64 sc1')
    def e_xn2():
        def cm(): I(f'v_readfirstlane_b32 s{sNON}, v{vNON}'); I(f's_cmp_eq_u32 s{sNON}, 0')
        poll(vNON, lambda: I(f'buffer_load_dword v{vNON}, off, s[{SDBG}:{SDBG+3}], 0 sc1'), cm)
        a.wait(tk['xn']); flag_store(sT2)
    def e_xe():
        for i, o in enumerate((0, 16, LB-LXS, LB-LXS+16)): I(f'ds_read_b128 {A(192+4*i,4)}, v{wst} offset:{o}')
    e_p2 = lambda v, so: (lambda: a.pf(f'buffer_load_dword a255, v{v}, s[{SW2}:{SW2+3}], {so} offen'))
    gemm(0, lambda k, tb: V(FBr[k&1]+4*tb, 4),
         lambda k: [f'ds_read_b128 {V(FBr[k&1]+4*tb,4)}, v{vb} offset:{32*k}' for tb, vb in ((0, vB0), (1, vB1))],
         lambda fb: V(CB+16*fb, 16), vA0, vA1, 512, {(0, 1): e_xn0, (1, 1): e_xn1, (12, 1): e_xn2, (2, 1): e_xe, (18, 0): (w2pf if W2PF == 's18' else (lambda: None)), **{(3 + i//2 + (i >= 18), i & 1): (lambda l=l: [I(x) for x in l]) for i, l in enumerate(late)}})
    stamp()
    k0 = -2*math.sqrt(2/math.pi)*math.log2(math.e)
    I(f's_mov_b32 s{sK}, {f2u(k0*0.044715)}'); I(f's_mov_b32 s{sK+1}, {f2u(k0)}')
    I(f'v_add_u32 v24, 4096, v{vL16}')
    t = 128
    for tb in range(2):
        for sg in range(4):
            x = ACC + 32*tb + 8*sg; P = lambda e: V(t+2*e, 2); Xp = lambda e: V(x+2*e, 2)
            for e in range(4): I(f'v_pk_mul_f32 {P(e)}, {Xp(e)}, {Xp(e)}')
            for e in range(4): I(f'v_pk_fma_f32 {P(e)}, {P(e)}, s[{sK}:{sK+1}], s[{sK}:{sK+1}] op_sel:[0,0,1] op_sel_hi:[1,0,1]')
            for e in range(4): I(f'v_pk_mul_f32 {P(e)}, {P(e)}, {Xp(e)}')
            for e in range(8): I(f'v_exp_f32 v{t+e}, v{t+e}')
            for e in range(4): I(f'v_pk_add_f32 {P(e)}, {P(e)}, 1.0 op_sel_hi:[1,0]')
            for e in range(8): I(f'v_rcp_f32 v{t+e}, v{t+e}')
            for e in range(4): I(f'v_pk_mul_f32 {P(e)}, {P(e)}, {Xp(e)}')
            f = 4*tb + sg
            for e in range(4): I(f'v_cvt_pk_bf16_f32 v{HOWN+4*f+e}, v{t+2*e}, v{t+2*e+1}')
            tk['h'] = I(f'buffer_store_dwordx4 {V(HOWN+4*f,4)}, v{vL16 if tb == 0 else 24}, s[{SWS}:{SWS+3}], s{sH} offen offset:{1024*sg} sc1')
    stamp()
    if stop == 1:
        fin(); return a
    from gen2 import rest
    rest(locals())
    return a

def build(stop=99, stamps=False):
    a = gen(stop, stamps)
    ref = open(f'cdna_kernels/{NAME}.s.ref').read()
    head = ref[:ref.index('; @launch')]
    txt = head + f'; @launch grid=(224,1,1) block=(256,1,1) lds={LEND}\n'
    txt += f'.amdgcn_target "amdgcn-amd-amdhsa--gfx950"\n.text\n.globl {NAME}_kernel\n.p2align 8\n.type {NAME}_kernel,@function\n{NAME}_kernel:\n'
    pre = txt
    sz = sizes(pre + a.text() + 'END:\n    s_endpgm\nEND0:\n    s_waitcnt lgkmcnt(0)\n    s_endpgm\n')
    if ALIGN:
        a.out, tot, np_, nn = align(a.out, sz); print('align: residual', tot, 'promoted', np_, 'nops', nn, 'bytes', sum(sz))
    txt += a.text() + 'END:\n    s_endpgm\nEND0:\n    s_waitcnt lgkmcnt(0)\n    s_endpgm\n'
    txt += f'''.section .rodata,"a"
.p2align 6
.amdhsa_kernel {NAME}_kernel
  .amdhsa_next_free_vgpr 512
  .amdhsa_next_free_sgpr 102
  .amdhsa_accum_offset 256
  .amdhsa_group_segment_fixed_size 0
  .amdhsa_kernarg_size 136
  .amdhsa_user_sgpr_count 2
  .amdhsa_user_sgpr_kernarg_segment_ptr 1
  .amdhsa_system_sgpr_workgroup_id_x 1
.end_amdhsa_kernel
'''
    return txt, a
if __name__ == '__main__':
    stop = int(sys.argv[2]) if len(sys.argv) > 2 else 99
    stamps = int(sys.argv[3]) if len(sys.argv) > 3 else 0
    txt, a = build(stop, stamps)
    open(sys.argv[1], 'w').write(txt)
    print('instrs', a.n, 'nops', a.nops)
```

```python
import re, copy
TRANS = ('v_exp_f32','v_log_f32','v_rcp_f32','v_rsq_f32','v_sqrt_f32','v_sin_f32','v_cos_f32')
NODST_S = ('s_cmp','s_waitcnt','s_barrier','s_nop','s_cbranch','s_branch','s_endpgm','s_setprio','s_sleep','s_bitcmp')
RE_REG = re.compile(r'^[-|]*([vas])(?:(\d+)|\[(\d+):(\d+)\])\|?$')
def regs(op):
    op = op.strip()
    m = RE_REG.match(op)
    if m:
        k = m.group(1)
        if m.group(2) is not None: return {(k, int(m.group(2)))}
        return {(k, i) for i in range(int(m.group(3)), int(m.group(4)) + 1)}
    if op in ('vcc', 'vcc_lo', 'vcc_hi'): return {('s', 'vcc')}
    if op in ('exec', 'exec_lo', 'exec_hi'): return {('s', 'exec')}
    if op == 'm0': return {('s', 'm0')}
    return set()
class Ins:
    def __init__(s, text):
        s.text = text
        t = text.split(';')[0].strip()
        p = t.split(None, 1)
        s.mn = mn = p[0]
        rest = p[1] if len(p) > 1 else ''
        parts = [x.strip() for x in re.split(r',(?![^\[]*\])', rest)] if rest else []
        mods = ''
        if parts:
            last = parts[-1].split(None, 1)
            parts[-1] = last[0]
            mods = last[1] if len(last) > 1 else ''
        s.ops, s.mods = parts, mods
        R = [regs(x) for x in parts]
        U = lambda l: set().union(*l) if l else set()
        s.cls = 'other'; s.d = set(); s.u = set(); s.c = set(); s.dpp = False; s.passes = 0; s.q = None; s.wide = False
        if mn.startswith('v_mfma'):
            s.cls = 'mfma'; s.d = R[0]; s.u = U(R[1:3]); s.c = R[3]; s.passes = 8 if '32x32' in mn else 4
        elif mn.startswith('v_'):
            s.cls = 'valu'
            base = re.sub(r'_(e32|e64|dpp|sdwa)$', '', mn)
            if base in TRANS: s.cls = 'trans'
            if base.startswith('v_dot'): s.cls = 'dot'
            s.d = R[0]; s.u = U(R[1:])
            if base.startswith(('v_swap', 'v_permlane')): s.d = s.u = U(R); s.cls = 'perm' if 'perml' in base else 'valu'
            if base.startswith(('v_fmac', 'v_dot2c', 'v_mac', 'v_pk_fmac')): s.u = s.u | s.d
            if base.startswith('v_cndmask') and len(parts) == 3: s.u |= {('s', 'vcc')}
            if base.startswith(('v_readfirstlane', 'v_readlane')): s.cls = 'rdlane'
            if re.search(r'quad_perm|row_|wave_', mods): s.dpp = True; s.u = s.u | s.d
        elif mn.startswith('ds_'):
            s.cls = 'ds'; s.q = 'lgkm'
            if mn.startswith(('ds_read', 'ds_bperm', 'ds_swizzle')): s.d = R[0]; s.u = U(R[1:])
            else: s.u = U(R)
        elif mn.startswith(('buffer_', 'global_')):
            s.cls = 'vmem'; s.q = 'vm'
            if 'load' in mn and not re.search(r'\blds\b', mods) and 'load_lds' not in mn:
                s.d = R[0]; s.u = U(R[1:])
                if 'd16' in mn: s.u = s.u | s.d
            else:
                s.u = U(R)
                if 'load' in mn: s.u |= {('s', 'm0')}; s.cls = 'dma'
                elif mn.endswith(('x4', 'x3')): s.wide = True; s.c = R[0] if mn.startswith('buffer') else R[1]
        elif mn.startswith(('s_load', 's_memtime', 's_memrealtime')):
            s.cls = 'smem'; s.q = 'lgkm'; s.d = R[0]; s.u = U(R[1:])
        elif mn.startswith('s_'):
            s.cls = 'salu'
            if mn.startswith(NODST_S): s.u = U(R)
            else:
                s.d = R[0]; s.u = U(R[1:])
                if 'saveexec' in mn: s.d = s.d | {('s', 'exec')}
class Asm:
    def __init__(s):
        s.out = []; s.t = 0; s.vm = []; s.lg = []; s.w = {}; s.cread = {}; s.stw = {}; s.n = 0; s.nops = 0; s.uid = 0; s.st = []; s.infill = False; s.masked = False
    def raw(s, txt): s.out.append(txt)
    def label(s, name): s.out.append(name + ':')
    def _emit(s, txt, states=1): s.out.append('    ' + txt); s.t += states; s.n += 1
    def nop(s, k):
        while k > 0:
            n = min(k, 16); s._emit(f's_nop {n-1}', n); k -= n; s.nops += 1
    def waitcnt(s, vm=None, lg=None):
        a = []
        if vm is not None and vm < len(s.vm):
            assert vm <= 63; a.append(f'vmcnt({vm})'); s.vm = s.vm[len(s.vm) - vm:] if vm else []
        if lg is not None and lg < len(s.lg):
            if any(e[2] for e in s.lg): lg = 0
            lg = min(lg, 15); a.append(f'lgkmcnt({lg})'); s.lg = s.lg[len(s.lg) - lg:] if lg else []
        if a: s._emit('s_waitcnt ' + ' '.join(a))
    def wait(s, *toks):
        vm = lg = None
        for tok in toks:
            if tok is None: continue
            for i, e in enumerate(s.vm):
                if e[0] == tok: k = len(s.vm) - i - 1; vm = k if vm is None else min(vm, k)
            for i, e in enumerate(s.lg):
                if e[0] == tok: k = len(s.lg) - i - 1; lg = k if lg is None else min(lg, k)
        s.waitcnt(vm, lg)
    def need(s, i):
        n = 0
        def dist(r, pred, k):
            nonlocal n
            e = s.w.get(r)
            if e and pred(e): n = max(n, k - (s.t - e[1]))
        isv = i.cls in ('valu', 'trans', 'dot', 'perm', 'rdlane')
        VAL = ('valu', 'trans', 'perm', 'dot', 'rdlane')
        for r in i.u | i.c | i.d:
            e = s.w.get(r)
            if not e: continue
            c, t0, p, full = e
            k = 0
            rd = r in i.u or r in i.c
            if c == 'mfma':
                big = 12 if p == 8 else 8
                if i.cls == 'mfma':
                    if r in i.u: k = big
                    elif r in i.c or r in i.d: k = 0 if (i.c == full and i.passes == p) else (big - 2 if r in i.c else big)
                    if r in i.d and r not in i.c: k = max(k, big)
                else: k = big
            elif c in VAL and r[0] in 'va':
                if rd:
                    if i.cls == 'mfma': k = 3 if c == 'dot' else 2
                    elif i.cls == 'perm' or i.dpp: k = 2
                    elif i.cls == 'rdlane': k = 1
                    if c == 'trans' and isv and i.cls != 'trans': k = max(k, 1)
                    if c == 'trans' and not isv: k = max(k, 1)
                if c == 'dot' and not (i.cls == 'dot' and r in i.d and r not in (regs(i.ops[1]) | regs(i.ops[2]))): k = max(k, 3)
            elif c in VAL and r[0] == 's' and rd:
                if i.cls in ('vmem', 'dma'): k = 5
                elif i.cls == 'rdlane': k = 4
                elif isv or i.cls == 'mfma': k = 5 if (r[1] == 'exec') else 2
                elif i.cls in ('salu', 'smem'): k = 1
            elif c == 'salu' and r == ('s', 'm0') and i.cls == 'dma': k = 1
            n = max(n, k - (s.t - t0))
        if isv:
            for r in i.d:
                e = s.cread.get(r)
                if e: n = max(n, (7 if e[1] == 8 else 3) - (s.t - e[0]))
        for r in i.d:
            e = s.stw.get(r)
            if e is not None: n = max(n, 2 - (s.t - e))
        return n
    def __call__(s, text):
        i = Ins(text)
        touch = i.u | i.d | i.c
        vm = lg = None
        for k, e in enumerate(s.vm):
            if e[1] & touch: vm = len(s.vm) - k - 1
        for k, e in enumerate(s.lg):
            if e[1] & touch: lg = len(s.lg) - k - 1
        s.waitcnt(vm, lg)
        if i.q == 'vm' and len(s.vm) >= 63: s.waitcnt(vm=62)
        s.nop(s.need(i))
        s._emit(text)
        for r in i.d: s.w[r] = (i.cls, s.t, i.passes, i.d)
        if i.cls == 'mfma':
            for r in i.c: s.cread[r] = (s.t, i.passes)
        if i.wide:
            for r in i.c: s.stw[r] = s.t
        s.uid += 1
        if i.q == 'vm': s.vm.append((s.uid, i.d, False))
        if i.q == 'lgkm': s.lg.append((s.uid, i.d, i.cls == 'smem'))
        uid = s.uid
        if i.mn == 's_mov_b64' and i.ops[0] == 'exec': s.masked = i.ops[1] != '-1'
        if s.st and not s.infill and not s.masked:
            fired = False
            for st in s.st:
                st[2] += 1
                if st[0] and st[2] >= st[1] and not fired:
                    st[2] = 0; s.infill = True; st[0].pop(0)(); s.infill = False; fired = True
            s.st = [st for st in s.st if st[0]]
        return uid
    def sprinkle(s, fns, every, first=0):
        st = [list(fns), every, every - first if first else 0]; s.st.append(st); return st
    def flush(s, only=None):
        inf = s.infill; s.infill = True
        for st in s.st:
            if only is None or st is only:
                while st[0]: st[0].pop(0)()
        s.st = [st for st in s.st if st[0]]
        s.infill = inf
    def pf(s, text):
        i = Ins(text); i.d = set()
        if len(s.vm) >= 63: s.waitcnt(vm=62)
        s.nop(s.need(i)); s._emit(text); s.uid += 1; s.vm.append((s.uid, set(), False))
    def settle(s):
        n = 0
        for r, (c, t0, p, f) in s.w.items():
            k = {'mfma': 12 if p == 8 else 8, 'salu': 1 if r == ('s', 'm0') else 0}.get(c, 0)
            if c in ('valu', 'trans', 'perm', 'dot', 'rdlane'): k = 5 if r[0] == 's' else 3
            n = max(n, k - (s.t - t0))
        for r, (t0, p) in s.cread.items(): n = max(n, (7 if p == 8 else 3) - (s.t - t0))
        for r, t0 in s.stw.items(): n = max(n, 2 - (s.t - t0))
        s.nop(n)
    def snap(s): return copy.deepcopy((s.t, s.vm, s.lg, s.w, s.cread, s.stw))
    def restore(s, st): s.t, s.vm, s.lg, s.w, s.cread, s.stw = copy.deepcopy(st)
    def ifelse(s, name, fa, fb):
        inf = s.infill; s.infill = True
        s.settle(); s._emit(f's_cbranch_scc1 {name}_b'); st = s.snap(); u0 = s.uid
        fa(); s.settle(); s._emit(f's_branch {name}_j'); a = s.snap()
        s.label(f'{name}_b'); s.restore(st); s.uid = u0; fb(); s.settle(); s.label(f'{name}_j')
        assert len(a[1]) == len(s.vm) and len(a[2]) == len(s.lg), (name, len(a[1]), len(s.vm), len(a[2]), len(s.lg))
        s.infill = inf
        s.vm = [(x[0], x[1] | y[1], x[2]) for x, y in zip(a[1], s.vm)]
        s.lg = [(x[0], x[1] | y[1], x[2]) for x, y in zip(a[2], s.lg)]
    def barrier(s):
        s.waitcnt(lg=0); s._emit('s_barrier')
    def text(s): return '\n'.join(s.out) + '\n'
def V(a, n=1): return f'v{a}' if n == 1 else f'v[{a}:{a+n-1}]'
def A(a, n=1): return f'a{a}' if n == 1 else f'a[{a}:{a+n-1}]'
def S(a, n=1): return f's{a}' if n == 1 else f's[{a}:{a+n-1}]'

import subprocess, tempfile, os
def sizes(txt):
    open('_al.s', 'w').write(txt)
    r = subprocess.run(['clang', '-x', 'assembler', '-target', 'amdgcn-amd-amdhsa', '-mcpu=gfx950', '-c', '_al.s', '-o', '_al.o'], capture_output=True, text=True)
    assert r.returncode == 0, r.stderr[:3000]
    d = subprocess.run(['llvm-objdump', '-d', '_al.o'], capture_output=True, text=True).stdout
    return [4*len(m.group(1).split()) for m in re.finditer(r'// [0-9A-F]+: ((?:[0-9A-F]{8} ?)+)', d)]
def promotable(t):
    mn = t.split()[0]
    if not mn.startswith('v_') or mn.endswith(('_e64', '_dpp', '_sdwa')): return False
    return not mn.startswith(('v_readfirstlane', 'v_swap', 'v_permlane', 'v_dot2c', 'v_fmaak', 'v_fmamk', 'v_accvgpr', 'v_nop'))
def align(lines, sz, nopcost=4):
    idx = [i for i, l in enumerate(lines) if l.startswith('    ')]
    assert len(idx) <= len(sz), (len(idx), len(sz))
    INF = 1 << 30; cost = [0, INF]; back = []
    for n, i in enumerate(idx):
        t = lines[i].strip(); nc = [INF, INF]; bk = [None, None]
        for p in (0, 1):
            if cost[p] >= INF: continue
            opts = []
            if sz[n] == 4:
                opts.append((0, p ^ 1, 0))
                if promotable(t): opts.append((p, p, 1))
            else:
                q = p if sz[n] % 8 == 0 else p ^ 1
                opts.append((p, q, 0))
                if p == 1: opts.append((nopcost, q ^ 1, 2))
            for c, q, act in opts:
                if cost[p] + c < nc[q]: nc[q] = cost[p] + c; bk[q] = (p, act)
        cost = nc; back.append(bk)
    p = 0 if cost[0] <= cost[1] else 1; tot = cost[p]; acts = []
    for bk in reversed(back): p, act = bk[p]; acts.append(act)
    acts.reverse(); out = list(lines)
    for n, i in enumerate(idx):
        if acts[n] == 1:
            t = lines[i].strip().split(None, 1); out[i] = '    ' + re.sub(r'_e32$', '', t[0]) + '_e64 ' + t[1]
        elif acts[n] == 2: out[i] = '    s_nop 0\n' + lines[i]
    return out, tot, sum(a == 1 for a in acts), sum(a == 2 for a in acts)
```

```python
import sys, struct, math, os
from collections import defaultdict
sys.path.insert(0, 'work')
from asmlib import *
NAME = 'recurrent_scan__ssm_conv_s4__mixer_channel_mlp__prompt'
def f2u(x): return '0x%08x' % struct.unpack('<I', struct.pack('<f', x))[0]
E_ = lambda k, d: int(os.environ.get(k, d))
LA, LB, LRING, LEND = 0, 69888, 79104, 161024
WR = 17408; LXS = 14592
UCH = 16656; LEXT = 33312
Y2S = 912; NSLOT = 10; NEXT = E_('NEXT', '4')
XNT, YT, HB, FL, STAMP = 0, 0x200000, 0x400000, 0xB00000, 0xC00000
XF, HF, YF = FL, FL + 0x20000, FL + 0x40000
SX, SW1, SW2, SWS, SOUT, SU, SDBG = 40, 44, 48, 52, 56, 60, 64
sJ, sR, sW, sNON, sRING, sT0, sT1, sT2 = 68, 69, 70, 71, 72, 73, 74, 75
sW2 = 76; sH = 83; sK = 90; sXO = 92; sLD = 93; sP = 94; sC = 95; sHI = 3; sST = 96
sXF, sXT, sPF2, sHF0, sY, sKB, sYF, sUB, sEXT, sDM, sRK, sDL, sY8 = 4, 5, 6, 7, 8, 9, 10, 11, 12, 13, 14, 15, 89
vD1, vD2, vA0, vA1, vB0, vB1, vPAR, vL16 = 1, 2, 3, 4, 5, 6, 7, 13
xa, xb, p1, p2, vb1, wy, wx, wxn, wst, wstn, xr, xs = 14, 15, 16, 18, 20, 21, 22, 23, 24, 25, 26, 27
xk, xp, k1, k2, kz, bm = 28, 29, 35, 36, 37, 34
tw, twA, twB, tr, dt = 35, 36, 37, 38, 39
vG2, vTR = 60, 61
HOWN = 224
ALIGN = E_('ALIGN', '1'); LVL = E_('LVL', '1')
WS = f's[{SWS}:{SWS+3}]'

def gen(stop=99, stamps=False):
    a = Asm(); I = a
    nst = [0]; late_ = [0]
    def stamp(lvl=1, pre=None):
        if not stamps or lvl > LVL: return
        if LVL == 4 and lvl == 3 and late_[0]: return
        inf = a.infill; a.infill = True
        if pre is None: I(f's_memtime s[{sST}:{sST+1}]'); a.waitcnt(lg=0)
        else: I(f's_mov_b32 s{sST}, s{pre}')
        I(f'v_mov_b32 v63, s{sST}'); I(f's_lshl_b32 s{sST+2}, s2, 2'); I(f's_add_u32 s{sST+2}, s{sST+2}, s{sW}')
        I(f's_lshl_b32 s{sST+2}, s{sST+2}, 7'); I(f's_add_u32 s{sST+2}, s{sST+2}, {STAMP + 4*nst[0]}')
        I('s_mov_b64 exec, 1'); I(f'buffer_store_dword v63, off, {WS}, s{sST+2}'); I('s_mov_b64 exec, -1')
        nst[0] += 1; a.infill = inf; assert nst[0] <= 30
    def srd(d, b, n):
        I(f's_mov_b32 s{d}, s{b}'); I(f's_mov_b32 s{d+1}, s{b+1}'); I(f's_mov_b32 s{d+2}, {n}'); I(f's_mov_b32 s{d+3}, 0x00020000')
    def fin():
        if stamps:
            I('v_mov_b32 v62, s22'); I('s_memrealtime s[96:97]'); I('v_mov_b32 v63, s96'); I(f's_lshl_b32 s98, s2, 2'); I(f's_add_u32 s98, s98, s{sW}')
            I('s_lshl_b32 s98, s98, 7'); I(f's_add_u32 s98, s98, {STAMP + 120}'); I(f'buffer_store_dwordx2 v[62:63], off, {WS}, s98')
            a.label('PCL'); I('s_getpc_b64 s[96:97]'); I('s_sub_u32 s96, s96, PCL+4-%s_kernel' % NAME); I('s_subb_u32 s97, s97, 0')
            I('v_mov_b32 v62, s96'); I('v_mov_b32 v63, s97'); I('s_mov_b32 s96, 0xCF0000')
            I(f'buffer_store_dwordx2 v[62:63], off, {WS}, s96')
        a.waitcnt(vm=0, lg=0); a._emit('s_endpgm')
    lab = [0]
    def poll(reload, cmp):
        lab[0] += 1; n = f'P{lab[0]}'; inf = a.infill; a.infill = True
        cmp(); a.settle(); a._emit(f's_cbranch_scc0 {n}_ok'); st = a.snap()
        I(f's_mov_b32 s{sST+3}, 0x40000'); a.label(f'{n}_lp')
        reload(); a._emit('s_waitcnt vmcnt(0)'); a.vm = []
        I(f's_sub_u32 s{sST+3}, s{sST+3}, 1'); a._emit(f's_cbranch_scc1 {n}_ok')
        cmp(); a.settle(); a._emit(f's_cbranch_scc1 {n}_lp')
        a.label(f'{n}_ok'); a.restore(st); a.infill = inf
    def cmp_flag(vf):
        def f(): I(f'v_cmp_ne_u32 vcc, s{sNON}, v{vf}'); I('s_and_b64 vcc, vcc, exec')
        return f
    def flag_store(soff, off=0):
        I(f'v_mov_b32 v62, s{sNON}'); I('s_mov_b64 exec, 1')
        I(f'buffer_store_dword v62, off, {WS}, s{soff} offset:{off} sc1'); I('s_mov_b64 exec, -1')
    def unpack(dlo, dhi, src):
        I(f'v_lshlrev_b32 v{dlo}, 16, v{src}'); I(f'v_and_b32 v{dhi}, s{sHI}, v{src}')
    def rne2(x, y, t):
        I(f'v_cvt_pk_bf16_f32 v{t}, v{x}, v{y}'); unpack(x, y, t)
    def bar(*toks):
        a.wait(*toks); a._emit('s_barrier')
    seq = lambda l: (lambda: [I(x) for x in l] and None)
    def chunks(l, n=4): return [seq(l[i:i+n]) for i in range(0, len(l), n)]

    I('s_load_dwordx16 s[4:19], s[0:1], 0'); I('s_load_dwordx16 s[20:35], s[0:1], 64'); I('s_load_dwordx2 s[36:37], s[0:1], 128')
    I('s_cmp_ge_u32 s2, 224'); a._emit('s_cbranch_scc1 END0')
    I('s_getpc_b64 s[98:99]'); a.label('PC0')
    I(f's_lshl_b32 s{sT0}, s2, 11'); I(f's_and_b32 s{sT0}, s{sT0}, 0x4000'); I(f'v_lshl_add_u32 v1, v0, 6, s{sT0}'); I('v_min_u32 v1, END-PC0, v1')
    a.pf('global_load_dword a255, v1, s[98:99]')
    if stamps: I('s_memtime s[100:101]'); I('s_memrealtime s[96:97]')
    rho, c8, hb, q0_, q1_, q2_ = 54, 55, 56, 57, 58, 59
    I(f's_lshl_b32 s{sT0}, s2, 10'); I(f'v_lshl_add_u32 v{q0_}, v0, 2, s{sT0}')
    I('v_lshrrev_b32 v1, 6, v0'); I('v_and_b32 v0, 63, v0'); I(f'v_readfirstlane_b32 s{sW}, v1')
    I(f's_and_b32 s{sT0}, s2, 1'); I(f's_mul_i32 s{sT0}, s{sT0}, 28'); I(f's_lshr_b32 s{sT1}, s2, 3'); I(f's_add_u32 s{sT0}, s{sT0}, s{sT1}')
    I(f's_lshr_b32 s{sJ}, s{sT0}, 3'); I(f's_and_b32 s{sK}, s{sT0}, 7'); I(f's_and_b32 s{sT1}, s2, 6'); I(f's_lshl_b32 s{sT1}, s{sT1}, 2')
    I(f's_add_u32 s{sR}, s{sK}, s{sT1}')
    I(f'v_lshrrev_b32 v{rho}, 3, v0'); I(f'v_and_b32 v{c8}, 7, v0')
    I(f'v_mul_u32_u24 v{xa}, 896, v{rho}'); I(f'v_lshl_add_u32 v{xa}, v{c8}, 4, v{xa}')
    I(f's_lshl_b32 s{sT0}, s{sR}, 2'); I(f's_add_u32 s{sT0}, s{sT0}, s{sW}'); I(f's_mul_i32 s{sT0}, s{sT0}, {16*896}')
    I(f'v_add_u32 v{xa}, s{sT0}, v{xa}'); I(f'v_add_u32 v{xb}, 7168, v{xa}')
    sXC = 76
    I(f's_lshl_b32 s{sXC}, s{sJ}, 7')
    for i in range(1, 7):
        I(f's_add_u32 s{sXC+i}, s{sXC+i-1}, 384'); I(f's_cmp_ge_u32 s{sXC+i}, 896'); I(f's_cselect_b32 s{sT1}, 896, 0'); I(f's_sub_u32 s{sXC+i}, s{sXC+i}, s{sT1}')
    I(f'v_mul_u32_u24 v{vD1}, 3584, v{rho}'); I(f'v_lshl_add_u32 v{p1}, v{c8}, 6, v{vD1}')
    I(f's_lshl_b32 s{sT2}, s{sK}, 2'); I(f's_add_u32 s{sT2}, s{sT2}, s{sW}'); I(f's_mul_i32 s{sT0}, s{sT2}, {14*3584}')
    I(f's_lshl_b32 s{sT1}, s{sJ}, 9'); I(f's_add_u32 s{sT0}, s{sT0}, s{sT1}'); I(f'v_add_u32 v{p1}, s{sT0}, v{p1}')
    I(f's_cmp_ge_u32 s{sK}, 4'); I(f's_cselect_b32 s{sT0}, {(-224*3584) & 0xffffffff}, 0'); I(f's_cselect_b32 s{sT1}, 0, {224*3584}')
    I(f's_add_u32 s{sT0}, s{sT0}, s{sT1}'); I(f'v_add_u32 v{p1+1}, s{sT0}, v{p1}'); I(f's_mov_b32 s{sY8}, {8*3584}')
    I(f's_mov_b32 s{SW1+2}, {448*3584}'); I(f's_mov_b32 s{SW1+3}, 0x00020000')
    I(f's_mov_b32 s{SX+2}, {2048*896}'); I(f's_mov_b32 s{SX+3}, 0x00020000'); I(f's_lshl_b32 s{sT1}, s2, 2')
    for i in range(6): I(f'global_load_dword v{vPAR+i}, v{q0_}, s[{6+2*i}:{7+2*i}]')
    I(f's_load_dword s{sLD}, s[18:19], s{sT1}')
    I(f's_mov_b32 s{SX}, s4'); I(f's_mov_b32 s{SX+1}, s5'); I(f's_mov_b32 s{SW1}, s24'); I(f's_mov_b32 s{SW1+1}, s25')
    X0, X1 = 192, 220
    def wpf(p, S_, so, nm):
        def g():
            I(f's_cmp_lg_u32 s{sJ}, 3'); a._emit(f's_cbranch_scc1 {nm}')
            a._emit(f'buffer_load_dword a255, v{p+1}, s[{S_}:{S_+3}], 0 offen'); a._emit(f'buffer_load_dword a255, v{p+1}, s[{S_}:{S_+3}], s{so} offen')
            a.label(nm)
        return [lambda: a.pf(f'buffer_load_dword a255, v{p}, s[{S_}:{S_+3}], 0 offen'), lambda: a.pf(f'buffer_load_dword a255, v{p}, s[{S_}:{S_+3}], s{so} offen'), g]
    B1R = 176; CB = 144
    src = {'x': [seq([f'buffer_load_dwordx4 {V(X+4*i,4)}, v{v_}, s[{SX}:{SX+3}], s{sXC+i} offen']) for i in range(7) for X, v_ in ((X0, xa), (X1, xb))],
           'f': wpf(p1, SW1, sY8, 'NOPF1'), 'h': wpf(p2, SW2, sPF2, 'NOPF2'),
           'r': [(lambda k=k, hh=hh: dma1(k, hh)) for k in range(NSLOT) for hh in range(2)],
           'b': [seq([f'global_load_dwordx4 {V(B1R+8*fb+4*q,4)}, v{vb1}, s[26:27] offset:{64*fb+16*q}']) for fb in range(2) for q in range(2)]}
    src['r'] = src['r'][:18]; vNON = 57
    ldNON = lambda: I(f'buffer_load_dword v{vNON}, off, s[{SDBG}:{SDBG+3}], 0 sc1')
    src['n'] = [ldNON]
    sched = {}
    for it in os.environ.get('KS', 'p:x6f,0:f2,1:x2,2:x2,3:x2,4:x2,5:h,8:h2,12:b4,15:n,' + ','.join(f'{17+i}:r2' for i in range(9))).split(','):
        k_, v_ = it.split(':'); sched[k_] = [src[c].pop(0) for c, n in re.findall(r'([a-z])(\d*)', v_) for _ in range(int(n or 1))]
    assert not any(src.values()), src
    hk = [0]
    def hook():
        for f in sched.pop(str(hk[0]), []): f()
        hk[0] += 1
    sched.pop('z', None)
    for f in sched.pop('p'): f()
    I('s_memrealtime s[38:39]')
    if stamps:
        I('s_mov_b32 s22, s96')
        if LVL >= 3: I('s_memtime s[96:97]'); I('s_mov_b32 s23, s96')
    I(f's_mov_b32 s{sHI}, 0xffff0000')
    I(f's_and_b32 s{sP}, s{sW}, 1'); I(f's_lshr_b32 s{sC}, s{sW}, 1'); I(f'v_lshlrev_b32 v{vL16}, 4, v0'); I(f'v_lshrrev_b32 v{hb}, 5, v0')
    I(f's_lshl_b32 s{sRK}, s{sJ}, 7'); srd(SWS, 36, 0x1000000); srd(SDBG, 34, 256); srd(SW2, 28, 1792*896)
    I(f's_or_b32 s{sNON}, s2, s{sW}'); I(f's_cmp_lg_u32 s{sNON}, 0'); a.settle(); a._emit('s_cbranch_scc1 NONCE')
    st = a.snap(); I('s_or_b32 s38, s38, 1'); I('v_mov_b32 v62, s38'); I('s_mov_b64 exec, 1')
    I(f'buffer_store_dword v62, off, s[{SDBG}:{SDBG+3}], 0 sc1'); I('s_mov_b64 exec, -1'); a.settle()
    a.label('NONCE'); a.restore(st)
    I(f'v_lshrrev_b32 v{p2}, 1, v0'); I(f'v_mul_u32_u24 v{p2}, 896, v{p2}'); I(f'v_and_b32 v{q0_}, 1, v0'); I(f'v_lshl_add_u32 v{p2}, v{q0_}, 6, v{p2}')
    I(f's_mul_i32 s{sT0}, s{sT2}, {56*896}'); I(f's_add_u32 s{sT0}, s{sT0}, s{sRK}'); I(f'v_add_u32 v{p2}, s{sT0}, v{p2}')
    I(f's_cmp_ge_u32 s{sK}, 4'); I(f's_cselect_b32 s{sT0}, {(-896*896) & 0xffffffff}, 0'); I(f's_cselect_b32 s{sT1}, 0, {896*896}'); I(f's_add_u32 s{sT0}, s{sT0}, s{sT1}')
    I(f'v_add_u32 v{p2+1}, s{sT0}, v{p2}'); I(f's_mov_b32 s{sPF2}, {32*896}')
    I(f'v_lshrrev_b32 v{q0_}, 2, v0'); I(f'v_and_b32 v{q0_}, 4, v{q0_}'); I(f'v_xor_b32 v{q0_}, v{q0_}, v{c8}'); I(f'v_lshlrev_b32 v{q0_}, 4, v{q0_}')
    I(f'v_mul_u32_u24 v{vD2}, 896, v{rho}'); I(f'v_add_u32 v{vD2}, v{vD2}, v{q0_}')
    I(f's_lshl_b32 s{sT2}, s{sJ}, 2'); I(f's_add_u32 s{sT2}, s{sT2}, s{sW}'); I(f's_lshl_b32 s{sT0}, s{sT2}, 7')
    I(f'v_add3_u32 v{vD1}, s{sT0}, v{vD1}, v{q0_}')
    I(f'v_lshl_add_u32 v{vb1}, v{hb}, 5, s{sT0}')
    I(f's_mul_i32 s{sRING}, s{sW}, {NSLOT*2048}'); I(f's_add_u32 s{sRING}, s{sRING}, {LRING}')
    I(f's_lshl_b32 s{sXF}, s{sJ}, 5'); I(f's_add_u32 s{sXF}, s{sXF}, s{sR}'); I(f's_lshl_b32 s{sXF}, s{sXF}, 4'); I(f's_add_u32 s{sXF}, s{sXF}, {XF}')
    I(f's_lshl_b32 s{sXT}, s{sJ}, 18'); I(f's_lshl_b32 s{sT0}, s{sR}, 7'); I(f's_add_u32 s{sXT}, s{sXT}, s{sT0}'); I(f's_lshl_b32 s{sT0}, s{sW}, 5'); I(f's_add_u32 s{sXT}, s{sXT}, s{sT0}')
    dtok = {}
    def slot(step):
        if step < 28: return 0, (step % NSLOT) * 2048
        q = (step - 28) % (NSLOT + NEXT)
        return (0, ((28 + q) % NSLOT) * 2048) if q < NSLOT else (1, (q - NSLOT) * 2048)
    def dma1(step, hh):
        ex_, so = slot(step)
        I(f's_add_u32 m0, s{sEXT if ex_ else sRING}, {so + hh*1024}')
        if step < 28:
            I(f's_mov_b32 s{sDM}, {(16*step + 8*hh)*3584}')
            dtok[step if hh else -1] = I(f'buffer_load_dwordx4 v{vD1}, s[{SW1}:{SW1+3}], s{sDM} offen lds')
        else:
            n, sg = divmod(step - 28, 4)
            I(f's_add_u32 s{sDM}, s{sW2+n}, {(32*(sg>>1) + 8*(sg&1) + 16*hh)*896}')
            dtok[step if hh else -1] = I(f'buffer_load_dwordx4 v{vD2}, s[{SW2}:{SW2+3}], s{sDM} offen lds')
    g, r4, c4 = q0_, q1_, q2_
    I(f'v_bfe_u32 v{g}, v0, 4, 1'); I(f'v_bfe_u32 v{r4}, v0, 2, 2'); I(f'v_and_b32 v{c4}, 3, v0')
    I(f'v_lshlrev_b32 v{vTR}, 5, v{g}'); I(f'v_lshl_add_u32 v{vTR}, v{c4}, 3, v{vTR}')
    u, w_ = 40, 41
    I(f'v_and_b32 v{u}, 1, v0'); I(f'v_lshlrev_b32 v{u}, 5, v{u}'); I(f'v_lshl_or_b32 v{u}, v{g}, 4, v{u}'); I(f'v_bfe_u32 v{w_}, v0, 1, 1'); I(f'v_lshl_or_b32 v{u}, v{w_}, 3, v{u}')
    I(f'v_bfe_u32 v{w_}, v0, 3, 1'); I(f'v_lshl_or_b32 v{u}, v{w_}, 6, v{u}')
    I(f'v_lshl_add_u32 v{u}, v{r4}, 7, v{u}'); I(f'v_add_u32 v{u}, s{sRING}, v{u}')
    I(f'v_lshl_add_u32 v{vA0}, v{hb}, 10, v{u}'); I(f'v_xor_b32 v{vA1}, 64, v{vA0}')
    I(f's_lshl_b32 s{sT0}, s{sP}, 6'); I(f'v_xor_b32 v{vG2}, s{sT0}, v{vA0}')
    I(f'v_and_b32 v{u}, 15, v0'); I(f'v_mul_u32_u24 v{vB0}, {Y2S}, v{u}'); I(f'v_mul_u32_u24 v{wst}, 144, v{u}'); I(f'v_mul_u32_u24 v{w_}, {WR}, v{g}')
    I(f'v_add_u32 v{vB0}, v{vB0}, v{w_}'); I(f'v_lshl_add_u32 v{vB0}, v{hb}, 4, v{vB0}')
    I(f's_mul_i32 s{sT0}, s{sC}, {2*WR}'); I(f's_sub_u32 s{sT1}, {2*WR}, s{sT0}'); I(f'v_add_u32 v{vB1}, s{sT1}, v{vB0}'); I(f'v_add_u32 v{vB0}, s{sT0}, v{vB0}')
    I(f'v_lshl_add_u32 v{wst}, v{hb}, 5, v{wst}'); I(f's_lshl_b32 s{sT1}, s{sP}, 6'); I(f's_add_u32 s{sT0}, s{sT0}, s{sT1}'); I(f's_add_u32 s{sT0}, s{sT0}, {LXS}')
    I(f'v_mul_u32_u24 v{wstn}, {16*144}, v{g}'); I(f'v_add_u32 v{wstn}, v{wstn}, v{wst}'); I(f'v_add3_u32 v{wst}, v{wst}, v{w_}, s{sT0}')
    I(f's_mul_i32 s{sT0}, s{sC}, {32*144}'); I(f's_add_u32 s{sT0}, s{sT0}, s{sT1}'); I(f's_add_u32 s{sT0}, s{sT0}, {LB}'); I(f'v_add_u32 v{wstn}, s{sT0}, v{wstn}')
    I(f's_mul_i32 s{sT2}, s{sW}, {WR}')
    I(f'v_mul_u32_u24 v{wy}, {Y2S}, v{rho}'); I(f'v_lshl_add_u32 v{wy}, v{c8}, 4, v{wy}'); I(f'v_add_u32 v{wy}, s{sT2}, v{wy}')
    I(f'v_mul_u32_u24 v{wx}, 144, v{rho}'); I(f'v_lshl_add_u32 v{wx}, v{c8}, 4, v{wx}')
    I(f's_mul_i32 s{sT0}, s{sW}, {16*144}'); I(f's_add_u32 s{sT0}, s{sT0}, {LB}'); I(f'v_add_u32 v{wxn}, s{sT0}, v{wx}')
    I(f's_add_u32 s{sT0}, s{sT2}, {LXS}'); I(f'v_add_u32 v{wx}, s{sT0}, v{wx}')
    I(f's_add_u32 s{sT0}, s{sRING}, {9*2048}'); I(f'v_add_u32 v{xk}, s{sT0}, v{vL16}'); I(f's_xor_b32 s{sT1}, s{sW}, 1'); I(f's_mul_i32 s{sT1}, s{sT1}, {NSLOT*2048}')
    I(f's_add_u32 s{sT1}, s{sT1}, {LRING + 9*2048}'); I(f'v_add_u32 v{xp}, s{sT1}, v{vL16}')
    I(f'v_lshl_add_u32 v{xr}, v{g}, 3, v{r4}'); I(f'v_mul_u32_u24 v{xr}, 144, v{xr}'); I(f'v_lshl_add_u32 v{xr}, v{c4}, 3, v{xr}'); I(f'v_lshl_add_u32 v{xr}, v{hb}, 5, v{xr}')
    I(f's_mul_i32 s{sT0}, s{sW}, {16*144}'); I(f's_add_u32 s{sT0}, s{sT0}, {LB}'); I(f'v_add_u32 v{xr}, s{sT0}, v{xr}')
    I(f'v_lshl_add_u32 v{xs}, v{hb}, 4, v{u}'); I(f'v_lshlrev_b32 v{xs}, 12, v{xs}'); I(f'v_lshl_add_u32 v{xs}, v{g}, 4, v{xs}')
    I(f's_sub_u32 s{sDL}, s{sRING}, s{sT2}'); I(f'v_mul_u32_u24 v{tw}, 272, v0'); I(f'v_add_u32 v{tw}, s{sRING}, v{tw}')
    I(f's_lshl_b32 s{sT0}, s{sP}, 5'); I(f'v_add_u32 v{twA}, s{sT0}, v{tw}'); I(f'v_subrev_u32 v{twB}, s{sT0}, v{tw}')
    I(f'v_bfe_u32 v{w_}, v0, 3, 1'); I(f'v_lshl_add_u32 v{w_}, v{hb}, 2, v{w_}'); I(f'v_mul_u32_u24 v{w_}, {8*272}, v{w_}')
    I(f'v_bfe_u32 v{tr}, v0, 2, 1'); I(f'v_lshl_add_u32 v{tr}, v{tr}, 6, v{vTR}'); I(f'v_add3_u32 v{tr}, v{tr}, v{w_}, s{sRING}')
    I(f's_lshl_b32 s{sT1}, s{sC}, 4'); I(f's_lshr_b32 s{sT1}, s{sLD}, s{sT1}'); I(f's_lshl_b32 s{sT1}, s{sT1}, 16')
    I(f'v_mov_b32 v{dt}, {f2u(math.log2(math.e))}'); I(f'v_mul_f32 v{dt}, s{sT1}, v{dt}'); I(f'v_exp_f32 v{dt}, v{dt}')
    I(f'v_cvt_pk_bf16_f32 v{dt}, v{dt}, v{dt}'); I(f'v_lshlrev_b32 v{dt}, 16, v{dt}')
    stamp(1, 100); stamp(3, 23); stamp()

    def cmuls(lst):
        for d, p, q in lst: I(f'v_pk_mul_f32 {V(d,2)}, {V(p,2)}, {V(q,2)} op_sel:[0,0] op_sel_hi:[0,1]')
        for d, p, q in lst: I(f'v_pk_fma_f32 {V(d,2)}, {V(p,2)}, {V(q,2)}, {V(d,2)} op_sel:[1,1,0] op_sel_hi:[1,0,1] neg_lo:[1,0,0]')
    G = lambda b: 64 + 2*b
    Sx = lambda i: 128 + 2*i
    HH = {i: Sx(i) for i in range(9)}
    for n, o in enumerate((256, 258, 260, 262, 264)): HH[o] = 146 + 2*n
    for n, o in enumerate((512, 516, 520, 768, 772, 776)): HH[o] = G(1 + n)
    for n, o in enumerate((1024, 1032, 1280, 1288, 1536, 1544, 1792, 1800)): HH[o] = G(8 + n)
    g1, g256, g2 = 40, 42, 44; er, ph = 46, 47; P = 48; PK = 156; KD = 208
    h0 = [0,1,2,3,4,5,6,7, 512,516,520, 1024,1032,1280,1288, None]
    h1 = [256,256,258,260,260,260,262,264, 768,772,776, 1536,1544,1792,1800, None]
    pkn = [0]; kq = []
    def kread(bt, s_):
        for o, x in ((0, 0), (2, 16*272), (4, 128), (6, 16*272+128)): I(f'ds_read_b64_tr_b16 {A(64*bt+8*s_+o,2)}, v{tr} offset:{x + 272*s_}')
    kmf = lambda bt, s_: (lambda: I(f'v_mfma_f32_32x32x16_bf16 {A(KD,16)}, {A(64*bt+8*s_,4)}, {A(64*bt+8*s_+4,4)}, {0 if (bt == 0 and s_ == 0) else A(KD,16)}'))
    def wr8(srcs, ad, off, neg):
        n_ = pkn[0]; p = PK + 8*(n_ & 1); pkn[0] += 1
        if n_ >= 10: kmf(0, n_ - 10)()
        for comp in range(2):
            n = '-' if (neg and comp) else ''
            for e in range(4):
                x, y = srcs[2*e], srcs[2*e+1]
                if y is None: y = x
                I(f'v_cvt_pk_bf16_f32 v{p+4*comp+e}, {n}v{x+comp}, {n}v{y+comp}')
        for comp in range(2): I(f'ds_write_b128 v{ad}, {V(p+4*comp,4)} offset:{off + 64*comp}')
        if n_ >= 8: kread(0, n_ - 8)
        hook()
    for bt in range(2):
        for i in range(6): I(f'v_lshlrev_b32 v{P+i}, 16, v{vPAR+i}' if bt == 0 else f'v_and_b32 v{P+i}, s{sHI}, v{vPAR+i}')
        if bt == 0: stamp(3)
        else:
            for r in (tw, twA, twB): I(f'v_subrev_u32 v{r}, s{sDL}, v{r}')
        for i in range(4): I(f'v_mul_f32 v{P+i}, v{dt}, v{P+i}')
        I(f'v_mul_f32 v{er}, {f2u(math.log2(math.e))}, v{P}'); I(f'v_mul_f32 v{ph}, 0.15915494, v{P+1}')
        cmuls([(Sx(0), P+4, P+2)])
        for d, sc in ((g1, 1.0), (G(1), 8.0), (g256, 256.0)):
            if sc != 1.0:
                I(f'v_mul_f32 v{P}, {f2u(sc)}, v{er}'); I(f'v_mul_f32 v{P+1}, {f2u(sc)}, v{ph}')
            I(f'v_exp_f32 v{P}, v{P if sc != 1.0 else er}'); I(f'v_fract_f32 v{P+1}, v{P+1 if sc != 1.0 else ph}')
            I(f'v_cos_f32 v{d}, v{P+1}'); I(f'v_sin_f32 v{d+1}, v{P+1}')
            I(f'v_pk_mul_f32 {V(d,2)}, {V(d,2)}, {V(P,2)} op_sel_hi:[1,0]')
        if bt == 0: I(f'v_mov_b32 v{G(0)}, 1.0'); I(f'v_mov_b32 v{G(0)+1}, 0')
        cmuls([(G(2), G(1), G(1)), (g2, g1, g1), (Sx(1), Sx(0), g1), (Sx(8), Sx(0), G(1))])
        cmuls([(G(3), G(2), G(1)), (G(4), G(2), G(2)), (Sx(2), Sx(0), g2), (Sx(3), Sx(1), g2)])
        cmuls([(G(5), G(4), G(1)), (G(6), G(4), G(2)), (G(7), G(4), G(3)), (G(8), G(4), G(4)), (Sx(4), Sx(2), g2), (Sx(5), Sx(3), g2)])
        wr8([G(b) for b in range(8)], tw, 128, False)
        cmuls([(G(8+i), G(8), G(i)) for i in range(1, 9)] + [(Sx(6), Sx(4), g2), (Sx(7), Sx(5), g2)])
        wr8([G(b) for b in range(8, 16)], tw, 144, False)
        cmuls([(G(16+i), G(16), G(i)) for i in range(1, 8)] + [(HH[256+i], Sx(i), g256) for i in (0, 2, 4, 6, 8)])
        wr8([G(b) for b in range(16, 24)], tw, 160, False)
        cmuls([(G(16+i), G(16), G(i)) for i in range(8, 16)] + [(HH[512+i], HH[256+i], g256) for i in (0, 4, 8)])
        wr8([G(b) for b in range(24, 32)], tw, 176, False)
        cmuls([(HH[768+i], HH[512+i], g256) for i in (0, 4, 8)])
        wr8([HH[o] for o in h0[0:4] + h1[0:4]], twA, 0, True)
        cmuls([(HH[1024+i], HH[768+i], g256) for i in (0, 8)])
        cmuls([(HH[1280+i], HH[1024+i], g256) for i in (0, 8)])
        wr8([HH[o] for o in h0[4:8] + h1[4:8]], twA, 16, True)
        cmuls([(HH[1536+i], HH[1280+i], g256) for i in (0, 8)])
        wr8([HH.get(o) for o in h0[8:12] + h1[8:12]], twB, 32, True)
        cmuls([(HH[1792+i], HH[1536+i], g256) for i in (0, 8)])
        wr8([HH.get(o) for o in h0[12:16] + h1[12:16]], twB, 48, True)
        stamp(1 if bt else 2)
    s0, s1, q0, q1 = 64, 65, 66, 67
    I(f'v_subrev_u32 v{tr}, s{sDL}, v{tr}')
    for r in (s0, s1, q0, q1): I(f'v_mov_b32 v{r}, 0')
    I(f's_mov_b32 s{sK+1}, 0x3f803f80')
    kread(1, 0); tk0 = a.uid; hook()
    for i in range(7):
        for X, s_, q_ in ((X0, s0, q0), (X1, s1, q1)):
            for e in range(4):
                I(f'v_dot2c_f32_bf16 v{s_}, s{sK+1}, v{X+4*i+e}'); I(f'v_dot2c_f32_bf16 v{q_}, v{X+4*i+e}, v{X+4*i+e}')
        kread(1, i+1)
        if i == 0: a.wait(tk0)
        if i == 6: I(f'ds_write_b128 v{wx}, {V(X0,4)}'); I(f'ds_write_b128 v{wx}, {V(X1,4)} offset:{8*144}')
        hook()
    stamp(2)
    a.sprinkle([kmf(0, 6), kmf(0, 7)] + [kmf(1, s_) for s_ in range(8)], E_('KME', '7'), 1)
    for m in ('quad_perm:[1,0,3,2]', 'quad_perm:[2,3,0,1]', 'row_half_mirror'):
        for r in (s0, s1, q0, q1): I(f'v_add_f32_dpp v{r}, v{r}, v{r} {m} row_mask:0xf bank_mask:0xf')
    MR0, MR1, AB0, AB1 = 68, 70, 72, 74
    t = 76
    for r in (s0, s1, q0, q1): I(f'v_mul_f32 v{r}, {f2u(1/448)}, v{r}')
    for s_, q_ in ((s0, q0), (s1, q1)): I(f'v_fma_f32 v{q_}, -v{s_}, v{s_}, v{q_}')
    for q_ in (q0, q1): I(f'v_max_f32 v{q_}, 0, v{q_}')
    def rstd(va, vb, oa, ob):
        I(f'v_cvt_pk_bf16_f32 v{t}, v{va}, v{vb}'); unpack(oa, ob, t)
        for o in (oa, ob): I(f'v_add_f32 v{o}, {f2u(1e-5)}, v{o}')
        rne2(oa, ob, t)
        for o in (oa, ob): I(f'v_sqrt_f32 v{o}, v{o}')
        rne2(oa, ob, t)
        for o in (oa, ob): I(f'v_rcp_f32 v{o}, v{o}')
    I(f'v_cvt_pk_bf16_f32 v{t}, v{s0}, v{s1}'); unpack(MR0, MR1, t)
    rstd(q0, q1, MR0+1, MR1+1)
    for s_, q_, M in ((s0, q0, MR0), (s1, q1, MR1)):
        I(f'v_sub_f32 v{s_}, v{s_}, v{M}'); I(f'v_mul_f32 v{q_}, v{q_}, v{M+1}')
    for s_, q_, M in ((s0, q0, MR0), (s1, q1, MR1)):
        I(f'v_mul_f32 v{s_}, v{s_}, v{M+1}'); I(f'v_mul_f32 v{q_}, v{q_}, v{M+1}')
    rne2(s0, s1, t)
    rstd(q0, q1, AB0+1, AB1+1)
    for s_, M, AB in ((s0, MR0, AB0), (s1, MR1, AB1)):
        I(f'v_mul_f32 v{AB}, v{M+1}, v{AB+1}'); I(f'v_mul_f32 v{s_}, v{s_}, v{AB+1}')
    for s_, M, AB in ((s0, MR0, AB0), (s1, MR1, AB1)):
        I(f'v_fma_f32 v{AB+1}, -v{M}, v{AB}, -v{s_}')
    a.flush(); stamp(4)
    for O, M, off, Z in ((X0, MR0, 0, 96), (X1, MR1, 8*144, 100)):
        for e in range(4): unpack(t+2*e, t+2*e+1, O+e)
        for e in range(4): I(f'v_pk_add_f32 {V(t+2*e,2)}, {V(t+2*e,2)}, {V(M,2)} op_sel_hi:[1,0] neg_lo:[0,1] neg_hi:[0,1]')
        for e in range(4): I(f'v_cvt_pk_bf16_f32 v{Z+e}, v{t+2*e}, v{t+2*e+1}')
        for e in range(4): unpack(t+2*e, t+2*e+1, Z+e)
        for e in range(4): I(f'v_pk_mul_f32 {V(t+2*e,2)}, {V(t+2*e,2)}, {V(M,2)} op_sel:[0,1] op_sel_hi:[1,1]')
        for e in range(4): I(f'v_cvt_pk_bf16_f32 v{Z+e}, v{t+2*e}, v{t+2*e+1}')
        I(f'ds_write_b128 v{wxn}, {V(Z,4)} offset:{off}')
        if off:
            for q in range(2):
                for z in range(2): I(f'ds_read_b64_tr_b16 {V(112+4*q+2*z,2)}, v{xr} offset:{64*q + 576*z}')
        hook()
    tk = {}; stamp(4)
    I(f's_add_u32 s{sT0}, s{sXT}, {32*4096}')
    for i in range(7):
        if i in (1, 3, 5): stamp(4)
        I(f'v_add_u32 v{104+i}, s{sXC+i}, v{wy}')
        for n, (X, AB, off) in enumerate(((X0, AB0, 0), (X1, AB1, 8*Y2S))):
            tt = t + 8*n
            for e in range(4): unpack(tt+2*e, tt+2*e+1, X+4*i+e)
            for e in range(4): I(f'v_pk_fma_f32 {V(tt+2*e,2)}, {V(tt+2*e,2)}, {V(AB,2)}, {V(AB,2)} op_sel:[0,0,1] op_sel_hi:[1,0,1]')
            for e in range(4): I(f'v_cvt_pk_bf16_f32 v{X+4*i+e}, v{tt+2*e}, v{tt+2*e+1}')
            I(f'ds_write_b128 v{104+i}, {V(X+4*i,4)} offset:{off}')
            if i == 0: tk['xn'] = I(f'buffer_store_dwordx4 {V(112+4*n,4)}, v{xs}, {WS}, s{(sXT, sT0)[n]} offen sc1')
            hook()
    for q in range(2): I(f'ds_write_b128 v{xk}, {A(KD+8+4*q,4)} offset:{1024*q}')
    assert not sched, sched
    for fb in range(2):
        for e in range(8): unpack(CB+16*fb+2*e, CB+16*fb+2*e+1, B1R+8*fb+e)
    stamp(4)
    def cm(): I(f'v_readfirstlane_b32 s{sNON}, v{vNON}'); I(f's_cmp_eq_u32 s{sNON}, 0')
    poll(ldNON, cm)
    stamp(3)
    a.wait(tk['xn']); a.barrier()
    stamp()
    late_[0] = 1
    ACC = 64
    def gemm(base, FA, bfrag, breads, cinit, va, extra, nstep=28, npre=0, dm=None):
        def reads(k):
            ex_, so = slot(base + k)
            r = [f'ds_read_b64_tr_b16 {A(FA(k)+o,2)}, v{v_} offset:{so+x}' for v_, o0 in ((va[ex_][0], 0), (va[ex_][1], 4)) for o, x in ((o0, 0), (o0+2, 512))]
            b = breads(k)
            return r[:2] + b[:1] + r[2:] + b[1:]
        if nstep == 0: return reads
        for k in range(npre, 2):
            a.wait(dtok[base+k])
            for x in reads(k): I(x)
        for f in extra.get((-1, 0), []): f()
        for k in range(nstep):
            nx = reads(k+2) if npre <= k + 2 < nstep else []
            nd = base + k + NSLOT
            for mi, (fb, tb) in enumerate(((0, 0), (1, 0), (0, 1), (1, 1))):
                d = V(ACC + 32*tb + 16*fb, 16)
                I(f'v_mfma_f32_32x32x16_bf16 {d}, {A(FA(k)+4*fb,4)}, {bfrag(k, tb)}, {cinit(fb) if k == 0 else d}')
                if mi == 0 and nx:
                    a.wait(dtok[base+k+2])
                    for x in nx[:len(nx)//2]: I(x)
                if mi == 1:
                    for x in nx[len(nx)//2:]: I(x)
                if mi >= 2 and not base: dma1(nd, mi - 2)
                for f in extra.get((k, mi), []): f()
            if k in (3, 9, 17): stamp(3)
    ex = defaultdict(list)
    def place(fns, k, mi, skip=()):
        for f in fns:
            while (k, mi) in skip or (k, mi) in ex:
                mi += 1
                if mi == 4: k += 1; mi = 0
            ex[(k, mi)].append(f)
        return k, mi
    def e_xe(i):
        return seq([f'ds_read_b128 {A(192+4*i,4)}, v{(wst, wstn)[i>>1]} offset:{16*(i&1)}'])
    KE, KO, KT = 128, 136, 144
    def e_kr(): I(f'ds_read_b128 {V(KE,4)}, v{xp}'); tk['kr'] = I(f'ds_read_b128 {V(KE+4,4)}, v{xp} offset:1024')
    ex[(0, 0)].append(lambda: flag_store(sXF)); ex[(0, 1)].append(e_kr)
    ex[(2, 0)].append(lambda: (bar(tk['kr']), dma1(9, 0))); ex[(2, 1)].append(lambda: dma1(9, 1))
    for i in range(4): ex[(3 + i, 1)].append(e_xe(i))
    l = chunks([f'v_accvgpr_read_b32 v{KO+e}, a{KD+e}' for e in range(8)], 3)
    l += chunks([f'v_add_f32 v{KE+e}, v{KE+e}, v{KO+e}' for e in range(8)] + [f'v_mov_b32 v{KT+16+e}, 0' for e in range(4)]
              + [f'v_cvt_pk_bf16_f32 v{KT+e}, v{KE+7-2*e}, v{KE+6-2*e}' for e in range(4)]
              + [f'v_cvt_pk_bf16_f32 v{KT+4+e}, v{KE+x}, v{KE+y}' for e, (x, y) in enumerate(((2, 2), (1, 1), (1, 0), (0, 0)))]
              + [f'v_and_b32 v{bm}, 1, v0', f'v_add_u32 v{bm}, -1, v{bm}'], 3)
    l2 = []
    for z, v0_ in enumerate((KE+3, KE+5)):
        tt = KT + 8 + 4*z
        l2 += [f'v_bfi_b32 v{KO}, v{bm}, v{v0_}, v{v0_+1}', f'v_cvt_pk_bf16_f32 v{tt}, v{v0_+1}, v{v0_+1}', f'v_cvt_pk_bf16_f32 v{tt+2}, v{v0_}, v{v0_}',
               f'v_cvt_pk_bf16_f32 v{tt+1}, v{v0_+1}, v{KO}', f'v_mov_b32 v{tt+3}, v{tt+2}']
    place(l + chunks(l2, 3), 2, 2)
    late = []; sA, sB, sD = 38, 39, sXO
    late += [f's_mov_b32 s{SOUT}, s32', f's_mov_b32 s{SOUT+1}, s33', f's_mov_b32 s{SOUT+2}, {2048*896}', f's_mov_b32 s{SOUT+3}, 0x00020000']
    late += [f's_mul_i32 s{sA}, s{sW}, {64*896}', f's_add_u32 s{sA}, s{sA}, s{sRK}', f'v_add_u32 v{vD2}, s{sA}, v{vD2}', f's_mul_i32 s{sB}, s{sR}, 28']
    late += [f's_add_u32 s{sB}, s{sB}, s{sW}', f's_lshl_b32 s{sB}, s{sB}, 13', f's_add_u32 s{sB}, s{sB}, {HB}']
    late = chunks(late, 4)
    for n in range(7):
        late += [seq([f's_add_u32 s{sA}, s{sJ}, {n}', f's_cmp_ge_u32 s{sA}, 7', f's_cselect_b32 s{sD}, 7, 0', f's_sub_u32 s{sA}, s{sA}, s{sD}']),
                 seq([f's_mul_i32 s{sW2+n}, s{sA}, {256*896}', f's_lshl_b32 s{sA}, s{sA}, 15', f's_add_u32 s{sH+n}, s{sA}, s{sB}'])]
    bef = set(ex); kk = place(late, 0, 2); assert kk[0] < 17, kk
    keep1 = set(ex) - bef
    vXF, vXFa, vHF, vHFa, vH2 = 14, 15, 16, 17, 18
    uE, uA, u3, uw, u3w, cu0, ck, ys, vL4 = 19, 20, 21, 22, 23, 24, 25, 26, 27
    xc, xq, vSH, vE2, vE3, vG3 = 28, 29, 30, 31, 32, 33
    m0_, m1_, m2_ = 57, 58, 59
    ad = [f's_lshr_b32 s{sT1}, s2, 5', f's_lshl_b32 s{sT1}, s{sT1}, 9', f's_add_u32 s{sT1}, s{sT1}, {XF}', f'v_and_b32 v{vXFa}, 31, v0',
          f'v_lshl_add_u32 v{vXFa}, v{vXFa}, 4, s{sT1}',
          f's_lshl_b32 s{sT1}, s{sR}, 2', f's_add_u32 s{sT1}, s{sT1}, s{sW}', f's_lshl_b32 s{sT1}, s{sT1}, 10', f's_add_u32 s{sT1}, s{sT1}, {HF}',
          f'v_and_b32 v{vHFa}, 7, v0', f'v_min_u32 v{vHFa}, 6, v{vHFa}', f'v_lshlrev_b32 v{vHFa}, 7, v{vHFa}', f'v_add_u32 v{vHFa}, s{sT1}, v{vHFa}',
          f's_add_u32 s{sHF0}, s{sRK}, s{sT1}',
          f's_lshl_b32 s{sT1}, s2, 1', f's_add_u32 s{sT1}, s{sT1}, s{sC}', f's_lshl_b32 s{sT1}, s{sT1}, 12', '',
          f's_add_u32 s{SU}, s36, s{sT1}', f's_addc_u32 s{SU+1}, s37, 0', f's_mov_b32 s{SU+2}, 4096', f's_mov_b32 s{SU+3}, 0x00020000',
          f's_lshl_b32 s{sT0}, s{sP}, 11', f's_add_u32 s{sY}, s{sT1}, s{sT0}', f's_add_u32 s{sY}, s{sY}, {YT}',
          f'v_add_u32 v{uE}, s{sT0}, v{vL16}', f'v_add_u32 v{uA}, -16, v{uE}', '',
          f's_cmp_eq_u32 s{sP}, 0', f's_cselect_b32 s{sT1}, -16, 4080', f'v_and_b32 v{u3}, 2, v0', f'v_mul_u32_u24 v{u3}, s{sP}, v{u3}', f'v_lshl_add_u32 v{u3}, v{u3}, 1, s{sT1}',
          f'v_and_b32 v{vSH}, 1, v0', f'v_lshlrev_b32 v{vSH}, 4, v{vSH}',
          f's_mul_i32 s{sUB}, s{sC}, {UCH}', f's_add_u32 s{sT1}, s{sUB}, 16', f'v_add_u32 v{uw}, s{sT1}, v{uE}',
          f's_mul_i32 s{sT1}, s{sP}, {257*16}', f's_add_u32 s{sT1}, s{sT1}, s{sUB}', f'v_and_b32 v{u3w}, 3, v0', f'v_mul_u32_u24 v{u3w}, 4160, v{u3w}', f'v_add_u32 v{u3w}, s{sT1}, v{u3w}',
          f's_mul_i32 s{sKB}, s{sC}, 4608', f's_add_u32 s{sKB}, s{sKB}, {LB}',
          f'v_and_b32 v{m0_}, 15, v0', f'v_add_u32 v{m1_}, 1, v{m0_}', f'v_and_b32 v{m2_}, 3, v{m1_}', f'v_sub_u32 v{m1_}, v{m1_}, v{m2_}',
          f'v_mul_u32_u24 v{m2_}, 4160, v{m2_}', f'v_lshl_add_u32 v{m2_}, v{m1_}, 1, v{m2_}', f'v_lshrrev_b32 v{m1_}, 4, v0', f'v_lshl_add_u32 v{m2_}, v{m1_}, 4, v{m2_}',
          f's_lshl_b32 s{sT1}, s{sP}, 8', f's_add_u32 s{sT1}, s{sT1}, s{sUB}', f'v_add_u32 v{cu0}, s{sT1}, v{m2_}',
          f'v_and_b32 v{m1_}, 1, v{m1_}', f'v_sub_u32 v{m2_}, v{hb}, v{m0_}', f'v_add_u32 v{m2_}, 15, v{m2_}', f'v_mul_u32_u24 v{ck}, 2304, v{m1_}',
          f'v_lshl_add_u32 v{ck}, v{m2_}, 4, v{ck}', f's_lshl_b32 s{sT1}, s{sP}, 7', f's_add_u32 s{sT1}, s{sT1}, s{sKB}', f'v_add_u32 v{ck}, s{sT1}, v{ck}',
          f'v_lshlrev_b32 v{ys}, 9, v{m1_}', f'v_lshl_add_u32 v{ys}, v{m0_}, 5, v{ys}', f'v_lshl_add_u32 v{ys}, v{hb}, 4, v{ys}', f'v_add_u32 v{vL4}, 4096, v{vL16}',
          f'v_and_b32 v{m2_}, 31, v0', f'v_sub_u32 v{m2_}, 255, v{m2_}', f'v_and_b32 v{k1}, 1, v{m2_}', f'v_lshrrev_b32 v{m2_}, 1, v{m2_}',
          f'v_mul_u32_u24 v{k1}, 2304, v{k1}', f'v_lshl_add_u32 v{k1}, v{m2_}, 4, v{k1}', f's_sub_u32 s{sT1}, s{sKB}, 512', f'v_add_u32 v{k1}, s{sT1}, v{k1}',
          f'v_lshlrev_b32 v{m2_}, 8, v{hb}', f'v_sub_u32 v{k1}, v{k1}, v{m2_}', f'v_sub_u32 v{k2}, v{k1}, v{m2_}', f'v_add_u32 v{k2}, -768, v{k2}',
          f'v_mul_u32_u24 v{kz}, 2304, v{m1_}', f'v_lshl_add_u32 v{kz}, v{m0_}, 4, v{kz}', f'v_add_u32 v{kz}, s{sKB}, v{kz}',
          f's_lshl_b32 s{sT1}, s{sW}, 12', f'v_add_u32 v{xc}, s{sT1}, v{vL16}', f'v_xor_b32 v{xq}, 4096, v{xc}',
          f's_lshl_b32 s{sT1}, s{sW}, 13', f's_add_u32 s{sEXT}, s{sT1}, {LEXT}', f's_sub_u32 s{sT1}, s{sEXT}, s{sRING}', f'v_xor_b32 v{vG3}, 64, v{vG2}',
          f'v_add_u32 v{vE2}, s{sT1}, v{vG2}', f'v_add_u32 v{vE3}, s{sT1}, v{vG3}',
          f's_lshl_b32 s{sYF}, s2, 2', f's_add_u32 s{sYF}, s{sYF}, s{sW}', f's_lshl_b32 s{sYF}, s{sYF}, 4', f's_add_u32 s{sYF}, s{sYF}, {YF}']
    grp = [[]]
    for x in ad:
        if x == '' or len(grp[-1]) == 3 + all(y[0] == 's' for y in grp[-1]): grp.append([])
        if x: grp[-1].append(x)
    kk = place([seq(x) for x in grp if x], 11, 0); assert kk[0] < 21, kk; print('ad end', kk)
    ldXF = lambda: I(f'buffer_load_dword v{vXF}, v{vXFa}, {WS}, 0 offen sc1')
    XP = E_('XPS', '27')
    ex[(XP - 5, 1)].append(ldXF); ex[(XP, 3)].append(lambda: poll(ldXF, cmp_flag(vXF)))
    U0 = 40; UU = f's[{SU}:{SU+3}]'
    ul = [f'buffer_load_dwordx4 {V(U0,4)}, v{uA}, {UU}, 0 offen sc1', f'buffer_load_dwordx2 {V(U0+4,2)}, v{uE}, {UU}, 0 offen sc1',
          f'buffer_load_dwordx4 {V(U0+6,4)}, v{uE}, {UU}, 0 offen offset:1008 sc1', f'buffer_load_dwordx2 {V(U0+10,2)}, v{uE}, {UU}, 0 offen offset:1024 sc1',
          f'buffer_load_dwordx4 {V(U0+12,4)}, v{u3}, {UU}, 0 offen sc1']
    F1 = lambda k: 128 + 16*(k % 3)
    gemm(0, F1, lambda k, tb: A(F1(k)+8+4*tb, 4),
         lambda k: [f'ds_read_b128 {A(F1(k)+8+4*tb,4)}, v{vb} offset:{32*k}' for tb, vb in ((0, vB0), (1, vB1))],
         lambda fb: V(CB+16*fb, 16), [(vA0, vA1)], ex)
    a._emit('s_barrier')
    stamp()
    k0 = -2*math.sqrt(2/math.pi)*math.log2(math.e)
    I(f's_mov_b32 s{sK}, {f2u(k0*0.044715)}'); I(f's_mov_b32 s{sK+1}, {f2u(k0)}')
    for x in ul: I(x)
    def copies(d, off):
        c = 164
        def f0(): I(f'ds_write_b128 v{uw}, {V(d,4)} offset:{off}')
        def f1():
            for e in range(4): I(f'v_alignbit_b32 v{c+e}, v{d+e+1}, v{d+e}, 16')
            for e in range(4): I(f'v_mov_b32 v{c+4+e}, v{d+e+1}')
            for e in range(4): I(f'v_alignbit_b32 v{c+8+e}, v{d+e+2}, v{d+e+1}, 16')
        return f0, f1, [seq([f'ds_write_b128 v{uw}, {V(c-4+4*s_,4)} offset:{off + 4160*s_}']) for s_ in range(1, 4)]
    def e_kw():
        I(f's_cmp_eq_u32 s{sP}, 1')
        a.ifelse('KE', seq([f'ds_write_b128 v{k1}, {V(KT,4)} offset:512', f'ds_write_b128 v{kz}, {V(KT+16,4)} offset:2048', f'ds_write_b128 v{kz}, {V(KT+16,4)} offset:2048']),
                 seq([f'ds_write_b128 v{k1}, {V(KT+4,4)}', f'ds_write_b128 v{k2}, {V(KT+8,4)} offset:256', f'ds_write_b128 v{k2}, {V(KT+12,4)}']))
    def e_u3():
        for e in range(4): I(f'v_alignbit_b32 v{176+e}, {"v%d" % (U0+13+e) if e < 3 else 0}, v{U0+12+e}, v{vSH}')
        I('s_mov_b64 exec, 15'); I(f'ds_write_b128 v{u3w}, {V(176,4)}'); I('s_mov_b64 exec, -1')
    ca, cb_ = copies(U0, 0), copies(U0+6, 1024)
    exd = lambda i: [lambda: dma1(38 + i, 0), lambda: dma1(38 + i, 1)]
    gx = {3: [ca[0], cb_[0], ca[1]], 4: ca[2] + [e_kw], 5: [cb_[1]], 6: cb_[2] + [e_u3]}
    for i in range(NEXT): gx[i + E_('EXF', '0')] = exd(i) + gx.get(i + E_('EXF', '0'), [])
    t = 128
    for tb in range(2):
        for sg in range(4):
            x = ACC + 32*tb + 8*sg; Pp = lambda e: V(t+2*e, 2); Xp = lambda e: V(x+2*e, 2)
            for e in range(4): I(f'v_pk_mul_f32 {Pp(e)}, {Xp(e)}, {Xp(e)}')
            for e in range(4): I(f'v_pk_fma_f32 {Pp(e)}, {Pp(e)}, s[{sK}:{sK+1}], s[{sK}:{sK+1}] op_sel:[0,0,1] op_sel_hi:[1,0,1]')
            for e in range(4): I(f'v_pk_mul_f32 {Pp(e)}, {Pp(e)}, {Xp(e)}')
            for e in range(8): I(f'v_exp_f32 v{t+e}, v{t+e}')
            for e in range(4): I(f'v_pk_add_f32 {Pp(e)}, {Pp(e)}, 1.0 op_sel_hi:[1,0]')
            for e in range(8): I(f'v_rcp_f32 v{t+e}, v{t+e}')
            for e in range(4): I(f'v_pk_mul_f32 {Pp(e)}, {Pp(e)}, {Xp(e)}')
            f = 4*tb + sg
            for e in range(4): I(f'v_cvt_pk_bf16_f32 v{HOWN+4*f+e}, v{t+2*e}, v{t+2*e+1}')
            if f == E_('HF0', '7'): a.wait(tk['h0']); flag_store(sHF0)
            tk['h%d' % tb] = I(f'buffer_store_dwordx4 {V(HOWN+4*f,4)}, v{vL16 if tb == 0 else vL4}, {WS}, s{sH} offen offset:{1024*sg} sc1')
            for g_ in gx.get(f, []): g_()
            if f < 7: stamp(4)
    stamp()
    a.barrier()
    stamp()
    if stop == 2:
        I(f's_mul_i32 s{sT0}, s2, 9216'); I(f's_add_u32 s{sT0}, s{sT0}, 0xD00000'); I(f'v_add_u32 v40, {LB}, v{vL16}')
        for i in range(9):
            I(f'ds_read_b128 v[64:67], v40 offset:{1024*i}'); I(f'buffer_store_dwordx4 v[64:67], v{vL16}, {WS}, s{sT0} offen'); I(f's_add_u32 s{sT0}, s{sT0}, 1024')
            a.waitcnt(vm=0)
        fin(); return a
    CA, CBf, CC = [64, 96], [128, 160], 192
    hld = lambda n, f: (lambda: I(f'buffer_load_dwordx4 {A(32*(n-1)+4*f,4)}, v{vL16 if f < 4 else vL4}, {WS}, s{sH+n} offen offset:{1024*(f&3)} sc1'))
    if E_('NOH', '0') in (1, 2): hld = lambda n, f: (lambda: None)
    if E_('NOH', '0') >= 2: poll_ = lambda *x: None
    else: poll_ = poll
    ldH0 = lambda: I(f'buffer_load_dword v{vHF}, v{vHFa}, {WS}, 0 offen sc1')
    ldH1 = lambda: I(f'buffer_load_dword v{vH2}, v{vHFa}, {WS}, 0 offen offset:64 sc1')
    cx = defaultdict(list)
    c_l0, c_p0, c_f1, c_l1, c_p1, hev = E_('CL0', '24'), E_('CP0', '60'), E_('CF1', '30'), E_('CL1', '100'), E_('CP1', '135'), E_('HEV', '3')
    cx[c_l0].append(ldH0); cx[c_p0].append(lambda: (poll_(ldH0, cmp_flag(vHF)), stamp(3)))
    cx[c_f1].append(lambda: (a.wait(tk['h1']), flag_store(sHF0, 64), stamp(3)))
    cx[c_l1].append(ldH1); cx[c_p1].append(lambda: (poll_(ldH1, cmp_flag(vH2)), stamp(3)))
    NPRE = E_('NPRE', '5')
    F2 = lambda k: 208 + 8*(k - 3) if 3 <= k < NPRE else 224 + 8*(k % 3)
    VA2 = [(vG2, vG3), (vE2, vE3)]
    rd2 = gemm(28, F2, None, lambda k: [], None, VA2, None, nstep=0)
    def e_pre(k):
        def f():
            a.wait(dtok[28 + k])
            for x in rd2(k): tk['pre%d' % k] = I(x)
        return f
    def e_pd(k, hh): return lambda: (a.wait(tk['pre%d' % k]), dma1(38 + NEXT + k, hh))
    for k in range(NPRE):
        cx[k if k < 3 else 28 + 2*k].append(e_pre(k))
    for i in range(2*NPRE): cx[(14 + 4*i) if i < 6 else 24 + 4*i].append(e_pd(i // 2, i & 1))
    hq0 = [(n, f) for n in range(1, 7) for f in range(4)]; hq1 = [(n, f+4) for n in range(1, 7) for f in range(4)]
    c = c_p0 + 1
    while c < 144:
        while any(c + d_ in cx for d_ in (0, 1, -1)) and c < 70: c += 1
        if c <= c_p1:
            if hq0: cx[c].append(hld(*hq0.pop(0)))
        else:
            q = hq1 if (not hq0 or hq1[0][0] <= hq0[0][0]) else hq0
            cx[c].append(hld(*q.pop(0)))
        c += hev
    hrest = sorted(hq0 + hq1); print('h loads left', len(hrest))
    def creads(st):
        r = []
        for i in range(8):
            o = 64*st + 512*i
            r.append(f'ds_read_b64 {V(CA[st&1]+4*i,2)}, v{cu0} offset:{o}'); r.append(f'ds_read_b64 {V(CA[st&1]+4*i+2,2)}, v{cu0} offset:{o+8}')
        b = [f'ds_read_b128 {V(CBf[st&1]+4*i,4)}, v{ck} offset:{256*(7-i) + 32*st}' for i in range(8)]
        return r[:2] + b + r[2:]
    for x in creads(0): I(x)
    cg = 0
    for st in range(4):
        nx = creads(st+1) if st < 3 else []
        c = 0
        for i in range(8):
            for cb in range(i, 8):
                d = V(CC+4*cb, 4)
                I(f'v_mfma_f32_16x16x32_bf16 {d}, {V(CA[st&1]+4*i,4)}, {V(CBf[st&1]+4*(cb-i),4)}, {0 if (st == 0 and i == 0) else d}')
                c += 1
                if c >= 4 and nx: I(nx.pop(0))
                for f in cx.get(cg, []): f()
                cg += 1
        assert not nx
    a._emit('s_barrier')
    stamp()
    ex = defaultdict(list)
    E1, T = 128, 160
    def e_cw():
        def w(o):
            def f():
                for q in range(4): tk['cw'] = I(f'ds_write_b128 v{xc}, {V(CC+o+4*q,4)} offset:{1024*q}')
            return f
        I(f's_cmp_eq_u32 s{sP}, 1'); a.ifelse('CS', w(16), w(0))
    def e_ca():
        I(f's_cmp_eq_u32 s{sP}, 1'); a.waitcnt(lg=len(a.lg) - 1 - max(i for i, e in enumerate(a.lg) if e[0] == tk['cr'])) if any(e[0] == tk['cr'] for e in a.lg) else None
        a._emit('s_cbranch_scc1 CA_b'); st = a.snap()
        for e in range(16): I(f'v_add_f32 v{E1+e}, v{E1+e}, v{CC+e}')
        a._emit('s_branch CA_j'); a.label('CA_b'); a.restore(st)
        for e in range(16): I(f'v_add_f32 v{E1+e}, v{E1+e}, v{CC+16+e}')
        a.label('CA_j')
    def e_cr():
        for q in range(4): tk['cr'] = I(f'ds_read_b128 {V(E1+4*q,4)}, v{xq} offset:{1024*q}')
    ex[(-1, 0)].append(e_cw)
    ex[(0, 3)].append(lambda: bar(tk['cw'])); ex[(1, 0)].append(e_cr); ex[(2, 0)].append(e_ca)
    l = chunks([f'v_cvt_pk_bf16_f32 v{T+e}, v{E1+2*e}, v{E1+2*e+1}' for e in range(8)], 4)
    def e_ys(pr):
        def f(): tk['y'] = I(f'buffer_store_dwordx4 {V(T+4*pr,4)}, v{ys}, {WS}, s{sY} offen offset:{1024*pr} sc1')
        return f
    l += [seq([f'v_permlane16_swap_b32 v{T+4*pr+e}, v{T+4*pr+2+e}' for pr in range(2) for e in range(2)]), e_ys(0), e_ys(1)]
    place(l, 2, 1)
    vYF, vYFa, vX, vBD = 14, 15, 16, 19
    B2, DS, YR, XF32, XN, t = 128, 136, 144, 152, 208, 28
    ya, yw, yr, rw = 20, 21, 22, 4
    ldYF = lambda: I(f'buffer_load_dword v{vYF}, v{vYFa}, {WS}, 0 offen sc1')
    ex[(E_('YFS', '8'), 1)].append(lambda: (a.wait(tk['y']), flag_store(sYF)))
    l = [[f's_lshl_b32 s{sT2}, s{sJ}, 1', f's_add_u32 s{sT2}, s{sT2}, s{sP}', f's_lshl_b32 s{sT1}, s{sR}, 1', f's_add_u32 s{sT1}, s{sT1}, s{sC}'],
         [f's_mul_i32 s{sXO}, s{sT1}, {32*896}', f's_lshl_b32 s{sK}, s{sT2}, 6', f's_add_u32 s{sXO}, s{sXO}, s{sK}'],
         [f'v_and_b32 v{vX}, 31, v0', f'v_mul_u32_u24 v{vX}, 896, v{vX}', f'v_lshl_add_u32 v{vX}, v{hb}, 5, v{vX}'],
         [f'v_lshl_add_u32 v{vBD}, v{hb}, 5, s{sK}', f's_lshl_b32 s{sK}, s{sT2}, 10', f's_add_u32 s{sK}, s{sK}, {YF}', f'v_lshl_add_u32 v{vYFa}, v0, 4, s{sK}'],
         [f's_lshl_b32 s{sT2}, s{sT2}, 17', f's_lshl_b32 s{sK}, s{sT1}, 6', f's_add_u32 s{sT2}, s{sT2}, s{sK}', f's_add_u32 s{sT2}, s{sT2}, {YT}'],
         [f'v_lshrrev_b32 v{ya}, 2, v0', f'v_lshlrev_b32 v{ya}, 12, v{ya}', f'v_and_b32 v{yw}, 3, v0', f'v_lshl_add_u32 v{ya}, v{yw}, 4, v{ya}'],
         [f's_lshl_b32 s{sK}, s{sW}, 11', f's_add_u32 s{sK}, s{sK}, {LB}', f'v_add_u32 v{yw}, s{sK}, v{vL16}'],
         [f'v_bfe_u32 v{yr}, v0, 2, 2', f'v_lshl_add_u32 v{yr}, v{hb}, 4, v{yr}', f'v_lshl_add_u32 v{yr}, v{yr}, 6, v{vTR}', f'v_add_u32 v{yr}, s{sK}, v{yr}'],
         [f'v_add_u32 v{rw}, s{sRING}, v{vL16}', f'v_add_u32 v{rw+1}, {LRING}, v{vL16}']]
    for x in (3, 2, 1): l.append([f's_xor_b32 s{sK}, s{sW}, {x}', f's_mul_i32 s{sK}, s{sK}, {NSLOT*2048}', f'v_add_u32 v{rw+x}, s{sK}, v{rw+1}'])
    l[-1].append(f's_add_u32 s{sK}, s{sT2}, 65536')
    for i, f in enumerate(l): ex[(6 + i, 1)].append(seq(f))
    ex[(18, 2)].append(seq([f'global_load_dwordx4 {V(B2+4*q,4)}, v{vBD}, s[30:31] offset:{16*q}' for q in range(2)]))
    ex[(18, 3)].append(seq([f'global_load_dwordx4 {V(DS+4*q,4)}, v{vBD}, s[20:21] offset:{16*q}' for q in range(2)]))
    ex[(E_('YL', '22'), 2)].append(ldYF)
    for i in range(4): ex[(19 + i//2, 3*(i & 1))].append(seq([f'v_accvgpr_read_b32 v{44+4*i+e}, a{192+4*i+e}' for e in range(4)]))
    def e_unp(dst, src): return lambda: [unpack(dst+2*e, dst+2*e+1, src+e) for e in range(2)]
    l = [e_unp(XF32 + 4*i, 44 + 2*i) for i in range(4)] + [e_unp(XN + 4*i, 52 + 2*i) for i in range(4)]
    for i, f in enumerate(l): ex[(21 + i//3, 1 + i % 3)].append(f)
    def e_yl():
        poll(ldYF, cmp_flag(vYF))
        I(f'buffer_load_dwordx4 {V(YR,4)}, v{ya}, {WS}, s{sT2} offen sc1'); I(f'buffer_load_dwordx4 {V(YR+4,4)}, v{ya}, {WS}, s{sK} offen sc1')
    ex[(23, 3)].append(e_yl)
    items = [(4*n - 5, 0, hld(n, f)) for n, f in hrest] + [(s_ - 28 - 7, s_ - 28 - NSLOT - NEXT, (lambda s_=s_, hh=hh: dma1(s_, hh))) for s_ in range(38 + NEXT + NPRE, 56) for hh in range(2)]
    items.sort(key=lambda x: x[0])
    busy = {(3, 2), (4, 0), (4, 2)} if not E_('NOYG', '0') else set()
    VP = E_('VP', '2')
    for sh in range(0, 96, VP):
        k_, mi = divmod(sh, 4)
        if (k_, mi) in busy: continue
        for it in items:
            if it[1] < k_ or (it[1] == k_ and mi >= 2):
                ex[(k_, mi)].insert(0, it[2]); items.remove(it)
                if k_ > it[0] + 3: print('late item', it[:2], k_)
                break
    assert not items, len(items)
    def hfrag(k, tb):
        n, sg = divmod(k, 4)
        return V(HOWN + 16*tb + 4*sg, 4) if n == 0 else A(32*(n-1) + 16*tb + 4*sg, 4)
    FT = 168
    def e_ft(s_):
        def f():
            a.wait(dtok[52 + s_]); ex_, so = slot(52 + s_)
            for fb in (1, 0):
                for o in (0, 2): I(f'ds_read_b64_tr_b16 {V(FT+16*fb+4*s_+o,2)}, v{[(vG2, vG3), (vE2, vE3)][ex_][fb]} offset:{so + 256*o}')
        return f
    for s_ in range(4): ex[(22 + s_//2, s_ & 1)].insert(0, e_ft(s_))
    gemm(28, F2, hfrag, lambda k: [], lambda fb: '0', VA2, ex, nstep=24, npre=NPRE)
    stamp()
    fill = []
    for e in range(8): fill += [f'v_lshlrev_b32 v{t+2*e}, 16, v{DS+e}', f'v_and_b32 v{t+2*e+1}, s{sHI}, v{DS+e}']
    for e in range(16): fill.append(f'v_mul_f32 v{XN+e}, v{XN+e}, v{t+e}')
    for e in range(8): fill += [f'v_lshlrev_b32 v{t+2*e}, 16, v{B2+e}', f'v_and_b32 v{t+2*e+1}, s{sHI}, v{B2+e}']
    prev = None
    for x in (3, 2, 1, 0):
        fb, tb = x & 1, x >> 1; d = V(ACC + 16*x, 16)
        for s_ in range(4):
            I(f'v_mfma_f32_32x32x16_bf16 {d}, {V(FT+16*fb+4*s_,4)}, {hfrag(24+s_, tb)}, {d}')
            if prev and s_ >= 2:
                for q in (2*(s_-2), 2*(s_-2)+1): I(f'ds_write_b128 v{rw}, {V(ACC+16*prev+4*q,4)} offset:{4096*(prev-1) + 1024*q}')
            else:
                for _ in range(5 if prev else 4):
                    if fill: I(fill.pop(0))
        prev = x
    for f in fill: I(f)
    stamp(3)
    a.barrier()
    stamp(3)
    for x in range(1, 4):
        for q in range(4): I(f'ds_read_b128 {V(ACC+16*x+4*q,4)}, v{rw+x} offset:{4096*(x-1) + 1024*q}')
    I(f'ds_write_b128 v{yw}, {V(YR,4)}'); I(f'ds_write_b128 v{yw}, {V(YR+4,4)} offset:1024')
    for q in range(4): I(f'ds_read_b64_tr_b16 {V(YR+2*q,2)}, v{yr} offset:{256*q}')
    I(f's_mov_b32 s{sK}, {f2u(-math.log2(math.e))}')
    for e in range(8): I(f'v_pk_add_f32 {V(ACC+2*e,2)}, {V(ACC+2*e,2)}, {V(t+2*e,2)}')
    for x in range(1, 4):
        for e in range(8): I(f'v_pk_add_f32 {V(ACC+2*e,2)}, {V(ACC+2*e,2)}, {V(ACC+16*x+2*e,2)}')
    for e in range(8): unpack(t+2*e, t+2*e+1, YR+e)
    for e in range(8): I(f'v_pk_add_f32 {V(XN+2*e,2)}, {V(XN+2*e,2)}, {V(t+2*e,2)}')
    OSC = os.environ.get('OSC', '')
    for hf in range(2):
        R8 = range(4*hf, 4*hf+4)
        for e in R8: I(f'v_pk_mul_f32 {V(t+2*e,2)}, {V(ACC+2*e,2)}, s[{sK}:{sK+1}] op_sel_hi:[1,0]')
        for e in range(8*hf, 8*hf+8): I(f'v_exp_f32 v{t+e}, v{t+e}')
        for e in R8: I(f'v_pk_add_f32 {V(t+2*e,2)}, {V(t+2*e,2)}, 1.0 op_sel_hi:[1,0]')
        for e in range(8*hf, 8*hf+8): I(f'v_rcp_f32 v{t+e}, v{t+e}')
        for e in R8: I(f'v_pk_mul_f32 {V(XN+2*e,2)}, {V(XN+2*e,2)}, {V(ACC+2*e,2)}')
        for e in R8: I(f'v_pk_fma_f32 {V(XN+2*e,2)}, {V(XN+2*e,2)}, {V(t+2*e,2)}, {V(XF32+2*e,2)}')
        for e in R8: I(f'v_cvt_pk_bf16_f32 v{YR+e}, v{XN+2*e}, v{XN+2*e+1}')
        I(f'buffer_store_dwordx4 {V(YR+4*hf,4)}, v{vX}, s[{SOUT}:{SOUT+3}], s{sXO} offen offset:{16*hf} {OSC}')
    stamp()
    fin()
    return a

def build(stop=99, stamps=False):
    a = gen(stop, stamps)
    ref = open(f'cdna_kernels/{NAME}.s.ref').read()
    head = ref[:ref.index('; @launch')]
    txt = head + f'; @launch grid=(224,1,1) block=(256,1,1) lds={LEND}\n'
    txt += f'.amdgcn_target "amdgcn-amd-amdhsa--gfx950"\n.text\n.globl {NAME}_kernel\n.p2align 8\n.type {NAME}_kernel,@function\n{NAME}_kernel:\n'
    pre = txt
    tail = 'END:\n    s_endpgm\nEND0:\n    s_waitcnt lgkmcnt(0)\n    s_endpgm\n'
    sz = sizes(pre + a.text() + tail)
    if ALIGN:
        a.out, tot, np_, nn = align(a.out, sz); print('align: residual', tot, 'promoted', np_, 'nops', nn, 'bytes', sum(sz))
    txt += a.text() + tail
    txt += f'''.section .rodata,"a"
.p2align 6
.amdhsa_kernel {NAME}_kernel
  .amdhsa_next_free_vgpr 512
  .amdhsa_next_free_sgpr 102
  .amdhsa_accum_offset 256
  .amdhsa_group_segment_fixed_size 0
  .amdhsa_kernarg_size 136
  .amdhsa_user_sgpr_count 2
  .amdhsa_user_sgpr_kernarg_segment_ptr 1
  .amdhsa_system_sgpr_workgroup_id_x 1
.end_amdhsa_kernel
'''
    return txt, a
if __name__ == '__main__':
    stop = int(sys.argv[2]) if len(sys.argv) > 2 else 99
    stamps = int(sys.argv[3]) if len(sys.argv) > 3 else 0
    txt, a = build(stop, stamps)
    open(sys.argv[1], 'w').write(txt)
    print('instrs', a.n, 'nops', a.nops)
```

```python
import sys, struct, math, os
from collections import defaultdict
sys.path.insert(0, 'work')
from asmlib import *
NAME = 'recurrent_scan__ssm_conv_s4__mixer_channel_mlp__prompt'
def f2u(x): return '0x%08x' % struct.unpack('<I', struct.pack('<f', x))[0]
E_ = lambda k, d: int(os.environ.get(k, d))
LA, LB, LRING, LEND = 0, 69888, 79104, 161024
WR = 17408; LXS = 14592
UCH = 16656; LEXT = 33312
Y2S = 912; NSLOT = 10; NEXT = E_('NEXT', '4')
XNT, YT, HB, FL, STAMP = 0, 0x200000, 0x400000, 0xB00000, 0xC00000
XF, HF, YF = FL, FL + 0x20000, FL + 0x40000
SX, SW1, SW2, SWS, SOUT, SU, SDBG = 40, 44, 48, 52, 56, 60, 64
sJ, sR, sW, sNON, sRING, sT0, sT1, sT2 = 68, 69, 70, 71, 72, 73, 74, 75
sW2 = 76; sH = 83; sK = 90; sXO = 92; sLD = 93; sP = 94; sC = 95; sHI = 3; sST = 96
sXF, sXT, sPF2, sHF0, sY, sKB, sYF, sUB, sEXT, sDM, sRK, sDL, sY8 = 4, 5, 6, 7, 8, 9, 10, 11, 12, 13, 14, 15, 89
vD1, vD2, vA0, vA1, vB0, vB1, vPAR, vL16 = 1, 2, 3, 4, 5, 6, 7, 13
xa, xb, p1, p2, vb1, wy, wx, wxn, wst, wstn, xr, xs = 14, 15, 16, 18, 20, 21, 22, 23, 24, 25, 26, 27
xk, xp, k1, k2, kz, bm = 28, 29, 35, 36, 37, 34
tw, twA, twB, tr, dt = 35, 36, 37, 38, 39
vG2, vTR = 60, 61
HOWN = 224
ALIGN = E_('ALIGN', '1'); LVL = E_('LVL', '1')
WS = f's[{SWS}:{SWS+3}]'

def gen(stop=99, stamps=False):
    a = Asm(); I = a
    nst = [0]; late_ = [0]
    def stamp(lvl=1, pre=None):
        if not stamps or lvl > LVL: return
        if LVL == 4 and lvl == 3 and late_[0]: return
        inf = a.infill; a.infill = True
        if pre is None: I(f's_memtime s[{sST}:{sST+1}]'); a.waitcnt(lg=0)
        else: I(f's_mov_b32 s{sST}, s{pre}')
        I(f'v_mov_b32 v63, s{sST}'); I(f's_lshl_b32 s{sST+2}, s2, 2'); I(f's_add_u32 s{sST+2}, s{sST+2}, s{sW}')
        I(f's_lshl_b32 s{sST+2}, s{sST+2}, 7'); I(f's_add_u32 s{sST+2}, s{sST+2}, {STAMP + 4*nst[0]}')
        I('s_mov_b64 exec, 1'); I(f'buffer_store_dword v63, off, {WS}, s{sST+2}'); I('s_mov_b64 exec, -1')
        nst[0] += 1; a.infill = inf; assert nst[0] <= 30
    def srd(d, b, n):
        I(f's_mov_b32 s{d}, s{b}'); I(f's_mov_b32 s{d+1}, s{b+1}'); I(f's_mov_b32 s{d+2}, {n}'); I(f's_mov_b32 s{d+3}, 0x00020000')
    def fin():
        if stamps:
            I('v_mov_b32 v62, s22'); I('s_memrealtime s[96:97]'); I('v_mov_b32 v63, s96'); I(f's_lshl_b32 s98, s2, 2'); I(f's_add_u32 s98, s98, s{sW}')
            I('s_lshl_b32 s98, s98, 7'); I(f's_add_u32 s98, s98, {STAMP + 120}'); I(f'buffer_store_dwordx2 v[62:63], off, {WS}, s98')
            a.label('PCL'); I('s_getpc_b64 s[96:97]'); I('s_sub_u32 s96, s96, PCL+4-%s_kernel' % NAME); I('s_subb_u32 s97, s97, 0')
            I('v_mov_b32 v62, s96'); I('v_mov_b32 v63, s97'); I('s_mov_b32 s96, 0xCF0000')
            I(f'buffer_store_dwordx2 v[62:63], off, {WS}, s96')
        a.waitcnt(vm=0, lg=0); a._emit('s_endpgm')
    lab = [0]
    def poll(reload, cmp):
        lab[0] += 1; n = f'P{lab[0]}'; inf = a.infill; a.infill = True
        cmp(); a.settle(); a._emit(f's_cbranch_scc0 {n}_ok'); st = a.snap()
        I(f's_mov_b32 s{sST+3}, 0x40000'); a.label(f'{n}_lp')
        reload(); a._emit('s_waitcnt vmcnt(0)'); a.vm = []
        I(f's_sub_u32 s{sST+3}, s{sST+3}, 1'); a._emit(f's_cbranch_scc1 {n}_ok')
        cmp(); a.settle(); a._emit(f's_cbranch_scc1 {n}_lp')
        a.label(f'{n}_ok'); a.restore(st); a.infill = inf
    def cmp_flag(vf):
        def f(): I(f'v_cmp_ne_u32 vcc, s{sNON}, v{vf}'); I('s_and_b64 vcc, vcc, exec')
        return f
    def flag_store(soff, off=0):
        I(f'v_mov_b32 v62, s{sNON}'); I('s_mov_b64 exec, 1')
        I(f'buffer_store_dword v62, off, {WS}, s{soff} offset:{off} sc1'); I('s_mov_b64 exec, -1')
    def unpack(dlo, dhi, src):
        I(f'v_lshlrev_b32 v{dlo}, 16, v{src}'); I(f'v_and_b32 v{dhi}, s{sHI}, v{src}')
    def rne2(x, y, t):
        I(f'v_cvt_pk_bf16_f32 v{t}, v{x}, v{y}'); unpack(x, y, t)
    def bar(*toks):
        a.wait(*toks); a._emit('s_barrier')
    seq = lambda l: (lambda: [I(x) for x in l] and None)
    def chunks(l, n=4): return [seq(l[i:i+n]) for i in range(0, len(l), n)]

    I('s_load_dwordx16 s[4:19], s[0:1], 0'); I('s_load_dwordx16 s[20:35], s[0:1], 64'); I('s_load_dwordx2 s[36:37], s[0:1], 128')
    I('s_cmp_ge_u32 s2, 224'); a._emit('s_cbranch_scc1 END0')
    I('s_getpc_b64 s[98:99]'); a.label('PC0')
    I(f's_lshl_b32 s{sT0}, s2, 11'); I(f's_and_b32 s{sT0}, s{sT0}, 0x4000'); I(f'v_lshl_add_u32 v1, v0, 6, s{sT0}'); I('v_min_u32 v1, END-PC0, v1')
    a.pf('global_load_dword a255, v1, s[98:99]')
    if stamps: I('s_memtime s[100:101]'); I('s_memrealtime s[96:97]')
    rho, c8, hb, q0_, q1_, q2_ = 54, 55, 56, 57, 58, 59
    I(f's_lshl_b32 s{sT0}, s2, 10'); I(f'v_lshl_add_u32 v{q0_}, v0, 2, s{sT0}')
    I('v_lshrrev_b32 v1, 6, v0'); I('v_and_b32 v0, 63, v0'); I(f'v_readfirstlane_b32 s{sW}, v1')
    I(f's_and_b32 s{sT0}, s2, 1'); I(f's_mul_i32 s{sT0}, s{sT0}, 28'); I(f's_lshr_b32 s{sT1}, s2, 3'); I(f's_add_u32 s{sT0}, s{sT0}, s{sT1}')
    I(f's_lshr_b32 s{sJ}, s{sT0}, 3'); I(f's_and_b32 s{sK}, s{sT0}, 7'); I(f's_and_b32 s{sT1}, s2, 6'); I(f's_lshl_b32 s{sT1}, s{sT1}, 2')
    I(f's_add_u32 s{sR}, s{sK}, s{sT1}')
    I(f'v_lshrrev_b32 v{rho}, 3, v0'); I(f'v_and_b32 v{c8}, 7, v0')
    I(f'v_mul_u32_u24 v{xa}, 896, v{rho}'); I(f'v_lshl_add_u32 v{xa}, v{c8}, 4, v{xa}')
    I(f's_lshl_b32 s{sT0}, s{sR}, 2'); I(f's_add_u32 s{sT0}, s{sT0}, s{sW}'); I(f's_mul_i32 s{sT0}, s{sT0}, {16*896}')
    I(f'v_add_u32 v{xa}, s{sT0}, v{xa}'); I(f'v_add_u32 v{xb}, 7168, v{xa}')
    sXC = 76
    I(f's_lshl_b32 s{sXC}, s{sJ}, 7')
    for i in range(1, 7):
        I(f's_add_u32 s{sXC+i}, s{sXC+i-1}, 384'); I(f's_cmp_ge_u32 s{sXC+i}, 896'); I(f's_cselect_b32 s{sT1}, 896, 0'); I(f's_sub_u32 s{sXC+i}, s{sXC+i}, s{sT1}')
    I(f'v_mul_u32_u24 v{vD1}, 3584, v{rho}'); I(f'v_lshl_add_u32 v{p1}, v{c8}, 6, v{vD1}')
    I(f's_lshl_b32 s{sT2}, s{sK}, 2'); I(f's_add_u32 s{sT2}, s{sT2}, s{sW}'); I(f's_mul_i32 s{sT0}, s{sT2}, {14*3584}')
    I(f's_lshl_b32 s{sT1}, s{sJ}, 9'); I(f's_add_u32 s{sT0}, s{sT0}, s{sT1}'); I(f'v_add_u32 v{p1}, s{sT0}, v{p1}')
    I(f's_cmp_ge_u32 s{sK}, 4'); I(f's_cselect_b32 s{sT0}, {(-224*3584) & 0xffffffff}, 0'); I(f's_cselect_b32 s{sT1}, 0, {224*3584}')
    I(f's_add_u32 s{sT0}, s{sT0}, s{sT1}'); I(f'v_add_u32 v{p1+1}, s{sT0}, v{p1}'); I(f's_mov_b32 s{sY8}, {8*3584}')
    I(f's_mov_b32 s{SW1+2}, {448*3584}'); I(f's_mov_b32 s{SW1+3}, 0x00020000')
    I(f's_mov_b32 s{SX+2}, {2048*896}'); I(f's_mov_b32 s{SX+3}, 0x00020000'); I(f's_lshl_b32 s{sT1}, s2, 2')
    for i in range(6): I(f'global_load_dword v{vPAR+i}, v{q0_}, s[{6+2*i}:{7+2*i}]')
    I(f's_load_dword s{sLD}, s[18:19], s{sT1}')
    I(f's_mov_b32 s{SX}, s4'); I(f's_mov_b32 s{SX+1}, s5'); I(f's_mov_b32 s{SW1}, s24'); I(f's_mov_b32 s{SW1+1}, s25')
    X0, X1 = 192, 220
    def wpf(p, S_, so, nm):
        def g():
            I(f's_cmp_lg_u32 s{sJ}, 3'); a._emit(f's_cbranch_scc1 {nm}')
            a._emit(f'buffer_load_dword a255, v{p+1}, s[{S_}:{S_+3}], 0 offen'); a._emit(f'buffer_load_dword a255, v{p+1}, s[{S_}:{S_+3}], s{so} offen')
            a.label(nm)
        return [lambda: a.pf(f'buffer_load_dword a255, v{p}, s[{S_}:{S_+3}], 0 offen'), lambda: a.pf(f'buffer_load_dword a255, v{p}, s[{S_}:{S_+3}], s{so} offen'), g]
    B1R = 176; CB = 144
    src = {'x': [seq([f'buffer_load_dwordx4 {V(X+4*i,4)}, v{v_}, s[{SX}:{SX+3}], s{sXC+i} offen']) for i in range(7) for X, v_ in ((X0, xa), (X1, xb))],
           'f': wpf(p1, SW1, sY8, 'NOPF1'), 'h': wpf(p2, SW2, sPF2, 'NOPF2'),
           'r': [(lambda k=k, hh=hh: dma1(k, hh)) for k in range(NSLOT) for hh in range(2)],
           'b': [seq([f'global_load_dwordx4 {V(B1R+8*fb+4*q,4)}, v{vb1}, s[26:27] offset:{64*fb+16*q}']) for fb in range(2) for q in range(2)]}
    NW = E_('NW', '0'); WB = 192 - 8*NW; WS0 = 56 - NW
    def wld(st_, hh):
        def f():
            n, sg = divmod(st_ - 28, 4)
            I(f's_add_u32 s{sDM}, s{12+n}, {(32*(sg>>1) + 8*(sg&1) + 16*hh)*896}')
            I(f'buffer_load_dwordx4 {A(WB+8*(st_-WS0)+4*hh,4)}, v{vD2}, s[{SW2}:{SW2+3}], s{sDM} offen')
        return f
    src['w'] = [wld(st_, hh) for st_ in list(range(max(48, WS0), 56)) + list(range(WS0, 48)) for hh in range(2)]
    src['r'] = src['r'][:18]; vNON = 57
    ldNON = lambda: I(f'buffer_load_dword v{vNON}, off, s[{SDBG}:{SDBG+3}], 0 sc1')
    src['n'] = [ldNON]
    sched = {}
    for it in os.environ.get('KS', 'p:x6f,0:f2,1:x2,2:x2,3:x2,4:x2,5:h,8:h2,12:b4,15:n,' + ','.join([f'c{i}:r' for i in range(9)] + [f'{17+i}:r' for i in range(9)]) + ''.join(f',{40-len(src["w"])+i}:w' if len(src['w']) - i <= 14 else f',m{i}:w' for i in range(len(src['w'])))).split(','):
        k_, v_ = it.split(':'); sched[k_] = sched.get(k_, []) + [src[c].pop(0) for c, n in re.findall(r'([a-z])(\d*)', v_) for _ in range(int(n or 1))]
    assert not any(src.values()), src
    hk = [0]
    def hook(nm=None):
        for f in sched.pop(nm or str(hk[0]), []): f()
        if not nm: hk[0] += 1
    sched.pop('z', None)
    for f in sched.pop('p'): f()
    I('s_memrealtime s[38:39]')
    if stamps:
        I('s_mov_b32 s22, s96')
        if LVL >= 3: I('s_memtime s[96:97]'); I('s_mov_b32 s23, s96')
    I(f's_mov_b32 s{sHI}, 0xffff0000')
    I(f's_and_b32 s{sP}, s{sW}, 1'); I(f's_lshr_b32 s{sC}, s{sW}, 1'); I(f'v_lshlrev_b32 v{vL16}, 4, v0'); I(f'v_lshrrev_b32 v{hb}, 5, v0')
    I(f's_lshl_b32 s{sRK}, s{sJ}, 7'); srd(SWS, 36, 0x1000000); srd(SDBG, 34, 256); srd(SW2, 28, 1792*896)
    I(f's_or_b32 s{sNON}, s2, s{sW}'); I(f's_cmp_lg_u32 s{sNON}, 0'); a.settle(); a._emit('s_cbranch_scc1 NONCE')
    st = a.snap(); I('s_or_b32 s38, s38, 1'); I('v_mov_b32 v62, s38'); I('s_mov_b64 exec, 1')
    I(f'buffer_store_dword v62, off, s[{SDBG}:{SDBG+3}], 0 sc1'); I('s_mov_b64 exec, -1'); a.settle()
    a.label('NONCE'); a.restore(st)
    I(f'v_lshrrev_b32 v{p2}, 1, v0'); I(f'v_mul_u32_u24 v{p2}, 896, v{p2}'); I(f'v_and_b32 v{q0_}, 1, v0'); I(f'v_lshl_add_u32 v{p2}, v{q0_}, 6, v{p2}')
    I(f's_mul_i32 s{sT0}, s{sT2}, {56*896}'); I(f's_add_u32 s{sT0}, s{sT0}, s{sRK}'); I(f'v_add_u32 v{p2}, s{sT0}, v{p2}')
    I(f's_cmp_ge_u32 s{sK}, 4'); I(f's_cselect_b32 s{sT0}, {(-896*896) & 0xffffffff}, 0'); I(f's_cselect_b32 s{sT1}, 0, {896*896}'); I(f's_add_u32 s{sT0}, s{sT0}, s{sT1}')
    I(f'v_add_u32 v{p2+1}, s{sT0}, v{p2}'); I(f's_mov_b32 s{sPF2}, {32*896}')
    I(f'v_lshrrev_b32 v{q0_}, 2, v0'); I(f'v_and_b32 v{q0_}, 4, v{q0_}'); I(f'v_xor_b32 v{q0_}, v{q0_}, v{c8}'); I(f'v_lshlrev_b32 v{q0_}, 4, v{q0_}')
    I(f'v_mul_u32_u24 v{vD2}, 896, v{rho}'); I(f'v_add_u32 v{vD2}, v{vD2}, v{q0_}')
    I(f's_lshl_b32 s{sT2}, s{sJ}, 2'); I(f's_add_u32 s{sT2}, s{sT2}, s{sW}'); I(f's_lshl_b32 s{sT0}, s{sT2}, 7')
    I(f'v_add3_u32 v{vD1}, s{sT0}, v{vD1}, v{q0_}')
    I(f'v_lshl_add_u32 v{vb1}, v{hb}, 5, s{sT0}')
    I(f's_mul_i32 s{sT0}, s{sW}, {64*896}'); I(f's_add_u32 s{sT0}, s{sT0}, s{sRK}')
    for n in (4, 5, 6):
        I(f's_add_u32 s{sT1}, s{sJ}, {n}'); I(f's_cmp_ge_u32 s{sT1}, 7'); I(f's_cselect_b32 s{12+n}, 7, 0'); I(f's_sub_u32 s{sT1}, s{sT1}, s{12+n}')
        I(f's_mul_i32 s{sT1}, s{sT1}, {256*896}'); I(f's_add_u32 s{12+n}, s{sT1}, s{sT0}')
    I(f's_mul_i32 s{sRING}, s{sW}, {NSLOT*2048}'); I(f's_add_u32 s{sRING}, s{sRING}, {LRING}')
    I(f's_lshl_b32 s{sXF}, s{sJ}, 5'); I(f's_add_u32 s{sXF}, s{sXF}, s{sR}'); I(f's_lshl_b32 s{sXF}, s{sXF}, 4'); I(f's_add_u32 s{sXF}, s{sXF}, {XF}')
    I(f's_lshl_b32 s{sXT}, s{sJ}, 18'); I(f's_lshl_b32 s{sT0}, s{sR}, 7'); I(f's_add_u32 s{sXT}, s{sXT}, s{sT0}'); I(f's_lshl_b32 s{sT0}, s{sW}, 5'); I(f's_add_u32 s{sXT}, s{sXT}, s{sT0}')
    dtok = {}
    def slot(step):
        if step < 28: return 0, (step % NSLOT) * 2048
        q = (step - 28) % (NSLOT + NEXT)
        return (0, ((28 + q) % NSLOT) * 2048) if q < NSLOT else (1, (q - NSLOT) * 2048)
    def dma1(step, hh):
        ex_, so = slot(step)
        I(f's_add_u32 m0, s{sEXT if ex_ else sRING}, {so + hh*1024}')
        if step < 28:
            I(f's_mov_b32 s{sDM}, {(16*step + 8*hh)*3584}')
            dtok[step if hh else -1] = I(f'buffer_load_dwordx4 v{vD1}, s[{SW1}:{SW1+3}], s{sDM} offen lds')
        else:
            n, sg = divmod(step - 28, 4)
            I(f's_add_u32 s{sDM}, s{sW2+n}, {(32*(sg>>1) + 8*(sg&1) + 16*hh)*896}')
            dtok[step if hh else -1] = I(f'buffer_load_dwordx4 v{vD2}, s[{SW2}:{SW2+3}], s{sDM} offen lds')
    g, r4, c4 = q0_, q1_, q2_
    I(f'v_bfe_u32 v{g}, v0, 4, 1'); I(f'v_bfe_u32 v{r4}, v0, 2, 2'); I(f'v_and_b32 v{c4}, 3, v0')
    I(f'v_lshlrev_b32 v{vTR}, 5, v{g}'); I(f'v_lshl_add_u32 v{vTR}, v{c4}, 3, v{vTR}')
    u, w_ = 40, 41
    I(f'v_and_b32 v{u}, 1, v0'); I(f'v_lshlrev_b32 v{u}, 5, v{u}'); I(f'v_lshl_or_b32 v{u}, v{g}, 4, v{u}'); I(f'v_bfe_u32 v{w_}, v0, 1, 1'); I(f'v_lshl_or_b32 v{u}, v{w_}, 3, v{u}')
    I(f'v_bfe_u32 v{w_}, v0, 3, 1'); I(f'v_lshl_or_b32 v{u}, v{w_}, 6, v{u}')
    I(f'v_lshl_add_u32 v{u}, v{r4}, 7, v{u}'); I(f'v_add_u32 v{u}, s{sRING}, v{u}')
    I(f'v_lshl_add_u32 v{vA0}, v{hb}, 10, v{u}'); I(f'v_xor_b32 v{vA1}, 64, v{vA0}')
    I(f's_lshl_b32 s{sT0}, s{sP}, 6'); I(f'v_xor_b32 v{vG2}, s{sT0}, v{vA0}')
    I(f'v_and_b32 v{u}, 15, v0'); I(f'v_mul_u32_u24 v{vB0}, {Y2S}, v{u}'); I(f'v_mul_u32_u24 v{wst}, 144, v{u}'); I(f'v_mul_u32_u24 v{w_}, {WR}, v{g}')
    I(f'v_add_u32 v{vB0}, v{vB0}, v{w_}'); I(f'v_lshl_add_u32 v{vB0}, v{hb}, 4, v{vB0}')
    I(f's_mul_i32 s{sT0}, s{sC}, {2*WR}'); I(f's_sub_u32 s{sT1}, {2*WR}, s{sT0}'); I(f'v_add_u32 v{vB1}, s{sT1}, v{vB0}'); I(f'v_add_u32 v{vB0}, s{sT0}, v{vB0}')
    I(f'v_lshl_add_u32 v{wst}, v{hb}, 5, v{wst}'); I(f's_lshl_b32 s{sT1}, s{sP}, 6'); I(f's_add_u32 s{sT0}, s{sT0}, s{sT1}'); I(f's_add_u32 s{sT0}, s{sT0}, {LXS}')
    I(f'v_mul_u32_u24 v{wstn}, {16*144}, v{g}'); I(f'v_add_u32 v{wstn}, v{wstn}, v{wst}'); I(f'v_add3_u32 v{wst}, v{wst}, v{w_}, s{sT0}')
    I(f's_mul_i32 s{sT0}, s{sC}, {32*144}'); I(f's_add_u32 s{sT0}, s{sT0}, s{sT1}'); I(f's_add_u32 s{sT0}, s{sT0}, {LB}'); I(f'v_add_u32 v{wstn}, s{sT0}, v{wstn}')
    I(f's_mul_i32 s{sT2}, s{sW}, {WR}')
    I(f'v_mul_u32_u24 v{wy}, {Y2S}, v{rho}'); I(f'v_lshl_add_u32 v{wy}, v{c8}, 4, v{wy}'); I(f'v_add_u32 v{wy}, s{sT2}, v{wy}')
    I(f'v_mul_u32_u24 v{wx}, 144, v{rho}'); I(f'v_lshl_add_u32 v{wx}, v{c8}, 4, v{wx}')
    I(f's_mul_i32 s{sT0}, s{sW}, {16*144}'); I(f's_add_u32 s{sT0}, s{sT0}, {LB}'); I(f'v_add_u32 v{wxn}, s{sT0}, v{wx}')
    I(f's_add_u32 s{sT0}, s{sT2}, {LXS}'); I(f'v_add_u32 v{wx}, s{sT0}, v{wx}')
    I(f's_add_u32 s{sT0}, s{sRING}, {9*2048}'); I(f'v_add_u32 v{xk}, s{sT0}, v{vL16}'); I(f's_xor_b32 s{sT1}, s{sW}, 1'); I(f's_mul_i32 s{sT1}, s{sT1}, {NSLOT*2048}')
    I(f's_add_u32 s{sT1}, s{sT1}, {LRING + 9*2048}'); I(f'v_add_u32 v{xp}, s{sT1}, v{vL16}')
    I(f'v_lshl_add_u32 v{xr}, v{g}, 3, v{r4}'); I(f'v_mul_u32_u24 v{xr}, 144, v{xr}'); I(f'v_lshl_add_u32 v{xr}, v{c4}, 3, v{xr}'); I(f'v_lshl_add_u32 v{xr}, v{hb}, 5, v{xr}')
    I(f's_mul_i32 s{sT0}, s{sW}, {16*144}'); I(f's_add_u32 s{sT0}, s{sT0}, {LB}'); I(f'v_add_u32 v{xr}, s{sT0}, v{xr}')
    I(f'v_lshl_add_u32 v{xs}, v{hb}, 4, v{u}'); I(f'v_lshlrev_b32 v{xs}, 12, v{xs}'); I(f'v_lshl_add_u32 v{xs}, v{g}, 4, v{xs}')
    I(f'v_mul_u32_u24 v{tw}, 272, v0'); I(f'v_add_u32 v{tw}, s{sT2}, v{tw}')
    I(f's_lshl_b32 s{sT0}, s{sP}, 5'); I(f'v_add_u32 v{twA}, s{sT0}, v{tw}'); I(f'v_subrev_u32 v{twB}, s{sT0}, v{tw}')
    I(f'v_bfe_u32 v{w_}, v0, 3, 1'); I(f'v_lshl_add_u32 v{w_}, v{hb}, 2, v{w_}'); I(f'v_mul_u32_u24 v{w_}, {8*272}, v{w_}')
    I(f'v_bfe_u32 v{tr}, v0, 2, 1'); I(f'v_lshl_add_u32 v{tr}, v{tr}, 6, v{vTR}'); I(f'v_add3_u32 v{tr}, v{tr}, v{w_}, s{sT2}')
    I(f's_lshl_b32 s{sT1}, s{sC}, 4'); I(f's_lshr_b32 s{sT1}, s{sLD}, s{sT1}'); I(f's_lshl_b32 s{sT1}, s{sT1}, 16')
    I(f'v_mov_b32 v{dt}, {f2u(math.log2(math.e))}'); I(f'v_mul_f32 v{dt}, s{sT1}, v{dt}'); I(f'v_exp_f32 v{dt}, v{dt}')
    I(f'v_cvt_pk_bf16_f32 v{dt}, v{dt}, v{dt}'); I(f'v_lshlrev_b32 v{dt}, 16, v{dt}')
    stamp(1, 100); stamp(3, 23); stamp()

    def cmuls(lst):
        for d, p, q in lst: I(f'v_pk_mul_f32 {V(d,2)}, {V(p,2)}, {V(q,2)} op_sel:[0,0] op_sel_hi:[0,1]')
        for d, p, q in lst: I(f'v_pk_fma_f32 {V(d,2)}, {V(p,2)}, {V(q,2)}, {V(d,2)} op_sel:[1,1,0] op_sel_hi:[1,0,1] neg_lo:[1,0,0]')
    G = lambda b: 64 + 2*b
    Sx = lambda i: 128 + 2*i
    HH = {i: Sx(i) for i in range(9)}
    for n, o in enumerate((256, 258, 260, 262, 264)): HH[o] = 146 + 2*n
    for n, o in enumerate((512, 516, 520, 768, 772, 776)): HH[o] = G(1 + n)
    for n, o in enumerate((1024, 1032, 1280, 1288, 1536, 1544, 1792, 1800)): HH[o] = G(8 + n)
    g1, g256, g2 = 40, 42, 44; er, ph = 46, 47; P = 48; PK = 156; KD = 208
    h0 = [0,1,2,3,4,5,6,7, 512,516,520, 1024,1032,1280,1288, None]
    h1 = [256,256,258,260,260,260,262,264, 768,772,776, 1536,1544,1792,1800, None]
    pkn = [0]; kq = []
    def kread(bt, s_):
        for o, x in ((0, 0), (2, 16*272), (4, 128), (6, 16*272+128)): I(f'ds_read_b64_tr_b16 {A(64*bt+8*s_+o,2)}, v{tr} offset:{x + 272*s_}')
    kmf = lambda bt, s_: (lambda: I(f'v_mfma_f32_32x32x16_bf16 {A(KD,16)}, {A(64*bt+8*s_,4)}, {A(64*bt+8*s_+4,4)}, {0 if (bt == 0 and s_ == 0) else A(KD,16)}'))
    def wr8(srcs, ad, off, neg):
        n_ = pkn[0]; p = PK + 8*(n_ & 1); pkn[0] += 1
        for comp in range(2):
            n = '-' if (neg and comp) else ''
            for e in range(4):
                x, y = srcs[2*e], srcs[2*e+1]
                if y is None: y = x
                I(f'v_cvt_pk_bf16_f32 v{p+4*comp+e}, {n}v{x+comp}, {n}v{y+comp}')
        for comp in range(2): I(f'ds_write_b128 v{ad}, {V(p+4*comp,4)} offset:{off + 64*comp}')
        hook()
    def preamble(bt):
        l = [f'v_lshlrev_b32 v{P+i}, 16, v{vPAR+i}' if bt == 0 else f'v_and_b32 v{P+i}, s{sHI}, v{vPAR+i}' for i in range(6)]
        l += [f'v_mul_f32 v{P+i}, v{dt}, v{P+i}' for i in range(4)]
        l += [f'v_mul_f32 v{er}, {f2u(math.log2(math.e))}, v{P}', f'v_mul_f32 v{ph}, 0.15915494, v{P+1}']
        d, p, q = Sx(0), P+4, P+2
        l += [f'v_mul_f32 v{d}, v{p}, v{q}', f'v_mul_f32 v{d+1}, v{p}, v{q+1}', f'v_fma_f32 v{d}, -v{p+1}, v{q+1}, v{d}', f'v_fma_f32 v{d+1}, v{p+1}, v{q}, v{d+1}']
        T3 = ((g1, 1.0, er, ph), (G(1), 8.0, P, P+1), (g256, 256.0, P+2, P+3))
        for d, sc, m_, f_ in T3[1:]: l += [f'v_mul_f32 v{m_}, {f2u(sc)}, v{er}', f'v_mul_f32 v{f_}, {f2u(sc)}, v{ph}']
        for d, sc, m_, f_ in T3: l += [f'v_fract_f32 v{f_}, v{f_}', f'v_exp_f32 v{m_}, v{m_}']
        for d, sc, m_, f_ in T3: l += [f'v_cos_f32 v{d}, v{f_}', f'v_sin_f32 v{d+1}, v{f_}']
        for d, sc, m_, f_ in T3: l += [f'v_mul_f32 v{d}, v{d}, v{m_}', f'v_mul_f32 v{d+1}, v{d+1}, v{m_}']
        return l
    for bt in range(2):
        l = preamble(bt)
        if bt == 0:
            I(l.pop(0)); stamp(3)
        else:
            kread(0, 0); kread(0, 1)
            for _ in range(E_('PA0', '12')): I(l.pop(0))
            for s_ in range(8):
                kmf(0, s_)()
                if s_ < 6: kread(0, s_ + 2)
                hook(f'a{s_}')
                for _ in range(E_('PA1', '3') + 2*(s_ >= 6)):
                    if l: I(l.pop(0))
            stamp(3)
        for x in l: I(x)
        if bt == 0: I(f'v_mov_b32 v{G(0)}, 1.0'); I(f'v_mov_b32 v{G(0)+1}, 0')
        cmuls([(G(2), G(1), G(1)), (g2, g1, g1), (Sx(1), Sx(0), g1), (Sx(8), Sx(0), G(1))])
        cmuls([(G(3), G(2), G(1)), (G(4), G(2), G(2)), (Sx(2), Sx(0), g2), (Sx(3), Sx(1), g2)])
        cmuls([(G(5), G(4), G(1)), (G(6), G(4), G(2)), (G(7), G(4), G(3)), (G(8), G(4), G(4)), (Sx(4), Sx(2), g2), (Sx(5), Sx(3), g2)])
        wr8([G(b) for b in range(8)], tw, 128, False)
        cmuls([(G(8+i), G(8), G(i)) for i in range(1, 9)] + [(Sx(6), Sx(4), g2), (Sx(7), Sx(5), g2)])
        wr8([G(b) for b in range(8, 16)], tw, 144, False)
        cmuls([(G(16+i), G(16), G(i)) for i in range(1, 8)] + [(HH[256+i], Sx(i), g256) for i in (0, 2, 4, 6, 8)])
        wr8([G(b) for b in range(16, 24)], tw, 160, False)
        cmuls([(G(16+i), G(16), G(i)) for i in range(8, 16)] + [(HH[512+i], HH[256+i], g256) for i in (0, 4, 8)])
        wr8([G(b) for b in range(24, 32)], tw, 176, False)
        cmuls([(HH[768+i], HH[512+i], g256) for i in (0, 4, 8)])
        wr8([HH[o] for o in h0[0:4] + h1[0:4]], twA, 0, True)
        cmuls([(HH[1024+i], HH[768+i], g256) for i in (0, 8)])
        cmuls([(HH[1280+i], HH[1024+i], g256) for i in (0, 8)])
        wr8([HH[o] for o in h0[4:8] + h1[4:8]], twA, 16, True)
        cmuls([(HH[1536+i], HH[1280+i], g256) for i in (0, 8)])
        wr8([HH.get(o) for o in h0[8:12] + h1[8:12]], twB, 32, True)
        cmuls([(HH[1792+i], HH[1536+i], g256) for i in (0, 8)])
        wr8([HH.get(o) for o in h0[12:16] + h1[12:16]], twB, 48, True)
        stamp(1 if bt else 2)
    s0, s1, q0, q1 = 64, 80, 66, 67; ON = 84; mk = 38
    KA = E_('KA', '2')
    for s_ in range(KA): kread(1, s_)
    I(f's_mov_b32 s{mk}, 0x22221111'); I(f's_mov_b32 s{mk+1}, 0x88884444'); I(f'v_mov_b32 v{ON+1}, 0x3f803f80'); I(f'v_cndmask_b32 v{ON}, 0, v{ON+1}, s[{mk}:{mk+1}]')
    for e in range(1, 4): I(f'v_mov_b32 v{ON+e}, v{ON}')
    sm = [f'v_mfma_f32_16x16x32_bf16 {V(D,4)}, {V(ON,4)}, {V(X+4*i,4)}, {0 if i == 0 else V(D,4)}' for i in range(7) for D, X in ((s0, X0), (s1, X1))]
    for x in sm[:6]: I(x)
    hook('c8'); sm = sm[6:]
    for s_ in range(8):
        kmf(1, s_)()
        if s_ + KA < 8: kread(1, s_ + KA)
        if s_ >= 6: I(f'ds_write_b128 v{wx}, {V((X0, X1)[s_-6],4)} offset:{8*144*(s_-6)}')
        hook(f'c{s_}')
        if s_ < 4:
            for _ in range(2): I(sm.pop(0))
        if s_ in (5, 6, 7):
            e = s_ - 4
            I(f's_mov_b32 s{mk}, {"0xffff0000" if e == 1 else 0}'); I(f's_mov_b32 s{mk+1}, {(0, 0, "0xffff", "0xffff0000")[e]}')
            for D in (s0, s1): I(f'v_cndmask_b32 v{D}, v{D}, v{D+e}, s[{mk}:{mk+1}]')
    assert not sm
    stamp(3)
    for r in (q0, q1): I(f'v_mov_b32 v{r}, 0')
    hk[0] = 17
    for i in range(7):
        for e in range(4):
            for X, q_ in ((X0, q0), (X1, q1)): I(f'v_dot2c_f32_bf16 v{q_}, v{X+4*i+e}, v{X+4*i+e}')
        hook()
    stamp(2)
    for m in ('quad_perm:[1,0,3,2]', 'quad_perm:[2,3,0,1]', 'row_half_mirror'):
        for r in (s0, s1, q0, q1): I(f'v_add_f32_dpp v{r}, v{r}, v{r} {m} row_mask:0xf bank_mask:0xf')
    MR0, MR1, AB0, AB1 = 68, 70, 72, 74
    t = 76
    for r in (s0, s1, q0, q1): I(f'v_mul_f32 v{r}, {f2u(1/448)}, v{r}')
    for s_, q_ in ((s0, q0), (s1, q1)): I(f'v_fma_f32 v{q_}, -v{s_}, v{s_}, v{q_}')
    for q_ in (q0, q1): I(f'v_max_f32 v{q_}, 0, v{q_}')
    def rstd(va, vb, oa, ob):
        I(f'v_cvt_pk_bf16_f32 v{t}, v{va}, v{vb}'); unpack(oa, ob, t)
        for o in (oa, ob): I(f'v_add_f32 v{o}, {f2u(1e-5)}, v{o}')
        rne2(oa, ob, t)
        for o in (oa, ob): I(f'v_sqrt_f32 v{o}, v{o}')
        rne2(oa, ob, t)
        for o in (oa, ob): I(f'v_rcp_f32 v{o}, v{o}')
    I(f'v_cvt_pk_bf16_f32 v{t}, v{s0}, v{s1}'); unpack(MR0, MR1, t)
    rstd(q0, q1, MR0+1, MR1+1)
    for s_, q_, M in ((s0, q0, MR0), (s1, q1, MR1)):
        I(f'v_sub_f32 v{s_}, v{s_}, v{M}'); I(f'v_mul_f32 v{q_}, v{q_}, v{M+1}')
    for s_, q_, M in ((s0, q0, MR0), (s1, q1, MR1)):
        I(f'v_mul_f32 v{s_}, v{s_}, v{M+1}'); I(f'v_mul_f32 v{q_}, v{q_}, v{M+1}')
    rne2(s0, s1, t)
    rstd(q0, q1, AB0+1, AB1+1)
    for s_, M, AB in ((s0, MR0, AB0), (s1, MR1, AB1)):
        I(f'v_mul_f32 v{AB}, v{M+1}, v{AB+1}'); I(f'v_mul_f32 v{s_}, v{s_}, v{AB+1}')
    for s_, M, AB in ((s0, MR0, AB0), (s1, MR1, AB1)):
        I(f'v_fma_f32 v{AB+1}, -v{M}, v{AB}, -v{s_}')
    a.flush(); stamp(4)
    for O, M, off, Z in ((X0, MR0, 0, 96), (X1, MR1, 8*144, 100)):
        for e in range(4): unpack(t+2*e, t+2*e+1, O+e)
        for e in range(4): I(f'v_pk_add_f32 {V(t+2*e,2)}, {V(t+2*e,2)}, {V(M,2)} op_sel_hi:[1,0] neg_lo:[0,1] neg_hi:[0,1]')
        for e in range(4): I(f'v_cvt_pk_bf16_f32 v{Z+e}, v{t+2*e}, v{t+2*e+1}')
        for e in range(4): unpack(t+2*e, t+2*e+1, Z+e)
        for e in range(4): I(f'v_pk_mul_f32 {V(t+2*e,2)}, {V(t+2*e,2)}, {V(M,2)} op_sel:[0,1] op_sel_hi:[1,1]')
        for e in range(4): I(f'v_cvt_pk_bf16_f32 v{Z+e}, v{t+2*e}, v{t+2*e+1}')
        I(f'ds_write_b128 v{wxn}, {V(Z,4)} offset:{off}')
        if off:
            for q in range(2):
                for z in range(2): I(f'ds_read_b64_tr_b16 {V(112+4*q+2*z,2)}, v{xr} offset:{64*q + 576*z}')
        hook()
    tk = {}; stamp(4)
    I(f's_add_u32 s{sT0}, s{sXT}, {32*4096}')
    for i in range(7):
        if i in (1, 3, 5): stamp(4)
        I(f'v_add_u32 v{104+i}, s{sXC+i}, v{wy}')
        for n, (X, AB, off) in enumerate(((X0, AB0, 0), (X1, AB1, 8*Y2S))):
            tt = t + 8*n
            for e in range(4): unpack(tt+2*e, tt+2*e+1, X+4*i+e)
            for e in range(4): I(f'v_pk_fma_f32 {V(tt+2*e,2)}, {V(tt+2*e,2)}, {V(AB,2)}, {V(AB,2)} op_sel:[0,0,1] op_sel_hi:[1,0,1]')
            for e in range(4): I(f'v_cvt_pk_bf16_f32 v{X+4*i+e}, v{tt+2*e}, v{tt+2*e+1}')
            I(f'ds_write_b128 v{104+i}, {V(X+4*i,4)} offset:{off}')
            if i == 0: tk['xn'] = I(f'buffer_store_dwordx4 {V(112+4*n,4)}, v{xs}, {WS}, s{(sXT, sT0)[n]} offen sc1')
            hook()
    for q in range(2): I(f'ds_write_b128 v{xk}, {A(KD+8+4*q,4)} offset:{1024*q}')
    assert not sched, sched
    for fb in range(2):
        for e in range(8): unpack(CB+16*fb+2*e, CB+16*fb+2*e+1, B1R+8*fb+e)
    stamp(4)
    def cm(): I(f'v_readfirstlane_b32 s{sNON}, v{vNON}'); I(f's_cmp_eq_u32 s{sNON}, 0')
    poll(ldNON, cm)
    stamp(3)
    a.wait(tk['xn']); a.barrier()
    stamp()
    late_[0] = 1
    ACC = 64
    def gemm(base, FA, bfrag, breads, cinit, va, extra, nstep=28, npre=0, dm=None):
        def reads(k):
            ex_, so = slot(base + k)
            r = [f'ds_read_b64_tr_b16 {A(FA(k)+o,2)}, v{v_} offset:{so+x}' for v_, o0 in ((va[ex_][0], 0), (va[ex_][1], 4)) for o, x in ((o0, 0), (o0+2, 512))]
            b = breads(k)
            return r[:2] + b[:1] + r[2:] + b[1:]
        if nstep == 0: return reads
        for k in range(npre, 2):
            a.wait(dtok[base+k])
            for x in reads(k): I(x)
        for f in extra.get((-1, 0), []): f()
        for k in range(nstep):
            nx = reads(k+2) if npre <= k + 2 < nstep else []
            nd = base + k + NSLOT
            for mi, (fb, tb) in enumerate(((0, 0), (1, 0), (0, 1), (1, 1))):
                d = V(ACC + 32*tb + 16*fb, 16)
                I(f'v_mfma_f32_32x32x16_bf16 {d}, {A(FA(k)+4*fb,4)}, {bfrag(k, tb)}, {cinit(fb) if k == 0 else d}')
                if mi == 0 and nx:
                    a.wait(dtok[base+k+2])
                    for x in nx[:len(nx)//2]: I(x)
                if mi == 1:
                    for x in nx[len(nx)//2:]: I(x)
                if mi >= 2 and not base: dma1(nd, mi - 2)
                for f in extra.get((k, mi), []): f()
            if k in (3, 9, 17): stamp(3)
    ex = defaultdict(list)
    def place(fns, k, mi, skip=()):
        for f in fns:
            while (k, mi) in skip or (k, mi) in ex:
                mi += 1
                if mi == 4: k += 1; mi = 0
            ex[(k, mi)].append(f)
        return k, mi
    def e_xe(i):
        return seq([f'ds_read_b128 {A(192+4*i,4)}, v{(wst, wstn)[i>>1]} offset:{16*(i&1)}'])
    KE, KO, KT = 128, 136, 144
    def e_kr(): I(f'ds_read_b128 {V(KE,4)}, v{xp}'); tk['kr'] = I(f'ds_read_b128 {V(KE+4,4)}, v{xp} offset:1024')
    ex[(0, 0)].append(lambda: flag_store(sXF)); ex[(0, 1)].append(e_kr)
    ex[(2, 0)].append(lambda: (bar(tk['kr']), dma1(9, 0))); ex[(2, 1)].append(lambda: dma1(9, 1))
    for i in range(4): ex[(3 + i, 1)].append(e_xe(i))
    l = chunks([f'v_accvgpr_read_b32 v{KO+e}, a{KD+e}' for e in range(8)], 3)
    l += chunks([f'v_add_f32 v{KE+e}, v{KE+e}, v{KO+e}' for e in range(8)] + [f'v_mov_b32 v{KT+16+e}, 0' for e in range(4)]
              + [f'v_cvt_pk_bf16_f32 v{KT+e}, v{KE+7-2*e}, v{KE+6-2*e}' for e in range(4)]
              + [f'v_cvt_pk_bf16_f32 v{KT+4+e}, v{KE+x}, v{KE+y}' for e, (x, y) in enumerate(((2, 2), (1, 1), (1, 0), (0, 0)))]
              + [f'v_and_b32 v{bm}, 1, v0', f'v_add_u32 v{bm}, -1, v{bm}'], 3)
    l2 = []
    for z, v0_ in enumerate((KE+3, KE+5)):
        tt = KT + 8 + 4*z
        l2 += [f'v_bfi_b32 v{KO}, v{bm}, v{v0_}, v{v0_+1}', f'v_cvt_pk_bf16_f32 v{tt}, v{v0_+1}, v{v0_+1}', f'v_cvt_pk_bf16_f32 v{tt+2}, v{v0_}, v{v0_}',
               f'v_cvt_pk_bf16_f32 v{tt+1}, v{v0_+1}, v{KO}', f'v_mov_b32 v{tt+3}, v{tt+2}']
    place(l + chunks(l2, 3), 2, 2)
    late = []; sA, sB, sD = 38, 39, sXO
    late += [f's_mov_b32 s{SOUT}, s32', f's_mov_b32 s{SOUT+1}, s33', f's_mov_b32 s{SOUT+2}, {2048*896}', f's_mov_b32 s{SOUT+3}, 0x00020000']
    late += [f's_mul_i32 s{sA}, s{sW}, {64*896}', f's_add_u32 s{sA}, s{sA}, s{sRK}', f'v_add_u32 v{vD2}, s{sA}, v{vD2}', f's_mul_i32 s{sB}, s{sR}, 28']
    late += [f's_add_u32 s{sB}, s{sB}, s{sW}', f's_lshl_b32 s{sB}, s{sB}, 13', f's_add_u32 s{sB}, s{sB}, {HB}']
    late = chunks(late, 4)
    for n in range(7):
        late += [seq([f's_add_u32 s{sA}, s{sJ}, {n}', f's_cmp_ge_u32 s{sA}, 7', f's_cselect_b32 s{sD}, 7, 0', f's_sub_u32 s{sA}, s{sA}, s{sD}']),
                 seq([f's_mul_i32 s{sW2+n}, s{sA}, {256*896}', f's_lshl_b32 s{sA}, s{sA}, 15', f's_add_u32 s{sH+n}, s{sA}, s{sB}'])]
    bef = set(ex); kk = place(late, 0, 2); assert kk[0] < 17, kk
    keep1 = set(ex) - bef
    vXF, vXFa, vHF, vHFa, vH2 = 14, 15, 16, 17, 18
    uE, uA, u3, uw, u3w, cu0, ck, ys, vL4 = 19, 20, 21, 22, 23, 24, 25, 26, 27
    xc, xq, vSH, vE2, vE3, vG3 = 28, 29, 30, 31, 32, 33
    m0_, m1_, m2_ = 57, 58, 59
    ad = [f's_lshr_b32 s{sT1}, s2, 5', f's_lshl_b32 s{sT1}, s{sT1}, 9', f's_add_u32 s{sT1}, s{sT1}, {XF}', f'v_and_b32 v{vXFa}, 31, v0',
          f'v_lshl_add_u32 v{vXFa}, v{vXFa}, 4, s{sT1}',
          f's_lshl_b32 s{sT1}, s{sR}, 2', f's_add_u32 s{sT1}, s{sT1}, s{sW}', f's_lshl_b32 s{sT1}, s{sT1}, 10', f's_add_u32 s{sT1}, s{sT1}, {HF}',
          f'v_and_b32 v{vHFa}, 7, v0', f'v_min_u32 v{vHFa}, 6, v{vHFa}', f'v_lshlrev_b32 v{vHFa}, 7, v{vHFa}', f'v_add_u32 v{vHFa}, s{sT1}, v{vHFa}',
          f's_add_u32 s{sHF0}, s{sRK}, s{sT1}',
          f's_lshl_b32 s{sT1}, s2, 1', f's_add_u32 s{sT1}, s{sT1}, s{sC}', f's_lshl_b32 s{sT1}, s{sT1}, 12', '',
          f's_add_u32 s{SU}, s36, s{sT1}', f's_addc_u32 s{SU+1}, s37, 0', f's_mov_b32 s{SU+2}, 4096', f's_mov_b32 s{SU+3}, 0x00020000',
          f's_lshl_b32 s{sT0}, s{sP}, 11', f's_add_u32 s{sY}, s{sT1}, s{sT0}', f's_add_u32 s{sY}, s{sY}, {YT}',
          f'v_add_u32 v{uE}, s{sT0}, v{vL16}', f'v_add_u32 v{uA}, -16, v{uE}', '',
          f's_cmp_eq_u32 s{sP}, 0', f's_cselect_b32 s{sT1}, -16, 4080', f'v_and_b32 v{u3}, 2, v0', f'v_mul_u32_u24 v{u3}, s{sP}, v{u3}', f'v_lshl_add_u32 v{u3}, v{u3}, 1, s{sT1}',
          f'v_and_b32 v{vSH}, 1, v0', f'v_lshlrev_b32 v{vSH}, 4, v{vSH}',
          f's_mul_i32 s{sUB}, s{sC}, {UCH}', f's_add_u32 s{sT1}, s{sUB}, 16', f'v_add_u32 v{uw}, s{sT1}, v{uE}',
          f's_mul_i32 s{sT1}, s{sP}, {257*16}', f's_add_u32 s{sT1}, s{sT1}, s{sUB}', f'v_and_b32 v{u3w}, 3, v0', f'v_mul_u32_u24 v{u3w}, 4160, v{u3w}', f'v_add_u32 v{u3w}, s{sT1}, v{u3w}',
          f's_mul_i32 s{sKB}, s{sC}, 4608', f's_add_u32 s{sKB}, s{sKB}, {LB}',
          f'v_and_b32 v{m0_}, 15, v0', f'v_add_u32 v{m1_}, 1, v{m0_}', f'v_and_b32 v{m2_}, 3, v{m1_}', f'v_sub_u32 v{m1_}, v{m1_}, v{m2_}',
          f'v_mul_u32_u24 v{m2_}, 4160, v{m2_}', f'v_lshl_add_u32 v{m2_}, v{m1_}, 1, v{m2_}', f'v_lshrrev_b32 v{m1_}, 4, v0', f'v_lshl_add_u32 v{m2_}, v{m1_}, 4, v{m2_}',
          f's_lshl_b32 s{sT1}, s{sP}, 8', f's_add_u32 s{sT1}, s{sT1}, s{sUB}', f'v_add_u32 v{cu0}, s{sT1}, v{m2_}',
          f'v_and_b32 v{m1_}, 1, v{m1_}', f'v_sub_u32 v{m2_}, v{hb}, v{m0_}', f'v_add_u32 v{m2_}, 15, v{m2_}', f'v_mul_u32_u24 v{ck}, 2304, v{m1_}',
          f'v_lshl_add_u32 v{ck}, v{m2_}, 4, v{ck}', f's_lshl_b32 s{sT1}, s{sP}, 7', f's_add_u32 s{sT1}, s{sT1}, s{sKB}', f'v_add_u32 v{ck}, s{sT1}, v{ck}',
          f'v_lshlrev_b32 v{ys}, 9, v{m1_}', f'v_lshl_add_u32 v{ys}, v{m0_}, 5, v{ys}', f'v_lshl_add_u32 v{ys}, v{hb}, 4, v{ys}', f'v_add_u32 v{vL4}, 4096, v{vL16}',
          f'v_and_b32 v{m2_}, 31, v0', f'v_sub_u32 v{m2_}, 255, v{m2_}', f'v_and_b32 v{k1}, 1, v{m2_}', f'v_lshrrev_b32 v{m2_}, 1, v{m2_}',
          f'v_mul_u32_u24 v{k1}, 2304, v{k1}', f'v_lshl_add_u32 v{k1}, v{m2_}, 4, v{k1}', f's_sub_u32 s{sT1}, s{sKB}, 512', f'v_add_u32 v{k1}, s{sT1}, v{k1}',
          f'v_lshlrev_b32 v{m2_}, 8, v{hb}', f'v_sub_u32 v{k1}, v{k1}, v{m2_}', f'v_sub_u32 v{k2}, v{k1}, v{m2_}', f'v_add_u32 v{k2}, -768, v{k2}',
          f'v_mul_u32_u24 v{kz}, 2304, v{m1_}', f'v_lshl_add_u32 v{kz}, v{m0_}, 4, v{kz}', f'v_add_u32 v{kz}, s{sKB}, v{kz}',
          f's_lshl_b32 s{sT1}, s{sW}, 12', f'v_add_u32 v{xc}, s{sT1}, v{vL16}', f'v_xor_b32 v{xq}, 4096, v{xc}',
          f's_lshl_b32 s{sT1}, s{sW}, 13', f's_add_u32 s{sEXT}, s{sT1}, {LEXT}', f's_sub_u32 s{sT1}, s{sEXT}, s{sRING}', f'v_xor_b32 v{vG3}, 64, v{vG2}',
          f'v_add_u32 v{vE2}, s{sT1}, v{vG2}', f'v_add_u32 v{vE3}, s{sT1}, v{vG3}',
          f'v_add_u32 v8, s{sRING}, v{vL16}', f'v_add_u32 v9, s{sEXT}, v{vL16}',
          f's_lshl_b32 s{sYF}, s2, 2', f's_add_u32 s{sYF}, s{sYF}, s{sW}', f's_lshl_b32 s{sYF}, s{sYF}, 4', f's_add_u32 s{sYF}, s{sYF}, {YF}']
    grp = [[]]
    for x in ad:
        if x == '' or len(grp[-1]) == 3 + all(y[0] == 's' for y in grp[-1]): grp.append([])
        if x: grp[-1].append(x)
    kk = place([seq(x) for x in grp if x], 11, 0); assert kk[0] < 21, kk; print('ad end', kk)
    ldXF = lambda: I(f'buffer_load_dword v{vXF}, v{vXFa}, {WS}, 0 offen sc1')
    XP = E_('XPS', '27')
    ex[(XP - 5, 1)].append(ldXF); ex[(XP, 3)].append(lambda: poll(ldXF, cmp_flag(vXF)))
    U0 = 40; UU = f's[{SU}:{SU+3}]'
    ul = [f'buffer_load_dwordx4 {V(U0,4)}, v{uA}, {UU}, 0 offen sc1', f'buffer_load_dwordx2 {V(U0+4,2)}, v{uE}, {UU}, 0 offen sc1',
          f'buffer_load_dwordx4 {V(U0+6,4)}, v{uE}, {UU}, 0 offen offset:1008 sc1', f'buffer_load_dwordx2 {V(U0+10,2)}, v{uE}, {UU}, 0 offen offset:1024 sc1',
          f'buffer_load_dwordx4 {V(U0+12,4)}, v{u3}, {UU}, 0 offen sc1']
    F1 = lambda k: 16*(k % 3)
    gemm(0, F1, lambda k, tb: A(F1(k)+8+4*tb, 4),
         lambda k: [f'ds_read_b128 {A(F1(k)+8+4*tb,4)}, v{vb} offset:{32*k}' for tb, vb in ((0, vB0), (1, vB1))],
         lambda fb: V(CB+16*fb, 16), [(vA0, vA1)], ex)
    a._emit('s_barrier')
    stamp()
    k0 = -2*math.sqrt(2/math.pi)*math.log2(math.e)
    I(f's_mov_b32 s{sK}, {f2u(k0*0.044715)}'); I(f's_mov_b32 s{sK+1}, {f2u(k0)}')
    for x in ul: I(x)
    def copies(d, off):
        c = 164
        def f0(): I(f'ds_write_b128 v{uw}, {V(d,4)} offset:{off}')
        def f1():
            for e in range(4): I(f'v_alignbit_b32 v{c+e}, v{d+e+1}, v{d+e}, 16')
            for e in range(4): I(f'v_mov_b32 v{c+4+e}, v{d+e+1}')
            for e in range(4): I(f'v_alignbit_b32 v{c+8+e}, v{d+e+2}, v{d+e+1}, 16')
        return f0, f1, [seq([f'ds_write_b128 v{uw}, {V(c-4+4*s_,4)} offset:{off + 4160*s_}']) for s_ in range(1, 4)]
    def e_kw():
        I(f's_cmp_eq_u32 s{sP}, 1')
        a.ifelse('KE', seq([f'ds_write_b128 v{k1}, {V(KT,4)} offset:512', f'ds_write_b128 v{kz}, {V(KT+16,4)} offset:2048', f'ds_write_b128 v{kz}, {V(KT+16,4)} offset:2048']),
                 seq([f'ds_write_b128 v{k1}, {V(KT+4,4)}', f'ds_write_b128 v{k2}, {V(KT+8,4)} offset:256', f'ds_write_b128 v{k2}, {V(KT+12,4)}']))
    def e_u3():
        for e in range(4): I(f'v_alignbit_b32 v{176+e}, {"v%d" % (U0+13+e) if e < 3 else 0}, v{U0+12+e}, v{vSH}')
        I('s_mov_b64 exec, 15'); I(f'ds_write_b128 v{u3w}, {V(176,4)}'); I('s_mov_b64 exec, -1')
    ca, cb_ = copies(U0, 0), copies(U0+6, 1024)
    exd = lambda i: [lambda: dma1(38 + i, 0), lambda: dma1(38 + i, 1)]
    gx = {3: [ca[0], cb_[0], ca[1]], 4: ca[2] + [e_kw], 5: [cb_[1]], 6: cb_[2] + [e_u3]}
    for i in range(NEXT): gx[i + E_('EXF', '0')] = exd(i) + gx.get(i + E_('EXF', '0'), [])
    t = 128
    for tb in range(2):
        for sg in range(4):
            x = ACC + 32*tb + 8*sg; Pp = lambda e: V(t+2*e, 2); Xp = lambda e: V(x+2*e, 2)
            for e in range(4): I(f'v_pk_mul_f32 {Pp(e)}, {Xp(e)}, {Xp(e)}')
            for e in range(4): I(f'v_pk_fma_f32 {Pp(e)}, {Pp(e)}, s[{sK}:{sK+1}], s[{sK}:{sK+1}] op_sel:[0,0,1] op_sel_hi:[1,0,1]')
            for e in range(4): I(f'v_pk_mul_f32 {Pp(e)}, {Pp(e)}, {Xp(e)}')
            for e in range(8): I(f'v_exp_f32 v{t+e}, v{t+e}')
            for e in range(4): I(f'v_pk_add_f32 {Pp(e)}, {Pp(e)}, 1.0 op_sel_hi:[1,0]')
            for e in range(8): I(f'v_rcp_f32 v{t+e}, v{t+e}')
            for e in range(4): I(f'v_pk_mul_f32 {Pp(e)}, {Pp(e)}, {Xp(e)}')
            f = 4*tb + sg
            for e in range(4): I(f'v_cvt_pk_bf16_f32 v{HOWN+4*f+e}, v{t+2*e}, v{t+2*e+1}')
            if f == E_('HF0', '7'): a.wait(tk['h0']); flag_store(sHF0)
            tk['h%d' % tb] = I(f'buffer_store_dwordx4 {V(HOWN+4*f,4)}, v{vL16 if tb == 0 else vL4}, {WS}, s{sH} offen offset:{1024*sg} sc1')
            for g_ in gx.get(f, []): g_()
            if f < 7: stamp(4)
    stamp()
    a.barrier()
    stamp()
    if stop == 2:
        I(f's_mul_i32 s{sT0}, s2, 9216'); I(f's_add_u32 s{sT0}, s{sT0}, 0xD00000'); I(f'v_add_u32 v40, {LB}, v{vL16}')
        for i in range(9):
            I(f'ds_read_b128 v[64:67], v40 offset:{1024*i}'); I(f'buffer_store_dwordx4 v[64:67], v{vL16}, {WS}, s{sT0} offen'); I(f's_add_u32 s{sT0}, s{sT0}, 1024')
            a.waitcnt(vm=0)
        fin(); return a
    CA, CBf, CC = [64, 96], [128, 160], 192
    hld = lambda n, f: (lambda: I(f'buffer_load_dwordx4 {A(32*(n-1)+4*f,4)}, v{vL16 if f < 4 else vL4}, {WS}, s{sH+n} offen offset:{1024*(f&3)} sc1'))
    if E_('NOH', '0') in (1, 2): hld = lambda n, f: (lambda: None)
    if E_('NOH', '0') >= 2: poll_ = lambda *x: None
    else: poll_ = poll
    ldH0 = lambda: I(f'buffer_load_dword v{vHF}, v{vHFa}, {WS}, 0 offen sc1')
    ldH1 = lambda: I(f'buffer_load_dword v{vH2}, v{vHFa}, {WS}, 0 offen offset:64 sc1')
    cx = defaultdict(list)
    c_l0, c_p0, c_f1, c_l1, c_p1, hev = E_('CL0', '24'), E_('CP0', '60'), E_('CF1', '30'), E_('CL1', '100'), E_('CP1', '135'), E_('HEV', '3')
    cx[c_l0].append(ldH0); cx[c_p0].append(lambda: (poll_(ldH0, cmp_flag(vHF)), stamp(3)))
    cx[c_f1].append(lambda: (a.wait(tk['h1']), flag_store(sHF0, 64), stamp(3)))
    cx[c_l1].append(ldH1); cx[c_p1].append(lambda: (poll_(ldH1, cmp_flag(vH2)), stamp(3)))
    NPRE = E_('NPRE', '5')
    F2 = lambda k: 208 + 8*(k - 3) if 3 <= k < NPRE else 224 + 8*(k % 3)
    VA2 = [(vG2, vG3), (vE2, vE3)]
    rd2 = gemm(28, F2, None, lambda k: [], None, VA2, None, nstep=0)
    def e_pre(k):
        def f():
            a.wait(dtok[28 + k])
            for x in rd2(k): tk['pre%d' % k] = I(x)
        return f
    def e_pd(k, hh): return lambda: (a.wait(tk['pre%d' % k]), dma1(38 + NEXT + k, hh))
    for k in range(NPRE):
        cx[k if k < 3 else 28 + 2*k].append(e_pre(k))
    for i in range(2*NPRE): cx[(14 + 4*i) if i < 6 else 24 + 4*i].append(e_pd(i // 2, i & 1))
    hq0 = [(n, f) for n in range(1, 7) for f in range(4)]; hq1 = [(n, f+4) for n in range(1, 7) for f in range(4)]
    rel = lambda n, f: (WS0 + (32*(n-1) + 4*f - WB)//8 - 44 + 0.5) if 32*(n-1) + 4*f >= WB else 0
    hlate = [x for x in hq0 + hq1 if rel(*x)]; hq0 = [x for x in hq0 if not rel(*x)]; hq1 = [x for x in hq1 if not rel(*x)]
    c = c_p0 + 1
    while c < 144:
        while any(c + d_ in cx for d_ in (0, 1, -1)) and c < 70: c += 1
        if c <= c_p1:
            if hq0: cx[c].append(hld(*hq0.pop(0)))
        else:
            q = hq1 if (not hq0 or hq1[0][0] <= hq0[0][0]) else hq0
            cx[c].append(hld(*q.pop(0)))
        c += hev
    hrest = sorted(hq0 + hq1 + hlate); print('h loads left', len(hrest))
    def creads(st):
        r = []
        for i in range(8):
            o = 64*st + 512*i
            r.append(f'ds_read_b64 {V(CA[st&1]+4*i,2)}, v{cu0} offset:{o}'); r.append(f'ds_read_b64 {V(CA[st&1]+4*i+2,2)}, v{cu0} offset:{o+8}')
        b = [f'ds_read_b128 {V(CBf[st&1]+4*i,4)}, v{ck} offset:{256*(7-i) + 32*st}' for i in range(8)]
        return r[:2] + b + r[2:]
    for x in creads(0): I(x)
    cg = 0
    for st in range(4):
        nx = creads(st+1) if st < 3 else []
        c = 0
        for i in range(8):
            for cb in range(i, 8):
                d = V(CC+4*cb, 4)
                I(f'v_mfma_f32_16x16x32_bf16 {d}, {V(CA[st&1]+4*i,4)}, {V(CBf[st&1]+4*(cb-i),4)}, {0 if (st == 0 and i == 0) else d}')
                c += 1
                if c >= 4 and nx: I(nx.pop(0))
                for f in cx.get(cg, []): f()
                cg += 1
        assert not nx
    a._emit('s_barrier')
    stamp()
    ex = defaultdict(list)
    E1, T = 128, 160
    def e_cw(h_):
        def w(o):
            def f():
                for q in (2*h_, 2*h_+1): tk['cw'] = I(f'ds_write_b128 v{xc}, {V(CC+o+4*q,4)} offset:{1024*q}')
            return f
        return lambda: (I(f's_cmp_eq_u32 s{sP}, 1'), a.ifelse(f'CS{h_}', w(16), w(0)))
    def e_ca(q):
        def f():
            I(f's_cmp_eq_u32 s{sP}, 1'); a.wait(tk['cr%d' % q])
            a._emit(f's_cbranch_scc1 CA{q}_b'); st = a.snap()
            for e in range(4*q, 4*q+4): I(f'v_add_f32 v{E1+e}, v{E1+e}, v{CC+e}')
            a._emit(f's_branch CA{q}_j'); a.label(f'CA{q}_b'); a.restore(st)
            for e in range(4*q, 4*q+4): I(f'v_add_f32 v{E1+e}, v{E1+e}, v{CC+16+e}')
            a.label(f'CA{q}_j')
        return f
    def e_cr():
        for q in range(4): tk['cr%d' % q] = I(f'ds_read_b128 {V(E1+4*q,4)}, v{xq} offset:{1024*q}')
    DCW = E_('DCW', '0')
    if DCW:
        ex[(0, 0)].append(e_cw(0)); ex[(0, 1)].append(e_cw(1)); ex[(1, 0)].append(lambda: (bar(tk['cw']), e_cr()))
        for q in range(4): ex[(2, q)].append(e_ca(q))
    else:
        ex[(-1, 0)].append(e_cw(0)); ex[(-1, 0)].append(e_cw(1)); ex[(0, 2)].append(lambda: (bar(tk['cw']), e_cr()))
        for q in range(4): ex[(1 + (q+2)//4, (q+2) % 4)].append(e_ca(q))
    l = chunks([f'v_cvt_pk_bf16_f32 v{T+e}, v{E1+2*e}, v{E1+2*e+1}' for e in range(8)], 4)
    def e_ys(pr):
        def f(): tk['y'] = I(f'buffer_store_dwordx4 {V(T+4*pr,4)}, v{ys}, {WS}, s{sY} offen offset:{1024*pr} sc1')
        return f
    l += [seq([f'v_permlane16_swap_b32 v{T+4*pr+e}, v{T+4*pr+2+e}' for pr in range(2) for e in range(2)]), e_ys(0), e_ys(1)]
    kk = place(l, 3 if DCW else 2, 0 if DCW else 2); print('ys end', kk)
    vYF, vYFa, vX, vBD = 14, 15, 16, 19
    B2, DS, YR, XF32, XN, t = 128, 136, 144, 152, 208, 28
    ya, yw, yr, rw = 20, 21, 22, 4
    ldYF = lambda: I(f'buffer_load_dword v{vYF}, v{vYFa}, {WS}, 0 offen sc1')
    ex[(E_('YFS', '9'), 1)].append(lambda: (a.wait(tk['y']), flag_store(sYF)))
    l = [[f's_lshl_b32 s{sT2}, s{sJ}, 1', f's_add_u32 s{sT2}, s{sT2}, s{sP}', f's_lshl_b32 s{sT1}, s{sR}, 1', f's_add_u32 s{sT1}, s{sT1}, s{sC}'],
         [f's_mul_i32 s{sXO}, s{sT1}, {32*896}', f's_lshl_b32 s{sK}, s{sT2}, 6', f's_add_u32 s{sXO}, s{sXO}, s{sK}'],
         [f'v_and_b32 v{vX}, 31, v0', f'v_mul_u32_u24 v{vX}, 896, v{vX}', f'v_lshl_add_u32 v{vX}, v{hb}, 5, v{vX}'],
         [f'v_lshl_add_u32 v{vBD}, v{hb}, 5, s{sK}', f's_lshl_b32 s{sK}, s{sT2}, 10', f's_add_u32 s{sK}, s{sK}, {YF}', f'v_lshl_add_u32 v{vYFa}, v0, 4, s{sK}'],
         [f's_lshl_b32 s{sT2}, s{sT2}, 17', f's_lshl_b32 s{sK}, s{sT1}, 6', f's_add_u32 s{sT2}, s{sT2}, s{sK}', f's_add_u32 s{sT2}, s{sT2}, {YT}'],
         [f'v_lshrrev_b32 v{ya}, 2, v0', f'v_lshlrev_b32 v{ya}, 12, v{ya}', f'v_and_b32 v{yw}, 3, v0', f'v_lshl_add_u32 v{ya}, v{yw}, 4, v{ya}'],
         [f's_lshl_b32 s{sK}, s{sW}, 11', f's_add_u32 s{sK}, s{sK}, {LB}', f'v_add_u32 v{yw}, s{sK}, v{vL16}'],
         [f'v_bfe_u32 v{yr}, v0, 2, 2', f'v_lshl_add_u32 v{yr}, v{hb}, 4, v{yr}', f'v_lshl_add_u32 v{yr}, v{yr}, 6, v{vTR}', f'v_add_u32 v{yr}, s{sK}, v{yr}'],
         [f'v_add_u32 v{rw}, s{sRING}, v{vL16}', f'v_add_u32 v{rw+1}, {LRING}, v{vL16}']]
    for x in (3, 2, 1): l.append([f's_xor_b32 s{sK}, s{sW}, {x}', f's_mul_i32 s{sK}, s{sK}, {NSLOT*2048}', f'v_add_u32 v{rw+x}, s{sK}, v{rw+1}'])
    l[-1].append(f's_add_u32 s{sK}, s{sT2}, 65536')
    for i, f in enumerate(l): ex[(6 + i, 1)].append(seq(f))
    ex[(18, 2)].append(seq([f'global_load_dwordx4 {V(B2+4*q,4)}, v{vBD}, s[30:31] offset:{16*q}' for q in range(2)]))
    ex[(18, 3)].append(seq([f'global_load_dwordx4 {V(DS+4*q,4)}, v{vBD}, s[20:21] offset:{16*q}' for q in range(2)]))
    ex[(E_('YL', '21'), 2)].append(ldYF)
    for i in range(4): ex[(19 + i//2, 3*(i & 1))].append(seq([f'v_accvgpr_read_b32 v{44+4*i+e}, a{192+4*i+e}' for e in range(4)]))
    def e_unp(dst, src): return lambda: [unpack(dst+2*e, dst+2*e+1, src+e) for e in range(2)]
    l = [e_unp(XF32 + 4*i, 44 + 2*i) for i in range(4)] + [e_unp(XN + 4*i, 52 + 2*i) for i in range(4)]
    for i, f in enumerate(l): ex[(21 + i//3, 1 + i % 3)].append(f)
    def e_yl():
        poll(ldYF, cmp_flag(vYF))
        I(f'buffer_load_dwordx4 {V(YR,4)}, v{ya}, {WS}, s{sT2} offen sc1'); I(f'buffer_load_dwordx4 {V(YR+4,4)}, v{ya}, {WS}, s{sK} offen sc1')
    YTP = E_('YTP', '11')
    if YTP < 0: ex[(23, 3)].append(e_yl)
    items = [(4*n - 5, rel(n, f), hld(n, f)) for n, f in hrest] + [(s_ - 28 - 7, s_ - 28 - NSLOT - NEXT, (lambda s_=s_, hh=hh: dma1(s_, hh))) for s_ in range(38 + NEXT + NPRE, WS0) for hh in range(2)]
    items.sort(key=lambda x: x[0])
    for s_ in range(WS0, 56):
        dtok[s_] = None; ex_, so = slot(s_)
        for hh in range(2): ex[(s_ - 44, 1 + 2*hh)].insert(0, seq([f'ds_write_b128 v{8+ex_}, {A(WB+8*(s_-WS0)+4*hh,4)} offset:{so + 1024*hh}']))
    busy = ({(0, 0), (3, 2), (4, 0), (4, 2)} if DCW else {(0, 2), (3, 0), (3, 2), (4, 0)}) if not E_('NOYG', '0') else set()
    VP = E_('VP', '2')
    for sh in range(0, 96, VP):
        k_, mi = divmod(sh, 4)
        if (k_, mi) in busy: continue
        for it in items:
            if it[1] < k_ or (it[1] == k_ and mi >= 2):
                ex[(k_, mi)].insert(0, it[2]); items.remove(it)
                if k_ > it[0] + 3: print('late item', it[:2], k_)
                break
    assert not items, len(items)
    def hfrag(k, tb):
        n, sg = divmod(k, 4)
        return V(HOWN + 16*tb + 4*sg, 4) if n == 0 else A(32*(n-1) + 16*tb + 4*sg, 4)
    FT = 168
    def e_ft(s_):
        def f():
            a.wait(dtok[52 + s_]); ex_, so = slot(52 + s_)
            for fb in (1, 0):
                for o in (0, 2): I(f'ds_read_b64_tr_b16 {V(FT+16*fb+4*s_+o,2)}, v{[(vG2, vG3), (vE2, vE3)][ex_][fb]} offset:{so + 256*o}')
        return f
    for s_ in range(4): ex[(22 + s_//2, s_ & 1)].insert(0, e_ft(s_))
    gemm(28, F2, hfrag, lambda k: [], lambda fb: '0', VA2, ex, nstep=24, npre=NPRE)
    stamp()
    fill = []
    for e in range(8): fill += [f'v_lshlrev_b32 v{t+2*e}, 16, v{DS+e}', f'v_and_b32 v{t+2*e+1}, s{sHI}, v{DS+e}']
    for e in range(16): fill.append(f'v_mul_f32 v{XN+e}, v{XN+e}, v{t+e}')
    for e in range(8): fill += [f'v_lshlrev_b32 v{t+2*e}, 16, v{B2+e}', f'v_and_b32 v{t+2*e+1}, s{sHI}, v{B2+e}']
    prev = None; n_ = 0
    for x in (3, 2, 1, 0):
        fb, tb = x & 1, x >> 1; d = V(ACC + 16*x, 16)
        for s_ in range(4):
            I(f'v_mfma_f32_32x32x16_bf16 {d}, {V(FT+16*fb+4*s_,4)}, {hfrag(24+s_, tb)}, {d}')
            if prev:
                for q in ((), (0,), (1,), (2, 3))[s_] if E_('TW', '1') else ((), (), (0, 1), (2, 3))[s_]: I(f'ds_write_b128 v{rw}, {V(ACC+16*prev+4*q,4)} offset:{4096*(prev-1) + 1024*q}')
            if n_ == YTP: e_yl()
            elif not prev or s_ < 3:
                for _ in range((4 if not prev else (5, 3, 3)[s_])):
                    if fill: I(fill.pop(0))
            n_ += 1
        prev = x
    for f in fill: I(f)
    stamp(3)
    a.barrier()
    stamp(3)
    for hf in range(2):
        for x in range(1, 4):
            for q in (2*hf, 2*hf+1): I(f'ds_read_b128 {V(ACC+16*x+4*q,4)}, v{rw+x} offset:{4096*(x-1) + 1024*q}')
    I(f's_mov_b32 s{sK}, {f2u(-math.log2(math.e))}')
    for e in range(8): I(f'v_pk_add_f32 {V(ACC+2*e,2)}, {V(ACC+2*e,2)}, {V(t+2*e,2)}')
    OSC = os.environ.get('OSC', ''); ty = 44
    for hf in range(2):
        R8 = range(4*hf, 4*hf+4)
        for x in range(1, 4):
            for e in R8: I(f'v_pk_add_f32 {V(ACC+2*e,2)}, {V(ACC+2*e,2)}, {V(ACC+16*x+2*e,2)}')
        if hf == E_('YW', '1'):
            I(f'ds_write_b128 v{yw}, {V(YR,4)}'); I(f'ds_write_b128 v{yw}, {V(YR+4,4)} offset:1024')
            for q in range(4): I(f'ds_read_b64_tr_b16 {V(YR+2*q,2)}, v{yr} offset:{256*q}')
        for e in R8: I(f'v_pk_mul_f32 {V(t+2*e,2)}, {V(ACC+2*e,2)}, s[{sK}:{sK+1}] op_sel_hi:[1,0]')
        for e in range(8*hf, 8*hf+8): I(f'v_exp_f32 v{t+e}, v{t+e}')
        for e in R8: I(f'v_pk_add_f32 {V(t+2*e,2)}, {V(t+2*e,2)}, 1.0 op_sel_hi:[1,0]')
        for e in range(8*hf, 8*hf+8): I(f'v_rcp_f32 v{t+e}, v{t+e}')
        for e in R8: I(f'v_pk_mul_f32 {V(t+2*e,2)}, {V(t+2*e,2)}, {V(ACC+2*e,2)}')
    for hf in range(2):
        R8 = range(4*hf, 4*hf+4)
        for e in R8: unpack(ty+2*e, ty+2*e+1, YR+e)
        for e in R8: I(f'v_pk_add_f32 {V(XN+2*e,2)}, {V(XN+2*e,2)}, {V(ty+2*e,2)}')
        for e in R8: I(f'v_pk_fma_f32 {V(XN+2*e,2)}, {V(XN+2*e,2)}, {V(t+2*e,2)}, {V(XF32+2*e,2)}')
        for e in R8: I(f'v_cvt_pk_bf16_f32 v{YR+e}, v{XN+2*e}, v{XN+2*e+1}')
        I(f'buffer_store_dwordx4 {V(YR+4*hf,4)}, v{vX}, s[{SOUT}:{SOUT+3}], s{sXO} offen offset:{16*hf} {OSC}')
    stamp()
    fin()
    return a

def build(stop=99, stamps=False):
    a = gen(stop, stamps)
    ref = open(f'cdna_kernels/{NAME}.s.ref').read()
    head = ref[:ref.index('; @launch')]
    txt = head + f'; @launch grid=(224,1,1) block=(256,1,1) lds={LEND}\n'
    txt += f'.amdgcn_target "amdgcn-amd-amdhsa--gfx950"\n.text\n.globl {NAME}_kernel\n.p2align 8\n.type {NAME}_kernel,@function\n{NAME}_kernel:\n'
    pre = txt
    tail = 'END:\n    s_endpgm\nEND0:\n    s_waitcnt lgkmcnt(0)\n    s_endpgm\n'
    sz = sizes(pre + a.text() + tail)
    if ALIGN:
        a.out, tot, np_, nn = align(a.out, sz); print('align: residual', tot, 'promoted', np_, 'nops', nn, 'bytes', sum(sz))
    txt += a.text() + tail
    txt += f'''.section .rodata,"a"
.p2align 6
.amdhsa_kernel {NAME}_kernel
  .amdhsa_next_free_vgpr 512
  .amdhsa_next_free_sgpr 102
  .amdhsa_accum_offset 256
  .amdhsa_group_segment_fixed_size 0
  .amdhsa_kernarg_size 136
  .amdhsa_user_sgpr_count 2
  .amdhsa_user_sgpr_kernarg_segment_ptr 1
  .amdhsa_system_sgpr_workgroup_id_x 1
.end_amdhsa_kernel
'''
    return txt, a
if __name__ == '__main__':
    stop = int(sys.argv[2]) if len(sys.argv) > 2 else 99
    stamps = int(sys.argv[3]) if len(sys.argv) > 3 else 0
    txt, a = build(stop, stamps)
    open(sys.argv[1], 'w').write(txt)
    print('instrs', a.n, 'nops', a.nops)
```

```python
import sys, struct, math, os
from collections import defaultdict
sys.path.insert(0, 'work')
from asmlib import *
NAME = 'recurrent_scan__ssm_conv_s4__mixer_channel_mlp__prompt'
def f2u(x): return '0x%08x' % struct.unpack('<I', struct.pack('<f', x))[0]
E_ = lambda k, d: int(os.environ.get(k, d))
LA, LB, LRING, LEND = 0, 69888, 79104, 161024
WR = 17408; LXS = 14592
UCH = 16656; LEXT = 33312
Y2S = 912; NSLOT = 10; NEXT = E_('NEXT', '4')
XNT, YT, HB, FL, STAMP = 0, 0x200000, 0x400000, 0xB00000, 0xC00000
XF, HF, YF = FL, FL + 0x20000, FL + 0x40000
SX, SW1, SW2, SWS, SOUT, SU, SDBG = 40, 44, 48, 52, 56, 60, 64
sJ, sR, sW, sNON, sRING, sT0, sT1, sT2 = 68, 69, 70, 71, 72, 73, 74, 75
sW2 = 76; sH = 83; sK = 90; sXO = 92; sLD = 93; sP = 94; sC = 95; sHI = 3; sST = 96
sXF, sXT, sPF2, sHF0, sY, sKB, sYF, sUB, sEXT, sDM, sRK, sDL, sY8 = 4, 5, 6, 7, 8, 9, 10, 11, 12, 13, 14, 15, 89
vD1, vD2, vA0, vA1, vB0, vB1, vPAR, vL16 = 1, 2, 3, 4, 5, 6, 7, 13
xa, xb, p1, p2, vb1, wy, wx, wxn, wst, wstn, xr, xs = 14, 15, 16, 18, 20, 21, 22, 23, 24, 25, 26, 27
xk, xp, k1, k2, kz, bm = 28, 29, 35, 36, 37, 34
tw, twA, twB, tr, dt = 35, 36, 37, 38, 39
vG2, vTR = 60, 61
HOWN = 224
ALIGN = E_('ALIGN', '1'); LVL = E_('LVL', '1')
WS = f's[{SWS}:{SWS+3}]'

def gen(stop=99, stamps=False):
    a = Asm(); I = a
    nst = [0]; late_ = [0]
    def stamp(lvl=1, pre=None):
        if not stamps or lvl > LVL: return
        if LVL == 4 and lvl == 3 and late_[0]: return
        inf = a.infill; a.infill = True
        if pre is None: I(f's_memtime s[{sST}:{sST+1}]'); a.waitcnt(lg=0)
        else: I(f's_mov_b32 s{sST}, s{pre}')
        I(f'v_mov_b32 v63, s{sST}'); I(f's_lshl_b32 s{sST+2}, s2, 2'); I(f's_add_u32 s{sST+2}, s{sST+2}, s{sW}')
        I(f's_lshl_b32 s{sST+2}, s{sST+2}, 7'); I(f's_add_u32 s{sST+2}, s{sST+2}, {STAMP + 4*nst[0]}')
        I('s_mov_b64 exec, 1'); I(f'buffer_store_dword v63, off, {WS}, s{sST+2}'); I('s_mov_b64 exec, -1')
        nst[0] += 1; a.infill = inf; assert nst[0] <= 30
    def srd(d, b, n):
        I(f's_mov_b32 s{d}, s{b}'); I(f's_mov_b32 s{d+1}, s{b+1}'); I(f's_mov_b32 s{d+2}, {n}'); I(f's_mov_b32 s{d+3}, 0x00020000')
    def fin():
        if stamps:
            I('v_mov_b32 v62, s22'); I('s_memrealtime s[96:97]'); I('v_mov_b32 v63, s96'); I(f's_lshl_b32 s98, s2, 2'); I(f's_add_u32 s98, s98, s{sW}')
            I('s_lshl_b32 s98, s98, 7'); I(f's_add_u32 s98, s98, {STAMP + 120}'); I(f'buffer_store_dwordx2 v[62:63], off, {WS}, s98')
            a.label('PCL'); I('s_getpc_b64 s[96:97]'); I('s_sub_u32 s96, s96, PCL+4-%s_kernel' % NAME); I('s_subb_u32 s97, s97, 0')
            I('v_mov_b32 v62, s96'); I('v_mov_b32 v63, s97'); I('s_mov_b32 s96, 0xCF0000')
            I(f'buffer_store_dwordx2 v[62:63], off, {WS}, s96')
        a.waitcnt(vm=0, lg=0); a._emit('s_endpgm')
    lab = [0]
    def poll(reload, cmp):
        lab[0] += 1; n = f'P{lab[0]}'; inf = a.infill; a.infill = True
        cmp(); a.settle(); a._emit(f's_cbranch_scc0 {n}_ok'); st = a.snap()
        I(f's_mov_b32 s{sST+3}, 0x40000'); a.label(f'{n}_lp')
        reload(); a._emit('s_waitcnt vmcnt(0)'); a.vm = []
        I(f's_sub_u32 s{sST+3}, s{sST+3}, 1'); a._emit(f's_cbranch_scc1 {n}_ok')
        cmp(); a.settle(); a._emit(f's_cbranch_scc1 {n}_lp')
        a.label(f'{n}_ok'); a.restore(st); a.infill = inf
    def cmp_flag(vf):
        def f(): I(f'v_cmp_ne_u32 vcc, s{sNON}, v{vf}'); I('s_and_b64 vcc, vcc, exec')
        return f
    def flag_store(soff, off=0):
        I(f'v_mov_b32 v62, s{sNON}'); I('s_mov_b64 exec, 1')
        I(f'buffer_store_dword v62, off, {WS}, s{soff} offset:{off} sc1'); I('s_mov_b64 exec, -1')
    def unpack(dlo, dhi, src):
        I(f'v_lshlrev_b32 v{dlo}, 16, v{src}'); I(f'v_and_b32 v{dhi}, s{sHI}, v{src}')
    def rne2(x, y, t):
        I(f'v_cvt_pk_bf16_f32 v{t}, v{x}, v{y}'); unpack(x, y, t)
    def bar(*toks):
        a.wait(*toks); a._emit('s_barrier')
    seq = lambda l: (lambda: [I(x) for x in l] and None)
    def chunks(l, n=4): return [seq(l[i:i+n]) for i in range(0, len(l), n)]

    I('s_load_dwordx16 s[4:19], s[0:1], 0'); I('s_load_dwordx16 s[20:35], s[0:1], 64'); I('s_load_dwordx2 s[36:37], s[0:1], 128')
    I('s_cmp_ge_u32 s2, 224'); a._emit('s_cbranch_scc1 END0')
    I('s_getpc_b64 s[98:99]'); a.label('PC0')
    I(f's_lshl_b32 s{sT0}, s2, 11'); I(f's_and_b32 s{sT0}, s{sT0}, 0x4000'); I(f'v_lshl_add_u32 v1, v0, 6, s{sT0}'); I('v_min_u32 v1, END-PC0, v1')
    a.pf('global_load_dword a255, v1, s[98:99]')
    if stamps: I('s_memtime s[100:101]'); I('s_memrealtime s[96:97]')
    rho, c8, hb, q0_, q1_, q2_ = 54, 55, 56, 57, 58, 59
    I(f's_lshl_b32 s{sT0}, s2, 10'); I(f'v_lshl_add_u32 v{q0_}, v0, 2, s{sT0}')
    I('v_lshrrev_b32 v1, 6, v0'); I('v_and_b32 v0, 63, v0'); I(f'v_readfirstlane_b32 s{sW}, v1')
    MAP = E_('MAP', '0')
    if MAP:
        I(f's_lshr_b32 s{sT1}, s2, 3'); I(f's_mul_i32 s{sK}, s{sT1}, 37'); I(f's_lshr_b32 s{sK}, s{sK}, 8'); I(f's_mul_i32 s{sT0}, s{sK}, 7')
        I(f's_sub_u32 s{sJ}, s{sT1}, s{sT0}'); I(f's_and_b32 s{sT1}, s2, 7'); I(f's_lshl_b32 s{sT1}, s{sT1}, 2'); I(f's_add_u32 s{sR}, s{sK}, s{sT1}')
    else:
        I(f's_and_b32 s{sT0}, s2, 1'); I(f's_mul_i32 s{sT0}, s{sT0}, 28'); I(f's_lshr_b32 s{sT1}, s2, 3'); I(f's_add_u32 s{sT0}, s{sT0}, s{sT1}')
        I(f's_lshr_b32 s{sJ}, s{sT0}, 3'); I(f's_and_b32 s{sK}, s{sT0}, 7'); I(f's_and_b32 s{sT1}, s2, 6'); I(f's_lshl_b32 s{sT1}, s{sT1}, 2')
        I(f's_add_u32 s{sR}, s{sK}, s{sT1}')
    I(f'v_lshrrev_b32 v{rho}, 3, v0'); I(f'v_and_b32 v{c8}, 7, v0')
    I(f'v_mul_u32_u24 v{xa}, 896, v{rho}'); I(f'v_lshl_add_u32 v{xa}, v{c8}, 4, v{xa}')
    I(f's_lshl_b32 s{sT0}, s{sR}, 2'); I(f's_add_u32 s{sT0}, s{sT0}, s{sW}'); I(f's_mul_i32 s{sT0}, s{sT0}, {16*896}')
    I(f'v_add_u32 v{xa}, s{sT0}, v{xa}'); I(f'v_add_u32 v{xb}, 7168, v{xa}')
    sXC = 76
    I(f's_lshl_b32 s{sXC}, s{sJ}, 7')
    for i in range(1, 7):
        I(f's_add_u32 s{sXC+i}, s{sXC+i-1}, 384'); I(f's_cmp_ge_u32 s{sXC+i}, 896'); I(f's_cselect_b32 s{sT1}, 896, 0'); I(f's_sub_u32 s{sXC+i}, s{sXC+i}, s{sT1}')
    I(f'v_mul_u32_u24 v{vD1}, 3584, v{rho}'); I(f'v_lshl_add_u32 v{p1}, v{c8}, 6, v{vD1}')
    assert not MAP
    PFO = E_('PFO', '0')
    if PFO:
        I(f's_lshl_b32 s{sT2}, s{sK}, 2'); I(f's_add_u32 s{sT2}, s{sT2}, s{sW}'); I(f's_mul_i32 s{sT0}, s{sT2}, {14*3584}')
        I(f's_lshl_b32 s{sT1}, s{sJ}, 9'); I(f's_add_u32 s{sT0}, s{sT0}, s{sT1}'); I(f'v_add_u32 v{p1}, s{sT0}, v{p1}')
        I(f's_cmp_ge_u32 s{sK}, 4'); I(f's_cselect_b32 s{sT0}, {(-224*3584) & 0xffffffff}, 0'); I(f's_cselect_b32 s{sT1}, 0, {224*3584}')
        I(f's_add_u32 s{sT0}, s{sT0}, s{sT1}'); I(f'v_add_u32 v{p1+1}, s{sT0}, v{p1}'); I(f's_mov_b32 s{sY8}, {8*3584}')
    else:
        sQ, sJS = 38, 39
        I(f's_lshr_b32 s{sT1}, s2, 3'); I(f's_mul_i32 s{sJS}, s{sT1}, 37'); I(f's_lshr_b32 s{sJS}, s{sJS}, 8'); I(f's_mul_i32 s{sT0}, s{sJS}, 7')
        I(f's_sub_u32 s{sT1}, s{sT1}, s{sT0}'); I(f's_lshl_b32 s{sT1}, s{sT1}, 2'); I(f's_add_u32 s{sQ}, s{sT1}, s{sW}')
        I(f's_and_b32 s{sT0}, s2, 1'); I(f's_mul_i32 s{sT0}, s{sT0}, 3'); I(f's_add_u32 s{sJS}, s{sJS}, s{sT0}')
        I(f's_mul_i32 s{sT0}, s{sQ}, {8*3584}'); I(f's_lshl_b32 s{sT1}, s{sJS}, 9'); I(f's_add_u32 s{sT0}, s{sT0}, s{sT1}'); I(f'v_add_u32 v{p1}, s{sT0}, v{p1}')
        I(f's_mul_i32 s{sT0}, s{sQ}, {32*896}'); I(f's_lshl_b32 s{sT1}, s{sJS}, 7'); I(f's_add_u32 s{sT2}, s{sT0}, s{sT1}'); I(f's_mov_b32 s{sY8}, {224*3584}')
    I(f's_mov_b32 s{SW1+2}, {448*3584}'); I(f's_mov_b32 s{SW1+3}, 0x00020000')
    I(f's_mov_b32 s{SX+2}, {2048*896}'); I(f's_mov_b32 s{SX+3}, 0x00020000'); I(f's_lshl_b32 s{sT1}, s2, 2')
    for i in range(6): I(f'global_load_dword v{vPAR+i}, v{q0_}, s[{6+2*i}:{7+2*i}]')
    I(f's_load_dword s{sLD}, s[18:19], s{sT1}')
    I(f's_mov_b32 s{SX}, s4'); I(f's_mov_b32 s{SX+1}, s5'); I(f's_mov_b32 s{SW1}, s24'); I(f's_mov_b32 s{SW1+1}, s25')
    X0, X1 = 192, 220
    if PFO:
        def wpf(p, S_, so, nm):
            def g():
                I(f's_cmp_lg_u32 s{sJ}, 3'); a._emit(f's_cbranch_scc1 {nm}')
                a._emit(f'buffer_load_dword a255, v{p+1}, s[{S_}:{S_+3}], 0 offen'); a._emit(f'buffer_load_dword a255, v{p+1}, s[{S_}:{S_+3}], s{so} offen')
                a.label(nm)
            return [lambda: a.pf(f'buffer_load_dword a255, v{p}, s[{S_}:{S_+3}], 0 offen'), lambda: a.pf(f'buffer_load_dword a255, v{p}, s[{S_}:{S_+3}], s{so} offen'), g]
    else:
        def wpf(p, S_, so, nm): return [(lambda o=o: a.pf(f'buffer_load_dword a255, v{p}, s[{S_}:{S_+3}], {o} offen')) for o in ('0', f's{so}')]
    B1R = 176; CB = 144
    src = {'x': [seq([f'buffer_load_dwordx4 {V(X+4*i,4)}, v{v_}, s[{SX}:{SX+3}], s{sXC+i} offen']) for i in range(7) for X, v_ in ((X0, xa), (X1, xb))],
           'f': wpf(p1, SW1, sY8, 'NOPF1'), 'h': wpf(p2, SW2, sPF2, 'NOPF2'),
           'r': [(lambda k=k, hh=hh: dma1(k, hh)) for k in range(NSLOT) for hh in range(2)],
           'b': [seq([f'global_load_dwordx4 {V(B1R+8*fb+4*q,4)}, v{vb1}, s[26:27] offset:{64*fb+16*q}']) for fb in range(2) for q in range(2)]}
    NW = E_('NW', '9'); WB = 192 - 8*NW; WS0 = 56 - NW
    def wld(st_, hh):
        def f():
            n, sg = divmod(st_ - 28, 4)
            I(f's_add_u32 s{sDM}, s{sW2+n if WL else 12+n}, {(32*(sg>>1) + 8*(sg&1) + 16*hh)*896}')
            I(f'buffer_load_dwordx4 {A(WB+8*(st_-WS0)+4*hh,4)}, v{vD2}, s[{SW2}:{SW2+3}], s{sDM} offen')
        return f
    WL = E_('WL', '1')
    src['w'] = [] if WL else [wld(st_, hh) for st_ in list(range(max(48, WS0), 56)) + list(range(WS0, 48)) for hh in range(2)]
    src['r'] = src['r'][:18]; vNON = 57
    ldNON = lambda: I(f'buffer_load_dword v{vNON}, off, s[{SDBG}:{SDBG+3}], 0 sc1')
    src['n'] = [ldNON]
    sched = {}
    for it in os.environ.get('KS', ('p:x6f,0:f,1:x,2:fx,3:x,4:x,5:x,6:x,7:x,a2:x,a6:h,9:h2,12:b4,15:n,' if PFO else 'p:x6f,0:f,1:x,2:x,3:x,4:x,5:x,6:x,7:x,a2:x,a6:h,10:h,12:b4,15:n,') + ','.join([f'{i}:r' for i in (11,13,14)]+[f'c{i}:r' for i in range(9)]+[f'{17+i}:r' for i in (0,1,3,5,7,8)]) + ''.join(f',{40-len(src["w"])+i}:w' if len(src['w']) - i <= 14 else f',m{i}:w' for i in range(len(src['w'])))).split(','):
        k_, v_ = it.split(':'); sched[k_] = sched.get(k_, []) + [src[c].pop(0) for c, n in re.findall(r'([a-z])(\d*)', v_) for _ in range(int(n or 1))]
    assert not any(src.values()), src
    hk = [0]
    def hook(nm=None):
        for f in sched.pop(nm or str(hk[0]), []): f()
        if not nm: hk[0] += 1
    sched.pop('z', None)
    for f in sched.pop('p'): f()
    I('s_memrealtime s[38:39]')
    if stamps:
        I('s_mov_b32 s22, s96')
        if LVL >= 3: I('s_memtime s[96:97]'); I('s_mov_b32 s23, s96')
    I(f's_mov_b32 s{sHI}, 0xffff0000')
    I(f's_and_b32 s{sP}, s{sW}, 1'); I(f's_lshr_b32 s{sC}, s{sW}, 1'); I(f'v_lshlrev_b32 v{vL16}, 4, v0'); I(f'v_lshrrev_b32 v{hb}, 5, v0')
    I(f's_lshl_b32 s{sRK}, s{sJ}, 7'); srd(SWS, 36, 0x1000000); srd(SDBG, 34, 256); srd(SW2, 28, 1792*896)
    I(f's_or_b32 s{sNON}, s2, s{sW}'); I(f's_cmp_lg_u32 s{sNON}, 0'); a.settle(); a._emit('s_cbranch_scc1 NONCE')
    st = a.snap(); I('s_or_b32 s38, s38, 1'); I('v_mov_b32 v62, s38'); I('s_mov_b64 exec, 1')
    I(f'buffer_store_dword v62, off, s[{SDBG}:{SDBG+3}], 0 sc1'); I('s_mov_b64 exec, -1'); a.settle()
    a.label('NONCE'); a.restore(st)
    I(f'v_lshrrev_b32 v{p2}, 1, v0'); I(f'v_mul_u32_u24 v{p2}, 896, v{p2}'); I(f'v_and_b32 v{q0_}, 1, v0'); I(f'v_lshl_add_u32 v{p2}, v{q0_}, 6, v{p2}')
    if PFO:
        I(f's_mul_i32 s{sT0}, s{sT2}, {56*896}'); I(f's_add_u32 s{sT0}, s{sT0}, s{sRK}'); I(f'v_add_u32 v{p2}, s{sT0}, v{p2}')
        I(f's_cmp_ge_u32 s{sK}, 4'); I(f's_cselect_b32 s{sT0}, {(-896*896) & 0xffffffff}, 0'); I(f's_cselect_b32 s{sT1}, 0, {896*896}'); I(f's_add_u32 s{sT0}, s{sT0}, s{sT1}')
        I(f'v_add_u32 v{p2+1}, s{sT0}, v{p2}'); I(f's_mov_b32 s{sPF2}, {32*896}')
    else:
        I(f'v_add_u32 v{p2}, s{sT2}, v{p2}'); I(f's_mov_b32 s{sPF2}, {896*896}')
    I(f'v_lshrrev_b32 v{q0_}, 2, v0'); I(f'v_and_b32 v{q0_}, 4, v{q0_}'); I(f'v_xor_b32 v{q0_}, v{q0_}, v{c8}'); I(f'v_lshlrev_b32 v{q0_}, 4, v{q0_}')
    I(f'v_mul_u32_u24 v{vD2}, 896, v{rho}'); I(f'v_add_u32 v{vD2}, v{vD2}, v{q0_}')
    I(f's_lshl_b32 s{sT2}, s{sJ}, 2'); I(f's_add_u32 s{sT2}, s{sT2}, s{sW}'); I(f's_lshl_b32 s{sT0}, s{sT2}, 7')
    I(f'v_add3_u32 v{vD1}, s{sT0}, v{vD1}, v{q0_}')
    I(f'v_lshl_add_u32 v{vb1}, v{hb}, 5, s{sT0}')
    I(f's_mul_i32 s{sT0}, s{sW}, {64*896}'); I(f's_add_u32 s{sT0}, s{sT0}, s{sRK}')
    for n in ((4, 5, 6) if not WL else ()):
        I(f's_add_u32 s{sT1}, s{sJ}, {n}'); I(f's_cmp_ge_u32 s{sT1}, 7'); I(f's_cselect_b32 s{12+n}, 7, 0'); I(f's_sub_u32 s{sT1}, s{sT1}, s{12+n}')
        I(f's_mul_i32 s{sT1}, s{sT1}, {256*896}'); I(f's_add_u32 s{12+n}, s{sT1}, s{sT0}')
    I(f's_mul_i32 s{sRING}, s{sW}, {NSLOT*2048}'); I(f's_add_u32 s{sRING}, s{sRING}, {LRING}')
    I(f's_lshl_b32 s{sXF}, s{sJ}, 5'); I(f's_add_u32 s{sXF}, s{sXF}, s{sR}'); I(f's_lshl_b32 s{sXF}, s{sXF}, 4'); I(f's_add_u32 s{sXF}, s{sXF}, {XF}')
    I(f's_lshl_b32 s{sXT}, s{sJ}, 18'); I(f's_lshl_b32 s{sT0}, s{sR}, 7'); I(f's_add_u32 s{sXT}, s{sXT}, s{sT0}'); I(f's_lshl_b32 s{sT0}, s{sW}, 5'); I(f's_add_u32 s{sXT}, s{sXT}, s{sT0}')
    dtok = {}
    def slot(step):
        if step < 28: return 0, (step % NSLOT) * 2048
        q = (step - 28) % (NSLOT + NEXT)
        return (0, ((28 + q) % NSLOT) * 2048) if q < NSLOT else (1, (q - NSLOT) * 2048)
    def dma1(step, hh):
        ex_, so = slot(step)
        I(f's_add_u32 m0, s{sEXT if ex_ else sRING}, {so + hh*1024}')
        if step < 28:
            I(f's_mov_b32 s{sDM}, {(16*step + 8*hh)*3584}')
            dtok[step if hh else -1] = I(f'buffer_load_dwordx4 v{vD1}, s[{SW1}:{SW1+3}], s{sDM} offen lds')
        else:
            n, sg = divmod(step - 28, 4)
            I(f's_add_u32 s{sDM}, s{sW2+n}, {(32*(sg>>1) + 8*(sg&1) + 16*hh)*896}')
            dtok[step if hh else -1] = I(f'buffer_load_dwordx4 v{vD2}, s[{SW2}:{SW2+3}], s{sDM} offen lds')
    g, r4, c4 = q0_, q1_, q2_
    I(f'v_bfe_u32 v{g}, v0, 4, 1'); I(f'v_bfe_u32 v{r4}, v0, 2, 2'); I(f'v_and_b32 v{c4}, 3, v0')
    I(f'v_lshlrev_b32 v{vTR}, 5, v{g}'); I(f'v_lshl_add_u32 v{vTR}, v{c4}, 3, v{vTR}')
    u, w_ = 40, 41
    I(f'v_and_b32 v{u}, 1, v0'); I(f'v_lshlrev_b32 v{u}, 5, v{u}'); I(f'v_lshl_or_b32 v{u}, v{g}, 4, v{u}'); I(f'v_bfe_u32 v{w_}, v0, 1, 1'); I(f'v_lshl_or_b32 v{u}, v{w_}, 3, v{u}')
    I(f'v_bfe_u32 v{w_}, v0, 3, 1'); I(f'v_lshl_or_b32 v{u}, v{w_}, 6, v{u}')
    I(f'v_lshl_add_u32 v{u}, v{r4}, 7, v{u}'); I(f'v_add_u32 v{u}, s{sRING}, v{u}')
    I(f'v_lshl_add_u32 v{vA0}, v{hb}, 10, v{u}'); I(f'v_xor_b32 v{vA1}, 64, v{vA0}')
    I(f's_lshl_b32 s{sT0}, s{sP}, 6'); I(f'v_xor_b32 v{vG2}, s{sT0}, v{vA0}')
    I(f'v_and_b32 v{u}, 15, v0'); I(f'v_mul_u32_u24 v{vB0}, {Y2S}, v{u}'); I(f'v_mul_u32_u24 v{wst}, 144, v{u}'); I(f'v_mul_u32_u24 v{w_}, {WR}, v{g}')
    I(f'v_add_u32 v{vB0}, v{vB0}, v{w_}'); I(f'v_lshl_add_u32 v{vB0}, v{hb}, 4, v{vB0}')
    I(f's_mul_i32 s{sT0}, s{sC}, {2*WR}'); I(f's_sub_u32 s{sT1}, {2*WR}, s{sT0}'); I(f'v_add_u32 v{vB1}, s{sT1}, v{vB0}'); I(f'v_add_u32 v{vB0}, s{sT0}, v{vB0}')
    I(f'v_lshl_add_u32 v{wst}, v{hb}, 5, v{wst}'); I(f's_lshl_b32 s{sT1}, s{sP}, 6'); I(f's_add_u32 s{sT0}, s{sT0}, s{sT1}'); I(f's_add_u32 s{sT0}, s{sT0}, {LXS}')
    I(f'v_mul_u32_u24 v{wstn}, {16*144}, v{g}'); I(f'v_add_u32 v{wstn}, v{wstn}, v{wst}'); I(f'v_add3_u32 v{wst}, v{wst}, v{w_}, s{sT0}')
    I(f's_mul_i32 s{sT0}, s{sC}, {32*144}'); I(f's_add_u32 s{sT0}, s{sT0}, s{sT1}'); I(f's_add_u32 s{sT0}, s{sT0}, {LB}'); I(f'v_add_u32 v{wstn}, s{sT0}, v{wstn}')
    I(f's_mul_i32 s{sT2}, s{sW}, {WR}')
    I(f'v_mul_u32_u24 v{wy}, {Y2S}, v{rho}'); I(f'v_lshl_add_u32 v{wy}, v{c8}, 4, v{wy}'); I(f'v_add_u32 v{wy}, s{sT2}, v{wy}')
    I(f'v_mul_u32_u24 v{wx}, 144, v{rho}'); I(f'v_lshl_add_u32 v{wx}, v{c8}, 4, v{wx}')
    I(f's_mul_i32 s{sT0}, s{sW}, {16*144}'); I(f's_add_u32 s{sT0}, s{sT0}, {LB}'); I(f'v_add_u32 v{wxn}, s{sT0}, v{wx}')
    I(f's_add_u32 s{sT0}, s{sT2}, {LXS}'); I(f'v_add_u32 v{wx}, s{sT0}, v{wx}')
    I(f's_add_u32 s{sT0}, s{sRING}, {9*2048}'); I(f'v_add_u32 v{xk}, s{sT0}, v{vL16}'); I(f's_xor_b32 s{sT1}, s{sW}, 1'); I(f's_mul_i32 s{sT1}, s{sT1}, {NSLOT*2048}')
    I(f's_add_u32 s{sT1}, s{sT1}, {LRING + 9*2048}'); I(f'v_add_u32 v{xp}, s{sT1}, v{vL16}')
    I(f'v_lshl_add_u32 v{xr}, v{g}, 3, v{r4}'); I(f'v_mul_u32_u24 v{xr}, 144, v{xr}'); I(f'v_lshl_add_u32 v{xr}, v{c4}, 3, v{xr}'); I(f'v_lshl_add_u32 v{xr}, v{hb}, 5, v{xr}')
    I(f's_mul_i32 s{sT0}, s{sW}, {16*144}'); I(f's_add_u32 s{sT0}, s{sT0}, {LB}'); I(f'v_add_u32 v{xr}, s{sT0}, v{xr}')
    I(f'v_lshl_add_u32 v{xs}, v{hb}, 4, v{u}'); I(f'v_lshlrev_b32 v{xs}, 12, v{xs}'); I(f'v_lshl_add_u32 v{xs}, v{g}, 4, v{xs}')
    I(f'v_mul_u32_u24 v{tw}, 272, v0'); I(f'v_add_u32 v{tw}, s{sT2}, v{tw}')
    I(f's_lshl_b32 s{sT0}, s{sP}, 5'); I(f'v_add_u32 v{twA}, s{sT0}, v{tw}'); I(f'v_subrev_u32 v{twB}, s{sT0}, v{tw}')
    I(f'v_bfe_u32 v{w_}, v0, 3, 1'); I(f'v_lshl_add_u32 v{w_}, v{hb}, 2, v{w_}'); I(f'v_mul_u32_u24 v{w_}, {8*272}, v{w_}')
    I(f'v_bfe_u32 v{tr}, v0, 2, 1'); I(f'v_lshl_add_u32 v{tr}, v{tr}, 6, v{vTR}'); I(f'v_add3_u32 v{tr}, v{tr}, v{w_}, s{sT2}')
    I(f's_lshl_b32 s{sT1}, s{sC}, 4'); I(f's_lshr_b32 s{sT1}, s{sLD}, s{sT1}'); I(f's_lshl_b32 s{sT1}, s{sT1}, 16')
    I(f'v_mov_b32 v{dt}, {f2u(math.log2(math.e))}'); I(f'v_mul_f32 v{dt}, s{sT1}, v{dt}'); I(f'v_exp_f32 v{dt}, v{dt}')
    I(f'v_cvt_pk_bf16_f32 v{dt}, v{dt}, v{dt}'); I(f'v_lshlrev_b32 v{dt}, 16, v{dt}')
    stamp(1, 100); stamp(3, 23); stamp()

    def cmuls(lst):
        for d, p, q in lst: I(f'v_pk_mul_f32 {V(d,2)}, {V(p,2)}, {V(q,2)} op_sel:[0,0] op_sel_hi:[0,1]')
        for d, p, q in lst: I(f'v_pk_fma_f32 {V(d,2)}, {V(p,2)}, {V(q,2)}, {V(d,2)} op_sel:[1,1,0] op_sel_hi:[1,0,1] neg_lo:[1,0,0]')
    G = lambda b: 64 + 2*b
    Sx = lambda i: 128 + 2*i
    HH = {i: Sx(i) for i in range(9)}
    for n, o in enumerate((256, 258, 260, 262, 264)): HH[o] = 146 + 2*n
    for n, o in enumerate((512, 516, 520, 768, 772, 776)): HH[o] = G(1 + n)
    for n, o in enumerate((1024, 1032, 1280, 1288, 1536, 1544, 1792, 1800)): HH[o] = G(8 + n)
    g1, g256, g2 = 40, 42, 44; er, ph = 46, 47; P = 48; PK = 156; KD = 208
    h0 = [0,1,2,3,4,5,6,7, 512,516,520, 1024,1032,1280,1288, None]
    h1 = [256,256,258,260,260,260,262,264, 768,772,776, 1536,1544,1792,1800, None]
    pkn = [0]; kq = []
    def kread(bt, s_):
        for o, x in ((0, 0), (2, 16*272), (4, 128), (6, 16*272+128)): I(f'ds_read_b64_tr_b16 {A(64*bt+8*s_+o,2)}, v{tr} offset:{x + 272*s_}')
    kmf = lambda bt, s_: (lambda: I(f'v_mfma_f32_32x32x16_bf16 {A(KD,16)}, {A(64*bt+8*s_,4)}, {A(64*bt+8*s_+4,4)}, {0 if (bt == 0 and s_ == 0) else A(KD,16)}'))
    def wr8(srcs, ad, off, neg):
        n_ = pkn[0]; p = PK + 8*(n_ & 1); pkn[0] += 1
        for comp in range(2):
            n = '-' if (neg and comp) else ''
            for e in range(4):
                x, y = srcs[2*e], srcs[2*e+1]
                if y is None: y = x
                I(f'v_cvt_pk_bf16_f32 v{p+4*comp+e}, {n}v{x+comp}, {n}v{y+comp}')
        for comp in range(2): I(f'ds_write_b128 v{ad}, {V(p+4*comp,4)} offset:{off + 64*comp}')
        hook()
    def preamble(bt):
        l = [f'v_lshlrev_b32 v{P+i}, 16, v{vPAR+i}' if bt == 0 else f'v_and_b32 v{P+i}, s{sHI}, v{vPAR+i}' for i in range(6)]
        l += [f'v_mul_f32 v{P+i}, v{dt}, v{P+i}' for i in range(4)]
        l += [f'v_mul_f32 v{er}, {f2u(math.log2(math.e))}, v{P}', f'v_mul_f32 v{ph}, 0.15915494, v{P+1}']
        d, p, q = Sx(0), P+4, P+2
        l += [f'v_mul_f32 v{d}, v{p}, v{q}', f'v_mul_f32 v{d+1}, v{p}, v{q+1}', f'v_fma_f32 v{d}, -v{p+1}, v{q+1}, v{d}', f'v_fma_f32 v{d+1}, v{p+1}, v{q}, v{d+1}']
        T3 = ((g1, 1.0, er, ph), (G(1), 8.0, P, P+1), (g256, 256.0, P+2, P+3))
        for d, sc, m_, f_ in T3[1:]: l += [f'v_mul_f32 v{m_}, {f2u(sc)}, v{er}', f'v_mul_f32 v{f_}, {f2u(sc)}, v{ph}']
        for d, sc, m_, f_ in T3: l += [f'v_fract_f32 v{f_}, v{f_}', f'v_exp_f32 v{m_}, v{m_}']
        for d, sc, m_, f_ in T3: l += [f'v_cos_f32 v{d}, v{f_}', f'v_sin_f32 v{d+1}, v{f_}']
        for d, sc, m_, f_ in T3: l += [f'v_mul_f32 v{d}, v{d}, v{m_}', f'v_mul_f32 v{d+1}, v{d+1}, v{m_}']
        return l
    for bt in range(2):
        l = preamble(bt)
        if bt == 0:
            I(l.pop(0)); stamp(3)
        else:
            kread(0, 0); kread(0, 1)
            for _ in range(E_('PA0', '12')): I(l.pop(0))
            for s_ in range(8):
                kmf(0, s_)()
                if s_ < 6: kread(0, s_ + 2)
                hook(f'a{s_}')
                for _ in range(E_('PA1', '3') + 2*(s_ >= 6)):
                    if l: I(l.pop(0))
            stamp(3)
        for x in l: I(x)
        if bt == 0: I(f'v_mov_b32 v{G(0)}, 1.0'); I(f'v_mov_b32 v{G(0)+1}, 0')
        cmuls([(G(2), G(1), G(1)), (g2, g1, g1), (Sx(1), Sx(0), g1), (Sx(8), Sx(0), G(1))])
        cmuls([(G(3), G(2), G(1)), (G(4), G(2), G(2)), (Sx(2), Sx(0), g2), (Sx(3), Sx(1), g2)])
        cmuls([(G(5), G(4), G(1)), (G(6), G(4), G(2)), (G(7), G(4), G(3)), (G(8), G(4), G(4)), (Sx(4), Sx(2), g2), (Sx(5), Sx(3), g2)])
        wr8([G(b) for b in range(8)], tw, 128, False)
        cmuls([(G(8+i), G(8), G(i)) for i in range(1, 9)] + [(Sx(6), Sx(4), g2), (Sx(7), Sx(5), g2)])
        wr8([G(b) for b in range(8, 16)], tw, 144, False)
        cmuls([(G(16+i), G(16), G(i)) for i in range(1, 8)] + [(HH[256+i], Sx(i), g256) for i in (0, 2, 4, 6, 8)])
        wr8([G(b) for b in range(16, 24)], tw, 160, False)
        cmuls([(G(16+i), G(16), G(i)) for i in range(8, 16)] + [(HH[512+i], HH[256+i], g256) for i in (0, 4, 8)])
        wr8([G(b) for b in range(24, 32)], tw, 176, False)
        cmuls([(HH[768+i], HH[512+i], g256) for i in (0, 4, 8)])
        wr8([HH[o] for o in h0[0:4] + h1[0:4]], twA, 0, True)
        cmuls([(HH[1024+i], HH[768+i], g256) for i in (0, 8)])
        cmuls([(HH[1280+i], HH[1024+i], g256) for i in (0, 8)])
        wr8([HH[o] for o in h0[4:8] + h1[4:8]], twA, 16, True)
        cmuls([(HH[1536+i], HH[1280+i], g256) for i in (0, 8)])
        wr8([HH.get(o) for o in h0[8:12] + h1[8:12]], twB, 32, True)
        cmuls([(HH[1792+i], HH[1536+i], g256) for i in (0, 8)])
        wr8([HH.get(o) for o in h0[12:16] + h1[12:16]], twB, 48, True)
        stamp(1 if bt else 2)
    s0, s1, q0, q1 = 64, 80, 66, 67; ON = 84; mk = 38
    KA = E_('KA', '3')
    for s_ in range(KA): kread(1, s_)
    I(f's_mov_b32 s{mk}, 0x22221111'); I(f's_mov_b32 s{mk+1}, 0x88884444'); I(f'v_mov_b32 v{ON+1}, 0x3f803f80'); I(f'v_cndmask_b32 v{ON}, 0, v{ON+1}, s[{mk}:{mk+1}]')
    for e in range(1, 4): I(f'v_mov_b32 v{ON+e}, v{ON}')
    sm = [f'v_mfma_f32_16x16x32_bf16 {V(D,4)}, {V(ON,4)}, {V(X+4*i,4)}, {0 if i == 0 else V(D,4)}' for i in range(7) for D, X in ((s0, X0), (s1, X1))]
    for x in sm[:6]: I(x)
    hook('c8'); sm = sm[6:]
    for s_ in range(8):
        kmf(1, s_)()
        if s_ + KA < 8: kread(1, s_ + KA)
        if s_ >= 6: I(f'ds_write_b128 v{wx}, {V((X0, X1)[s_-6],4)} offset:{8*144*(s_-6)}')
        hook(f'c{s_}')
        if s_ < 4:
            for _ in range(2): I(sm.pop(0))
        if s_ in (5, 6, 7):
            e = s_ - 4
            I(f's_mov_b32 s{mk}, {"0xffff0000" if e == 1 else 0}'); I(f's_mov_b32 s{mk+1}, {(0, 0, "0xffff", "0xffff0000")[e]}')
            for D in (s0, s1): I(f'v_cndmask_b32 v{D}, v{D}, v{D+e}, s[{mk}:{mk+1}]')
    assert not sm
    stamp(3)
    for r in (q0, q1): I(f'v_mov_b32 v{r}, 0')
    hk[0] = 17
    for i in range(7):
        for e in range(4):
            for X, q_ in ((X0, q0), (X1, q1)): I(f'v_dot2c_f32_bf16 v{q_}, v{X+4*i+e}, v{X+4*i+e}')
        hook()
    stamp(2)
    for m in ('quad_perm:[1,0,3,2]', 'quad_perm:[2,3,0,1]', 'row_half_mirror'):
        for r in (s0, s1, q0, q1): I(f'v_add_f32_dpp v{r}, v{r}, v{r} {m} row_mask:0xf bank_mask:0xf')
    MR0, MR1, AB0, AB1 = 68, 70, 72, 74
    t = 76
    for r in (s0, s1, q0, q1): I(f'v_mul_f32 v{r}, {f2u(1/448)}, v{r}')
    for s_, q_ in ((s0, q0), (s1, q1)): I(f'v_fma_f32 v{q_}, -v{s_}, v{s_}, v{q_}')
    for q_ in (q0, q1): I(f'v_max_f32 v{q_}, 0, v{q_}')
    def rstd(va, vb, oa, ob):
        I(f'v_cvt_pk_bf16_f32 v{t}, v{va}, v{vb}'); unpack(oa, ob, t)
        for o in (oa, ob): I(f'v_add_f32 v{o}, {f2u(1e-5)}, v{o}')
        rne2(oa, ob, t)
        for o in (oa, ob): I(f'v_sqrt_f32 v{o}, v{o}')
        rne2(oa, ob, t)
        for o in (oa, ob): I(f'v_rcp_f32 v{o}, v{o}')
    I(f'v_cvt_pk_bf16_f32 v{t}, v{s0}, v{s1}'); unpack(MR0, MR1, t)
    rstd(q0, q1, MR0+1, MR1+1)
    for s_, q_, M in ((s0, q0, MR0), (s1, q1, MR1)):
        I(f'v_sub_f32 v{s_}, v{s_}, v{M}'); I(f'v_mul_f32 v{q_}, v{q_}, v{M+1}')
    for s_, q_, M in ((s0, q0, MR0), (s1, q1, MR1)):
        I(f'v_mul_f32 v{s_}, v{s_}, v{M+1}'); I(f'v_mul_f32 v{q_}, v{q_}, v{M+1}')
    rne2(s0, s1, t)
    rstd(q0, q1, AB0+1, AB1+1)
    for s_, M, AB in ((s0, MR0, AB0), (s1, MR1, AB1)):
        I(f'v_mul_f32 v{AB}, v{M+1}, v{AB+1}'); I(f'v_mul_f32 v{s_}, v{s_}, v{AB+1}')
    for s_, M, AB in ((s0, MR0, AB0), (s1, MR1, AB1)):
        I(f'v_fma_f32 v{AB+1}, -v{M}, v{AB}, -v{s_}')
    a.flush(); stamp(4)
    for O, M, off, Z in ((X0, MR0, 0, 96), (X1, MR1, 8*144, 100)):
        for e in range(4): unpack(t+2*e, t+2*e+1, O+e)
        for e in range(4): I(f'v_pk_add_f32 {V(t+2*e,2)}, {V(t+2*e,2)}, {V(M,2)} op_sel_hi:[1,0] neg_lo:[0,1] neg_hi:[0,1]')
        for e in range(4): I(f'v_cvt_pk_bf16_f32 v{Z+e}, v{t+2*e}, v{t+2*e+1}')
        for e in range(4): unpack(t+2*e, t+2*e+1, Z+e)
        for e in range(4): I(f'v_pk_mul_f32 {V(t+2*e,2)}, {V(t+2*e,2)}, {V(M,2)} op_sel:[0,1] op_sel_hi:[1,1]')
        for e in range(4): I(f'v_cvt_pk_bf16_f32 v{Z+e}, v{t+2*e}, v{t+2*e+1}')
        I(f'ds_write_b128 v{wxn}, {V(Z,4)} offset:{off}')
        if off:
            for q in range(2):
                for z in range(2): I(f'ds_read_b64_tr_b16 {V(112+4*q+2*z,2)}, v{xr} offset:{64*q + 576*z}')
        hook()
    tk = {}; stamp(4)
    I(f's_add_u32 s{sT0}, s{sXT}, {32*4096}')
    for i in range(7):
        if i in (1, 3, 5): stamp(4)
        I(f'v_add_u32 v{104+i}, s{sXC+i}, v{wy}')
        for n, (X, AB, off) in enumerate(((X0, AB0, 0), (X1, AB1, 8*Y2S))):
            tt = t + 8*n
            for e in range(4): unpack(tt+2*e, tt+2*e+1, X+4*i+e)
            for e in range(4): I(f'v_pk_fma_f32 {V(tt+2*e,2)}, {V(tt+2*e,2)}, {V(AB,2)}, {V(AB,2)} op_sel:[0,0,1] op_sel_hi:[1,0,1]')
            for e in range(4): I(f'v_cvt_pk_bf16_f32 v{X+4*i+e}, v{tt+2*e}, v{tt+2*e+1}')
            I(f'ds_write_b128 v{104+i}, {V(X+4*i,4)} offset:{off}')
            if i == 0: tk['xn'] = I(f'buffer_store_dwordx4 {V(112+4*n,4)}, v{xs}, {WS}, s{(sXT, sT0)[n]} offen sc1')
            hook()
    for q in range(2): I(f'ds_write_b128 v{xk}, {A(KD+8+4*q,4)} offset:{1024*q}')
    assert not sched, sched
    for fb in range(2):
        for e in range(8): unpack(CB+16*fb+2*e, CB+16*fb+2*e+1, B1R+8*fb+e)
    stamp(4)
    def cm(): I(f'v_readfirstlane_b32 s{sNON}, v{vNON}'); I(f's_cmp_eq_u32 s{sNON}, 0')
    poll(ldNON, cm)
    stamp(3)
    a.wait(tk['xn']); a.barrier()
    stamp()
    late_[0] = 1
    ACC = 64
    def gemm(base, FA, bfrag, breads, cinit, va, extra, nstep=28, npre=0, dm=None):
        def reads(k):
            ex_, so = slot(base + k)
            r = [f'ds_read_b64_tr_b16 {A(FA(k)+o,2)}, v{v_} offset:{so+x}' for v_, o0 in ((va[ex_][0], 0), (va[ex_][1], 4)) for o, x in ((o0, 0), (o0+2, 512))]
            b = breads(k)
            return r[:2] + b[:1] + r[2:] + b[1:]
        if nstep == 0: return reads
        for k in range(npre, 2):
            a.wait(dtok[base+k])
            for x in reads(k): I(x)
        for f in extra.get((-1, 0), []): f()
        for k in range(nstep):
            nx = reads(k+2) if npre <= k + 2 < nstep else []
            nd = base + k + NSLOT
            for mi, (fb, tb) in enumerate(((0, 0), (1, 0), (0, 1), (1, 1))):
                d = V(ACC + 32*tb + 16*fb, 16)
                I(f'v_mfma_f32_32x32x16_bf16 {d}, {A(FA(k)+4*fb,4)}, {bfrag(k, tb)}, {cinit(fb) if k == 0 else d}')
                if mi == 0 and nx:
                    a.wait(dtok[base+k+2])
                    for x in nx[:len(nx)//2]: I(x)
                if mi == 1:
                    for x in nx[len(nx)//2:]: I(x)
                if mi >= 2 and not base: dma1(nd, mi - 2)
                for f in extra.get((k, mi), []): f()
            if k in (3, 9, 17): stamp(3)
    ex = defaultdict(list)
    def place(fns, k, mi, skip=()):
        for f in fns:
            while (k, mi) in skip or (k, mi) in ex:
                mi += 1
                if mi == 4: k += 1; mi = 0
            ex[(k, mi)].append(f)
        return k, mi
    def e_xe(i):
        return seq([f'ds_read_b128 {A(192+4*i,4)}, v{(wst, wstn)[i>>1]} offset:{16*(i&1)}'])
    KE, KO, KT = 128, 136, 144
    def e_kr(): I(f'ds_read_b128 {V(KE,4)}, v{xp}'); tk['kr'] = I(f'ds_read_b128 {V(KE+4,4)}, v{xp} offset:1024')
    ex[(0, 0)].append(lambda: flag_store(sXF)); ex[(0, 1)].append(e_kr)
    ex[(2, 0)].append(lambda: (bar(tk['kr']), dma1(9, 0))); ex[(2, 1)].append(lambda: dma1(9, 1))
    for i in range(4): ex[(3 + i, 1)].append(e_xe(i))
    l = chunks([f'v_accvgpr_read_b32 v{KO+e}, a{KD+e}' for e in range(8)], 3)
    l += chunks([f'v_add_f32 v{KE+e}, v{KE+e}, v{KO+e}' for e in range(8)] + [f'v_mov_b32 v{KT+16+e}, 0' for e in range(4)]
              + [f'v_cvt_pk_bf16_f32 v{KT+e}, v{KE+7-2*e}, v{KE+6-2*e}' for e in range(4)]
              + [f'v_cvt_pk_bf16_f32 v{KT+4+e}, v{KE+x}, v{KE+y}' for e, (x, y) in enumerate(((2, 2), (1, 1), (1, 0), (0, 0)))]
              + [f'v_and_b32 v{bm}, 1, v0', f'v_add_u32 v{bm}, -1, v{bm}'], 3)
    l2 = []
    for z, v0_ in enumerate((KE+3, KE+5)):
        tt = KT + 8 + 4*z
        l2 += [f'v_bfi_b32 v{KO}, v{bm}, v{v0_}, v{v0_+1}', f'v_cvt_pk_bf16_f32 v{tt}, v{v0_+1}, v{v0_+1}', f'v_cvt_pk_bf16_f32 v{tt+2}, v{v0_}, v{v0_}',
               f'v_cvt_pk_bf16_f32 v{tt+1}, v{v0_+1}, v{KO}', f'v_mov_b32 v{tt+3}, v{tt+2}']
    place(l + chunks(l2, 3), 2, 2)
    late = []; sA, sB, sD = 38, 39, sXO
    late += [f's_mov_b32 s{SOUT}, s32', f's_mov_b32 s{SOUT+1}, s33', f's_mov_b32 s{SOUT+2}, {2048*896}', f's_mov_b32 s{SOUT+3}, 0x00020000']
    late += [f's_mul_i32 s{sA}, s{sW}, {64*896}', f's_add_u32 s{sA}, s{sA}, s{sRK}', f'v_add_u32 v{vD2}, s{sA}, v{vD2}', f's_mul_i32 s{sB}, s{sR}, 28']
    late += [f's_add_u32 s{sB}, s{sB}, s{sW}', f's_lshl_b32 s{sB}, s{sB}, 13', f's_add_u32 s{sB}, s{sB}, {HB}']
    late = chunks(late, 4)
    for n in range(7):
        late += [seq([f's_add_u32 s{sA}, s{sJ}, {n}', f's_cmp_ge_u32 s{sA}, 7', f's_cselect_b32 s{sD}, 7, 0', f's_sub_u32 s{sA}, s{sA}, s{sD}']),
                 seq([f's_mul_i32 s{sW2+n}, s{sA}, {256*896}', f's_lshl_b32 s{sA}, s{sA}, 15', f's_add_u32 s{sH+n}, s{sA}, s{sB}'])]
    bef = set(ex); kk = place(late, 0, 2); assert kk[0] < 17, kk
    keep1 = set(ex) - bef
    vXF, vXFa, vHF, vHFa, vH2 = 14, 15, 16, 17, 18
    uE, uA, u3, uw, u3w, cu0, ck, ys, vL4 = 19, 20, 21, 22, 23, 24, 25, 26, 27
    xc, xq, vSH, vE2, vE3, vG3 = 28, 29, 30, 31, 32, 33
    m0_, m1_, m2_ = 57, 58, 59
    ad = [f's_lshr_b32 s{sT1}, s2, 5', f's_lshl_b32 s{sT1}, s{sT1}, 9', f's_add_u32 s{sT1}, s{sT1}, {XF}', f'v_and_b32 v{vXFa}, 31, v0',
          f'v_lshl_add_u32 v{vXFa}, v{vXFa}, 4, s{sT1}',
          f's_lshl_b32 s{sT1}, s{sR}, 2', f's_add_u32 s{sT1}, s{sT1}, s{sW}', f's_lshl_b32 s{sT1}, s{sT1}, 10', f's_add_u32 s{sT1}, s{sT1}, {HF}',
          f'v_and_b32 v{vHFa}, 7, v0', f'v_min_u32 v{vHFa}, 6, v{vHFa}', f'v_lshlrev_b32 v{vHFa}, 7, v{vHFa}', f'v_add_u32 v{vHFa}, s{sT1}, v{vHFa}',
          f's_add_u32 s{sHF0}, s{sRK}, s{sT1}',
          f's_lshl_b32 s{sT1}, s2, 1', f's_add_u32 s{sT1}, s{sT1}, s{sC}', f's_lshl_b32 s{sT1}, s{sT1}, 12', '',
          f's_add_u32 s{SU}, s36, s{sT1}', f's_addc_u32 s{SU+1}, s37, 0', f's_mov_b32 s{SU+2}, 4096', f's_mov_b32 s{SU+3}, 0x00020000',
          f's_lshl_b32 s{sT0}, s{sP}, 11', f's_add_u32 s{sY}, s{sT1}, s{sT0}', f's_add_u32 s{sY}, s{sY}, {YT}',
          f'v_add_u32 v{uE}, s{sT0}, v{vL16}', f'v_add_u32 v{uA}, -16, v{uE}', '',
          f's_cmp_eq_u32 s{sP}, 0', f's_cselect_b32 s{sT1}, -16, 4080', f'v_and_b32 v{u3}, 2, v0', f'v_mul_u32_u24 v{u3}, s{sP}, v{u3}', f'v_lshl_add_u32 v{u3}, v{u3}, 1, s{sT1}',
          f'v_and_b32 v{vSH}, 1, v0', f'v_lshlrev_b32 v{vSH}, 4, v{vSH}',
          f's_mul_i32 s{sUB}, s{sC}, {UCH}', f's_add_u32 s{sT1}, s{sUB}, 16', f'v_add_u32 v{uw}, s{sT1}, v{uE}',
          f's_mul_i32 s{sT1}, s{sP}, {257*16}', f's_add_u32 s{sT1}, s{sT1}, s{sUB}', f'v_and_b32 v{u3w}, 3, v0', f'v_mul_u32_u24 v{u3w}, 4160, v{u3w}', f'v_add_u32 v{u3w}, s{sT1}, v{u3w}',
          f's_mul_i32 s{sKB}, s{sC}, 4608', f's_add_u32 s{sKB}, s{sKB}, {LB}',
          f'v_and_b32 v{m0_}, 15, v0', f'v_add_u32 v{m1_}, 1, v{m0_}', f'v_and_b32 v{m2_}, 3, v{m1_}', f'v_sub_u32 v{m1_}, v{m1_}, v{m2_}',
          f'v_mul_u32_u24 v{m2_}, 4160, v{m2_}', f'v_lshl_add_u32 v{m2_}, v{m1_}, 1, v{m2_}', f'v_lshrrev_b32 v{m1_}, 4, v0', f'v_lshl_add_u32 v{m2_}, v{m1_}, 4, v{m2_}',
          f's_lshl_b32 s{sT1}, s{sP}, 8', f's_add_u32 s{sT1}, s{sT1}, s{sUB}', f'v_add_u32 v{cu0}, s{sT1}, v{m2_}',
          f'v_and_b32 v{m1_}, 1, v{m1_}', f'v_sub_u32 v{m2_}, v{hb}, v{m0_}', f'v_add_u32 v{m2_}, 15, v{m2_}', f'v_mul_u32_u24 v{ck}, 2304, v{m1_}',
          f'v_lshl_add_u32 v{ck}, v{m2_}, 4, v{ck}', f's_lshl_b32 s{sT1}, s{sP}, 7', f's_add_u32 s{sT1}, s{sT1}, s{sKB}', f'v_add_u32 v{ck}, s{sT1}, v{ck}',
          f'v_lshlrev_b32 v{ys}, 9, v{m1_}', f'v_lshl_add_u32 v{ys}, v{m0_}, 5, v{ys}', f'v_lshl_add_u32 v{ys}, v{hb}, 4, v{ys}', f'v_add_u32 v{vL4}, 4096, v{vL16}',
          f'v_and_b32 v{m2_}, 31, v0', f'v_sub_u32 v{m2_}, 255, v{m2_}', f'v_and_b32 v{k1}, 1, v{m2_}', f'v_lshrrev_b32 v{m2_}, 1, v{m2_}',
          f'v_mul_u32_u24 v{k1}, 2304, v{k1}', f'v_lshl_add_u32 v{k1}, v{m2_}, 4, v{k1}', f's_sub_u32 s{sT1}, s{sKB}, 512', f'v_add_u32 v{k1}, s{sT1}, v{k1}',
          f'v_lshlrev_b32 v{m2_}, 8, v{hb}', f'v_sub_u32 v{k1}, v{k1}, v{m2_}', f'v_sub_u32 v{k2}, v{k1}, v{m2_}', f'v_add_u32 v{k2}, -768, v{k2}',
          f'v_mul_u32_u24 v{kz}, 2304, v{m1_}', f'v_lshl_add_u32 v{kz}, v{m0_}, 4, v{kz}', f'v_add_u32 v{kz}, s{sKB}, v{kz}',
          f's_lshl_b32 s{sT1}, s{sW}, 12', f'v_add_u32 v{xc}, s{sT1}, v{vL16}', f'v_xor_b32 v{xq}, 4096, v{xc}',
          f's_lshl_b32 s{sT1}, s{sW}, 13', f's_add_u32 s{sEXT}, s{sT1}, {LEXT}', f's_sub_u32 s{sT1}, s{sEXT}, s{sRING}', f'v_xor_b32 v{vG3}, 64, v{vG2}',
          f'v_add_u32 v{vE2}, s{sT1}, v{vG2}', f'v_add_u32 v{vE3}, s{sT1}, v{vG3}',
          f'v_add_u32 v8, s{sRING}, v{vL16}', f'v_add_u32 v9, s{sEXT}, v{vL16}',
          f's_lshl_b32 s{sYF}, s2, 2', f's_add_u32 s{sYF}, s{sYF}, s{sW}', f's_lshl_b32 s{sYF}, s{sYF}, 4', f's_add_u32 s{sYF}, s{sYF}, {YF}']
    grp = [[]]
    for x in ad:
        if x == '' or len(grp[-1]) == 3 + all(y[0] == 's' for y in grp[-1]): grp.append([])
        if x: grp[-1].append(x)
    kk = place([seq(x) for x in grp if x], 11, 0); assert kk[0] < 21, kk; print('ad end', kk)
    ldXF = lambda: I(f'buffer_load_dword v{vXF}, v{vXFa}, {WS}, 0 offen sc1')
    XP = E_('XPS', '27')
    ex[(XP - 5, 1)].append(ldXF); ex[(XP, 3)].append(lambda: poll(ldXF, cmp_flag(vXF)))
    U0 = 40; UU = f's[{SU}:{SU+3}]'
    ul = [f'buffer_load_dwordx4 {V(U0,4)}, v{uA}, {UU}, 0 offen sc1', f'buffer_load_dwordx2 {V(U0+4,2)}, v{uE}, {UU}, 0 offen sc1',
          f'buffer_load_dwordx4 {V(U0+6,4)}, v{uE}, {UU}, 0 offen offset:1008 sc1', f'buffer_load_dwordx2 {V(U0+10,2)}, v{uE}, {UU}, 0 offen offset:1024 sc1',
          f'buffer_load_dwordx4 {V(U0+12,4)}, v{u3}, {UU}, 0 offen sc1']
    F1 = lambda k: 16*(k % 3)
    gemm(0, F1, lambda k, tb: A(F1(k)+8+4*tb, 4),
         lambda k: [f'ds_read_b128 {A(F1(k)+8+4*tb,4)}, v{vb} offset:{32*k}' for tb, vb in ((0, vB0), (1, vB1))],
         lambda fb: V(CB+16*fb, 16), [(vA0, vA1)], ex)
    a._emit('s_barrier')
    stamp()
    k0 = -2*math.sqrt(2/math.pi)*math.log2(math.e)
    I(f's_mov_b32 s{sK}, {f2u(k0*0.044715)}'); I(f's_mov_b32 s{sK+1}, {f2u(k0)}')
    for x in ul: I(x)
    def copies(d, off):
        c = 164
        def f0(): I(f'ds_write_b128 v{uw}, {V(d,4)} offset:{off}')
        def f1():
            for e in range(4): I(f'v_alignbit_b32 v{c+e}, v{d+e+1}, v{d+e}, 16')
            for e in range(4): I(f'v_mov_b32 v{c+4+e}, v{d+e+1}')
            for e in range(4): I(f'v_alignbit_b32 v{c+8+e}, v{d+e+2}, v{d+e+1}, 16')
        return f0, f1, [seq([f'ds_write_b128 v{uw}, {V(c-4+4*s_,4)} offset:{off + 4160*s_}']) for s_ in range(1, 4)]
    def e_kw():
        I(f's_cmp_eq_u32 s{sP}, 1')
        a.ifelse('KE', seq([f'ds_write_b128 v{k1}, {V(KT,4)} offset:512', f'ds_write_b128 v{kz}, {V(KT+16,4)} offset:2048', f'ds_write_b128 v{kz}, {V(KT+16,4)} offset:2048']),
                 seq([f'ds_write_b128 v{k1}, {V(KT+4,4)}', f'ds_write_b128 v{k2}, {V(KT+8,4)} offset:256', f'ds_write_b128 v{k2}, {V(KT+12,4)}']))
    def e_u3():
        for e in range(4): I(f'v_alignbit_b32 v{176+e}, {"v%d" % (U0+13+e) if e < 3 else 0}, v{U0+12+e}, v{vSH}')
        I('s_mov_b64 exec, 15'); I(f'ds_write_b128 v{u3w}, {V(176,4)}'); I('s_mov_b64 exec, -1')
    ca, cb_ = copies(U0, 0), copies(U0+6, 1024)
    exd = lambda i: [lambda: dma1(38 + i, 0), lambda: dma1(38 + i, 1)]
    gx = {3: [ca[0], cb_[0], ca[1]], 4: ca[2] + [e_kw], 5: [cb_[1]], 6: cb_[2] + [e_u3]}
    for i in range(NEXT): gx[i + E_('EXF', '0')] = exd(i) + gx.get(i + E_('EXF', '0'), [])
    wq = [wld(st_, hh) for st_ in range(WS0, 56) for hh in range(2)] if WL else []
    for f in [int(c) for c in os.environ.get('WGL', '0123456777')][:len(wq)]: gx[f] = gx.get(f, []) + [wq.pop(0)]
    t = 128
    for tb in range(2):
        for sg in range(4):
            x = ACC + 32*tb + 8*sg; Pp = lambda e: V(t+2*e, 2); Xp = lambda e: V(x+2*e, 2)
            for e in range(4): I(f'v_pk_mul_f32 {Pp(e)}, {Xp(e)}, {Xp(e)}')
            for e in range(4): I(f'v_pk_fma_f32 {Pp(e)}, {Pp(e)}, s[{sK}:{sK+1}], s[{sK}:{sK+1}] op_sel:[0,0,1] op_sel_hi:[1,0,1]')
            for e in range(4): I(f'v_pk_mul_f32 {Pp(e)}, {Pp(e)}, {Xp(e)}')
            for e in range(8): I(f'v_exp_f32 v{t+e}, v{t+e}')
            for e in range(4): I(f'v_pk_add_f32 {Pp(e)}, {Pp(e)}, 1.0 op_sel_hi:[1,0]')
            for e in range(8): I(f'v_rcp_f32 v{t+e}, v{t+e}')
            for e in range(4): I(f'v_pk_mul_f32 {Pp(e)}, {Pp(e)}, {Xp(e)}')
            f = 4*tb + sg
            for e in range(4): I(f'v_cvt_pk_bf16_f32 v{HOWN+4*f+e}, v{t+2*e}, v{t+2*e+1}')
            if f == E_('HF0', '7'): a.wait(tk['h0']); flag_store(sHF0)
            tk['h%d' % tb] = I(f'buffer_store_dwordx4 {V(HOWN+4*f,4)}, v{vL16 if tb == 0 else vL4}, {WS}, s{sH} offen offset:{1024*sg} sc1')
            DS_ = E_('DS', '0')
            if DS_ == 1: tk['h%d' % tb] = I(f'buffer_store_dwordx4 {V(HOWN+4*f,4)}, v{vL16 if tb == 0 else vL4}, {WS}, s{sH} offen offset:{1024*sg}')
            if DS_ == 2 and f > 0: I(f'buffer_store_dwordx4 {V(HOWN+4*f-4,4)}, v{vL16 if f <= 4 else vL4}, {WS}, s{sH} offen offset:{1024*((f-1)&3)}')
            if DS_ == 2 and f == 7: I(f'buffer_store_dwordx4 {V(HOWN+4*f,4)}, v{vL4}, {WS}, s{sH} offen offset:{1024*3}')
            for g_ in gx.get(f, []): g_()
            if f < 7: stamp(4)
    stamp()
    a.barrier()
    stamp()
    if stop == 2:
        I(f's_mul_i32 s{sT0}, s2, 9216'); I(f's_add_u32 s{sT0}, s{sT0}, 0xD00000'); I(f'v_add_u32 v40, {LB}, v{vL16}')
        for i in range(9):
            I(f'ds_read_b128 v[64:67], v40 offset:{1024*i}'); I(f'buffer_store_dwordx4 v[64:67], v{vL16}, {WS}, s{sT0} offen'); I(f's_add_u32 s{sT0}, s{sT0}, 1024')
            a.waitcnt(vm=0)
        fin(); return a
    CA, CBf, CC = [64, 96], [128, 160], 192
    hld = lambda n, f: (lambda: I(f'buffer_load_dwordx4 {A(32*(n-1)+4*f,4)}, v{vL16 if f < 4 else vL4}, {WS}, s{sH+n} offen offset:{1024*(f&3)} sc1'))
    if E_('NOH', '0') in (1, 2): hld = lambda n, f: (lambda: None)
    if E_('NOH', '0') == 4: hld = lambda n, f: (lambda: I(f'buffer_load_dwordx4 {A(32*(n-1)+4*f,4)}, v{vL16 if f < 4 else vL4}, s[{SX}:{SX+3}], 0 offen offset:{1024*(f&3)} sc1'))
    if E_('NOH', '0') >= 2: poll_ = lambda *x: None
    else: poll_ = poll
    ldH0 = lambda: I(f'buffer_load_dword v{vHF}, v{vHFa}, {WS}, 0 offen sc1')
    ldH1 = lambda: I(f'buffer_load_dword v{vH2}, v{vHFa}, {WS}, 0 offen offset:64 sc1')
    cx = defaultdict(list)
    c_l0, c_p0, c_f1, c_l1, c_p1, hev = E_('CL0', '44'), E_('CP0', '80'), E_('CF1', '30'), E_('CL1', '104'), E_('CP1', '143'), E_('HEV', '4')
    cx[c_l0].append(ldH0); cx[c_p0].append(lambda: (poll_(ldH0, cmp_flag(vHF)), stamp(3)))
    cx[c_f1].append(lambda: (a.wait(tk['h1']), flag_store(sHF0, 64), stamp(3)))
    if E_('HF0', '7') == 8: cx[E_('CF0', '3')].append(lambda: (a.wait(tk['h0']), flag_store(sHF0)))
    cx[c_l1].append(ldH1); cx[c_p1].append(lambda: (poll_(ldH1, cmp_flag(vH2)), stamp(3)))
    NPRE = E_('NPRE', '5')
    F2 = lambda k: 208 + 8*(k - 3) if 3 <= k < NPRE else 224 + 8*(k % 3)
    VA2 = [(vG2, vG3), (vE2, vE3)]
    rd2 = gemm(28, F2, None, lambda k: [], None, VA2, None, nstep=0)
    def e_pre(k):
        def f():
            a.wait(dtok[28 + k])
            for x in rd2(k): tk['pre%d' % k] = I(x)
        return f
    def e_pd(k, hh): return lambda: (a.wait(tk['pre%d' % k]), dma1(38 + NEXT + k, hh))
    for k in range(NPRE):
        cx[k if k < 3 else 28 + 2*k].append(e_pre(k))
    for i in range(2*NPRE): cx[(14 + 4*i) if i < 6 else 24 + 4*i].append(e_pd(i // 2, i & 1))
    hq0 = [(n, f) for n in range(1, 7) for f in range(4)]; hq1 = [(n, f+4) for n in range(1, 7) for f in range(4)]
    c = E_('WC0', '5')
    while wq:
        while any(c + d_ in cx for d_ in (0, 1, -1)): c += 1
        cx[c].append(wq.pop(0))
    print('w loads end', c)
    wsl = sorted([(k_, 3) for k_ in range(2, 20)] + [(int(k_), 1) for k_ in os.environ.get('WX', '9,11,13,15').split(',')]); wt = {}
    for s_ in range(WS0, 56):
        for hh in range(2):
            while wsl[0][0] < s_ - 44: wsl.pop(0)
            wt[(s_, hh)] = wsl.pop(0)
    rel = lambda n, f: (wt[(WS0 + (32*(n-1) + 4*f - WB)//8, f & 1)][0] + 0.5) if 32*(n-1) + 4*f >= WB else 0
    hlate = [x for x in hq0 + hq1 if rel(*x)]; hq0 = [x for x in hq0 if not rel(*x)]; hq1 = [x for x in hq1 if not rel(*x)]
    c = c_p0 + 1
    while c < 144:
        while any(c + d_ in cx for d_ in (0, 1, -1)) and c < 70: c += 1
        if c <= c_p1:
            if hq0: cx[c].append(hld(*hq0.pop(0)))
        else:
            q = hq1 if (not hq0 or hq1[0][0] <= hq0[0][0]) else hq0
            cx[c].append(hld(*q.pop(0)))
        c += hev
    hrest = sorted(hq0 + hq1 + hlate); print('h loads left', len(hrest))
    def creads(st):
        r = []
        for i in range(8):
            o = 64*st + 512*i
            r.append(f'ds_read_b64 {V(CA[st&1]+4*i,2)}, v{cu0} offset:{o}'); r.append(f'ds_read_b64 {V(CA[st&1]+4*i+2,2)}, v{cu0} offset:{o+8}')
        b = [f'ds_read_b128 {V(CBf[st&1]+4*i,4)}, v{ck} offset:{256*(7-i) + 32*st}' for i in range(8)]
        return r[:2] + b + r[2:]
    ml = [(st, i, cb) for st in range(4) for i in range(8) for cb in range(i, 8)]
    idx = lambda st, pr: [n for n, m in enumerate(ml) if m[0] == st and pr(m)]
    rq = []
    for st in range(4):
        for i in range(8):
            o = 64*st + 512*i; fu = idx(st, lambda m: m[1] == i)[0]; fr = idx(st-2, lambda m: m[1] == i)[-1] if st >= 2 else -1
            rq += [(fu, fr, f'ds_read_b64 {V(CA[st&1]+4*i,2)}, v{cu0} offset:{o}'), (fu, fr, f'ds_read_b64 {V(CA[st&1]+4*i+2,2)}, v{cu0} offset:{o+8}')]
            fu = idx(st, lambda m: m[2]-m[1] == i)[0]; fr = idx(st-2, lambda m: m[2]-m[1] == i)[-1] if st >= 2 else -1
            rq.append((fu, fr, f'ds_read_b128 {V(CBf[st&1]+4*i,4)}, v{ck} offset:{256*(7-i) + 32*st}'))
    rq.sort(key=lambda x: x[0]); LAT = E_('CLAT', '9'); maxa = E_('CMAX', '40')
    while rq[0][0] < E_('CPRE', '8') + 1: I(rq.pop(0)[2])
    for cg, (st, i, cb) in enumerate(ml):
        d = V(CC+4*cb, 4)
        I(f'v_mfma_f32_16x16x32_bf16 {d}, {V(CA[st&1]+4*i,4)}, {V(CBf[st&1]+4*(cb-i),4)}, {0 if (st == 0 and i == 0) else d}')
        n_ = 0
        while rq and rq[0][1] <= cg and (rq[0][0] - cg <= LAT + (n_ == 0 and cg in cx)*(-3) or (n_ == 0 and cg not in cx and rq[0][0] - cg <= maxa)):
            I(rq.pop(0)[2]); n_ += 1
        assert not rq or rq[0][0] > cg + 1
        for f in cx.get(cg, []): f()
        if str(cg) in os.environ.get('CST', '').split(','): stamp(1)
    a._emit('s_barrier')
    stamp()
    ex = defaultdict(list)
    E1, T = 128, 160
    def e_cw(h_):
        def w(o):
            def f():
                for q in (2*h_, 2*h_+1): tk['cw'] = I(f'ds_write_b128 v{xc}, {V(CC+o+4*q,4)} offset:{1024*q}')
            return f
        return lambda: (I(f's_cmp_eq_u32 s{sP}, 1'), a.ifelse(f'CS{h_}', w(16), w(0)))
    def e_ca(q):
        def f():
            I(f's_cmp_eq_u32 s{sP}, 1'); a.wait(tk['cr%d' % q])
            a._emit(f's_cbranch_scc1 CA{q}_b'); st = a.snap()
            for e in range(4*q, 4*q+4): I(f'v_add_f32 v{E1+e}, v{E1+e}, v{CC+e}')
            a._emit(f's_branch CA{q}_j'); a.label(f'CA{q}_b'); a.restore(st)
            for e in range(4*q, 4*q+4): I(f'v_add_f32 v{E1+e}, v{E1+e}, v{CC+16+e}')
            a.label(f'CA{q}_j')
        return f
    def e_cr():
        for q in range(4): tk['cr%d' % q] = I(f'ds_read_b128 {V(E1+4*q,4)}, v{xq} offset:{1024*q}')
    DCW = E_('DCW', '0')
    if DCW:
        ex[(0, 0)].append(e_cw(0)); ex[(0, 1)].append(e_cw(1)); ex[(1, 0)].append(lambda: (bar(tk['cw']), e_cr()))
        for q in range(4): ex[(2, q)].append(e_ca(q))
    else:
        ex[(-1, 0)].append(e_cw(0)); ex[(-1, 0)].append(e_cw(1)); ex[(0, 2)].append(lambda: (bar(tk['cw']), e_cr()))
        for q in range(4): ex[(1 + (q+2)//4, (q+2) % 4)].append(e_ca(q))
    l = chunks([f'v_cvt_pk_bf16_f32 v{T+e}, v{E1+2*e}, v{E1+2*e+1}' for e in range(8)], 4)
    def e_ys(pr):
        def f(): tk['y'] = I(f'buffer_store_dwordx4 {V(T+4*pr,4)}, v{ys}, {WS}, s{sY} offen offset:{1024*pr} sc1')
        return f
    l += [seq([f'v_permlane16_swap_b32 v{T+4*pr+e}, v{T+4*pr+2+e}' for pr in range(2) for e in range(2)]), e_ys(0), e_ys(1)]
    kk = place(l, 3 if DCW else 2, 0 if DCW else 2); print('ys end', kk)
    vYF, vYFa, vX, vBD = 14, 15, 16, 19
    B2, DS, YR, XF32, XN, t = 128, 136, 144, 152, 208, 28
    ya, yw, yr, rw = 20, 21, 22, 4
    ldYF = lambda: I(f'buffer_load_dword v{vYF}, v{vYFa}, {WS}, 0 offen sc1')
    ex[(E_('YFS', '9'), 1)].append(lambda: (a.wait(tk['y']), flag_store(sYF)))
    l = [[f's_lshl_b32 s{sT2}, s{sJ}, 1', f's_add_u32 s{sT2}, s{sT2}, s{sP}', f's_lshl_b32 s{sT1}, s{sR}, 1', f's_add_u32 s{sT1}, s{sT1}, s{sC}'],
         [f's_mul_i32 s{sXO}, s{sT1}, {32*896}', f's_lshl_b32 s{sK}, s{sT2}, 6', f's_add_u32 s{sXO}, s{sXO}, s{sK}'],
         [f'v_and_b32 v{vX}, 31, v0', f'v_mul_u32_u24 v{vX}, 896, v{vX}', f'v_lshl_add_u32 v{vX}, v{hb}, 5, v{vX}'],
         [f'v_lshl_add_u32 v{vBD}, v{hb}, 5, s{sK}', f's_lshl_b32 s{sK}, s{sT2}, 10', f's_add_u32 s{sK}, s{sK}, {YF}', f'v_lshl_add_u32 v{vYFa}, v0, 4, s{sK}'],
         [f's_lshl_b32 s{sT2}, s{sT2}, 17', f's_lshl_b32 s{sK}, s{sT1}, 6', f's_add_u32 s{sT2}, s{sT2}, s{sK}', f's_add_u32 s{sT2}, s{sT2}, {YT}'],
         [f'v_lshrrev_b32 v{ya}, 2, v0', f'v_lshlrev_b32 v{ya}, 12, v{ya}', f'v_and_b32 v{yw}, 3, v0', f'v_lshl_add_u32 v{ya}, v{yw}, 4, v{ya}'],
         [f's_lshl_b32 s{sK}, s{sW}, 11', f's_add_u32 s{sK}, s{sK}, {LB}', f'v_add_u32 v{yw}, s{sK}, v{vL16}'],
         [f'v_bfe_u32 v{yr}, v0, 2, 2', f'v_lshl_add_u32 v{yr}, v{hb}, 4, v{yr}', f'v_lshl_add_u32 v{yr}, v{yr}, 6, v{vTR}', f'v_add_u32 v{yr}, s{sK}, v{yr}'],
         [f'v_add_u32 v{rw}, s{sRING}, v{vL16}', f'v_add_u32 v{rw+1}, {LRING}, v{vL16}']]
    for x in (3, 2, 1): l.append([f's_xor_b32 s{sK}, s{sW}, {x}', f's_mul_i32 s{sK}, s{sK}, {NSLOT*2048}', f'v_add_u32 v{rw+x}, s{sK}, v{rw+1}'])
    l[-1].append(f's_add_u32 s{sK}, s{sT2}, 65536')
    for i, f in enumerate(l): ex[(6 + i, 1)].append(seq(f))
    ex[(18, 2)].append(seq([f'global_load_dwordx4 {V(B2+4*q,4)}, v{vBD}, s[30:31] offset:{16*q}' for q in range(2)]))
    ex[(18, 3)].append(seq([f'global_load_dwordx4 {V(DS+4*q,4)}, v{vBD}, s[20:21] offset:{16*q}' for q in range(2)]))
    ex[(E_('YL', '21'), 2)].append(ldYF)
    for i in range(4): ex[(19 + i//2, 3*(i & 1))].append(seq([f'v_accvgpr_read_b32 v{44+4*i+e}, a{192+4*i+e}' for e in range(4)]))
    def e_unp(dst, src): return lambda: [unpack(dst+2*e, dst+2*e+1, src+e) for e in range(2)]
    l = [e_unp(XF32 + 4*i, 44 + 2*i) for i in range(4)] + [e_unp(XN + 4*i, 52 + 2*i) for i in range(4)]
    for i, f in enumerate(l): ex[(21 + i//3, 1 + i % 3)].append(f)
    def e_yl():
        poll(ldYF, cmp_flag(vYF))
        I(f'buffer_load_dwordx4 {V(YR,4)}, v{ya}, {WS}, s{sT2} offen sc1'); I(f'buffer_load_dwordx4 {V(YR+4,4)}, v{ya}, {WS}, s{sK} offen sc1')
    YTP = E_('YTP', '11')
    if YTP < 0: ex[(23, 3)].append(e_yl)
    items = [(4*n - 5, rel(n, f), hld(n, f)) for n, f in hrest] + [(s_ - 28 - 7, s_ - 28 - NSLOT - NEXT, (lambda s_=s_, hh=hh: dma1(s_, hh))) for s_ in range(38 + NEXT + NPRE, WS0) for hh in range(2)]
    items.sort(key=lambda x: x[0])
    for s_ in range(WS0, 56):
        dtok[s_] = None; ex_, so = slot(s_)
        for hh in range(2): ex[wt[(s_, hh)]].insert(0, seq([f'ds_write_b128 v{8+ex_}, {A(WB+8*(s_-WS0)+4*hh,4)} offset:{so + 1024*hh}']))
    busy = ({(0, 0), (3, 2), (4, 0), (4, 2)} if DCW else {(0, 2), (3, 0), (3, 2), (4, 0)}) if not E_('NOYG', '0') else set()
    VP = E_('VP', '2')
    for sh in range(0, 96, VP):
        k_, mi = divmod(sh, 4)
        if (k_, mi) in busy: continue
        for it in items:
            if it[1] < k_ or (it[1] == k_ and mi >= 2):
                ex[(k_, mi)].insert(0, it[2]); items.remove(it)
                if k_ > it[0] + 3: print('late item', it[:2], k_)
                break
    assert not items, len(items)
    def hfrag(k, tb):
        n, sg = divmod(k, 4)
        return V(HOWN + 16*tb + 4*sg, 4) if n == 0 else A(32*(n-1) + 16*tb + 4*sg, 4)
    FT = 168
    def e_ft(s_):
        def f():
            a.wait(dtok[52 + s_]); ex_, so = slot(52 + s_)
            for fb in (1, 0):
                for o in (0, 2): I(f'ds_read_b64_tr_b16 {V(FT+16*fb+4*s_+o,2)}, v{[(vG2, vG3), (vE2, vE3)][ex_][fb]} offset:{so + 256*o}')
        return f
    for s_ in range(4): ex[(22 + s_//2, s_ & 1)].insert(0, e_ft(s_))
    gemm(28, F2, hfrag, lambda k: [], lambda fb: '0', VA2, ex, nstep=24, npre=NPRE)
    stamp()
    fill = []
    for e in range(8): fill += [f'v_lshlrev_b32 v{t+2*e}, 16, v{DS+e}', f'v_and_b32 v{t+2*e+1}, s{sHI}, v{DS+e}']
    for e in range(16): fill.append(f'v_mul_f32 v{XN+e}, v{XN+e}, v{t+e}')
    for e in range(8): fill += [f'v_lshlrev_b32 v{t+2*e}, 16, v{B2+e}', f'v_and_b32 v{t+2*e+1}, s{sHI}, v{B2+e}']
    prev = None; n_ = 0
    for x in (3, 2, 1, 0):
        fb, tb = x & 1, x >> 1; d = V(ACC + 16*x, 16)
        for s_ in range(4):
            I(f'v_mfma_f32_32x32x16_bf16 {d}, {V(FT+16*fb+4*s_,4)}, {hfrag(24+s_, tb)}, {d}')
            if prev:
                for q in ((), (0,), (1,), (2, 3))[s_] if E_('TW', '1') else ((), (), (0, 1), (2, 3))[s_]: I(f'ds_write_b128 v{rw}, {V(ACC+16*prev+4*q,4)} offset:{4096*(prev-1) + 1024*q}')
            if n_ == YTP: e_yl()
            elif not prev or s_ < 3:
                for _ in range((4 if not prev else (5, 3, 3)[s_])):
                    if fill: I(fill.pop(0))
            n_ += 1
        prev = x
    for f in fill: I(f)
    stamp(3)
    a.barrier()
    stamp(3)
    for hf in range(2):
        for x in range(1, 4):
            for q in (2*hf, 2*hf+1): I(f'ds_read_b128 {V(ACC+16*x+4*q,4)}, v{rw+x} offset:{4096*(x-1) + 1024*q}')
    I(f's_mov_b32 s{sK}, {f2u(-math.log2(math.e))}')
    for e in range(8): I(f'v_pk_add_f32 {V(ACC+2*e,2)}, {V(ACC+2*e,2)}, {V(t+2*e,2)}')
    OSC = os.environ.get('OSC', ''); ty = 44
    for hf in range(2):
        R8 = range(4*hf, 4*hf+4)
        for x in range(1, 4):
            for e in R8: I(f'v_pk_add_f32 {V(ACC+2*e,2)}, {V(ACC+2*e,2)}, {V(ACC+16*x+2*e,2)}')
        if hf == E_('YW', '1'):
            I(f'ds_write_b128 v{yw}, {V(YR,4)}'); I(f'ds_write_b128 v{yw}, {V(YR+4,4)} offset:1024')
            for q in range(4): I(f'ds_read_b64_tr_b16 {V(YR+2*q,2)}, v{yr} offset:{256*q}')
        for e in R8: I(f'v_pk_mul_f32 {V(t+2*e,2)}, {V(ACC+2*e,2)}, s[{sK}:{sK+1}] op_sel_hi:[1,0]')
        for e in range(8*hf, 8*hf+8): I(f'v_exp_f32 v{t+e}, v{t+e}')
        for e in R8: I(f'v_pk_add_f32 {V(t+2*e,2)}, {V(t+2*e,2)}, 1.0 op_sel_hi:[1,0]')
        for e in range(8*hf, 8*hf+8): I(f'v_rcp_f32 v{t+e}, v{t+e}')
        for e in R8: I(f'v_pk_mul_f32 {V(t+2*e,2)}, {V(t+2*e,2)}, {V(ACC+2*e,2)}')
    for hf in range(2):
        R8 = range(4*hf, 4*hf+4)
        for e in R8: unpack(ty+2*e, ty+2*e+1, YR+e)
        for e in R8: I(f'v_pk_add_f32 {V(XN+2*e,2)}, {V(XN+2*e,2)}, {V(ty+2*e,2)}')
        for e in R8: I(f'v_pk_fma_f32 {V(XN+2*e,2)}, {V(XN+2*e,2)}, {V(t+2*e,2)}, {V(XF32+2*e,2)}')
        for e in R8: I(f'v_cvt_pk_bf16_f32 v{YR+e}, v{XN+2*e}, v{XN+2*e+1}')
        I(f'buffer_store_dwordx4 {V(YR+4*hf,4)}, v{vX}, s[{SOUT}:{SOUT+3}], s{sXO} offen offset:{16*hf} {OSC}')
    stamp()
    fin()
    return a

def build(stop=99, stamps=False):
    a = gen(stop, stamps)
    ref = open(f'cdna_kernels/{NAME}.s.ref').read()
    head = ref[:ref.index('; @launch')]
    txt = head + f'; @launch grid=(224,1,1) block=(256,1,1) lds={LEND}\n'
    txt += f'.amdgcn_target "amdgcn-amd-amdhsa--gfx950"\n.text\n.globl {NAME}_kernel\n.p2align 8\n.type {NAME}_kernel,@function\n{NAME}_kernel:\n'
    pre = txt
    tail = 'END:\n    s_endpgm\nEND0:\n    s_waitcnt lgkmcnt(0)\n    s_endpgm\n'
    sz = sizes(pre + a.text() + tail)
    if ALIGN:
        a.out, tot, np_, nn = align(a.out, sz); print('align: residual', tot, 'promoted', np_, 'nops', nn, 'bytes', sum(sz))
    txt += a.text() + tail
    txt += f'''.section .rodata,"a"
.p2align 6
.amdhsa_kernel {NAME}_kernel
  .amdhsa_next_free_vgpr 512
  .amdhsa_next_free_sgpr 102
  .amdhsa_accum_offset 256
  .amdhsa_group_segment_fixed_size 0
  .amdhsa_kernarg_size 136
  .amdhsa_user_sgpr_count 2
  .amdhsa_user_sgpr_kernarg_segment_ptr 1
  .amdhsa_system_sgpr_workgroup_id_x 1
.end_amdhsa_kernel
'''
    return txt, a
if __name__ == '__main__':
    stop = int(sys.argv[2]) if len(sys.argv) > 2 else 99
    stamps = int(sys.argv[3]) if len(sys.argv) > 3 else 0
    txt, a = build(stop, stamps)
    open(sys.argv[1], 'w').write(txt)
    print('instrs', a.n, 'nops', a.nops)
```

```python
import sys, struct, math, os
from collections import defaultdict
sys.path.insert(0, 'work')
from asmlib import *
NAME = 'recurrent_scan__ssm_conv_s4__mixer_channel_mlp__prompt'
def f2u(x): return '0x%08x' % struct.unpack('<I', struct.pack('<f', x))[0]
E_ = lambda k, d: int(os.environ.get(k, d))
LA, LB, LRING, LEND = 0, 69888, 79104, 161024
WR = 17408; LXS = 14592
UCH = 16656; LEXT = 33312
Y2S = 912; NSLOT = 10; NEXT = E_('NEXT', '4')
XNT, YT, HB, FL, STAMP = 0, 0x200000, 0x400000, 0xB00000, 0xC00000
XF, HF, YF = FL, FL + 0x20000, FL + 0x40000
SX, SW1, SW2, SWS, SOUT, SU, SDBG = 40, 44, 48, 52, 56, 60, 64
sJ, sR, sW, sNON, sRING, sT0, sT1, sT2 = 68, 69, 70, 71, 72, 73, 74, 75
sW2 = 76; sH = 83; sK = 90; sXO = 92; sLD = 93; sP = 94; sC = 95; sHI = 3; sST = 96
sXF, sXT, sPF2, sHF0, sY, sKB, sYF, sUB, sEXT, sDM, sRK, sDL, sY8 = 4, 5, 6, 7, 8, 9, 10, 11, 12, 13, 14, 15, 89
vD1, vD2, vA0, vA1, vB0, vB1, vPAR, vL16 = 1, 2, 3, 4, 5, 6, 7, 13
xa, xb, p1, p2, vb1, wy, wx, wxn, wst, wstn, xr, xs = 14, 15, 16, 18, 20, 21, 22, 23, 24, 25, 26, 27
xk, xp, k1, k2, kz, bm = 28, 29, 35, 36, 37, 34
tw, twA, twB, tr, dt = 35, 36, 37, 38, 39
vG2, vTR = 60, 61
HOWN = 224
ALIGN = E_('ALIGN', '1'); LVL = E_('LVL', '1')
WS = f's[{SWS}:{SWS+3}]'

def gen(stop=99, stamps=False):
    a = Asm(); I = a
    nst = [0]; late_ = [0]
    def stamp(lvl=1, pre=None, nm=None):
        if nm in os.environ.get('ST', '').split(','): lvl = 1
        if not stamps or lvl > LVL: return
        if LVL == 4 and lvl == 3 and late_[0]: return
        inf = a.infill; a.infill = True
        if pre is None: I(f's_memtime s[{sST}:{sST+1}]'); a.waitcnt(lg=0)
        else: I(f's_mov_b32 s{sST}, s{pre}')
        I(f'v_mov_b32 v63, s{sST}'); I(f's_lshl_b32 s{sST+2}, s2, 2'); I(f's_add_u32 s{sST+2}, s{sST+2}, s{sW}')
        I(f's_lshl_b32 s{sST+2}, s{sST+2}, 7'); I(f's_add_u32 s{sST+2}, s{sST+2}, {STAMP + 4*nst[0]}')
        I('s_mov_b64 exec, 1'); I(f'buffer_store_dword v63, off, {WS}, s{sST+2}'); I('s_mov_b64 exec, -1')
        nst[0] += 1; a.infill = inf; assert nst[0] <= 30
    def srd(d, b, n):
        I(f's_mov_b32 s{d}, s{b}'); I(f's_mov_b32 s{d+1}, s{b+1}'); I(f's_mov_b32 s{d+2}, {n}'); I(f's_mov_b32 s{d+3}, 0x00020000')
    def fin():
        if stamps:
            I('v_mov_b32 v62, s22'); I('s_memrealtime s[96:97]'); I('v_mov_b32 v63, s96'); I(f's_lshl_b32 s98, s2, 2'); I(f's_add_u32 s98, s98, s{sW}')
            I('s_lshl_b32 s98, s98, 7'); I(f's_add_u32 s98, s98, {STAMP + 120}'); I(f'buffer_store_dwordx2 v[62:63], off, {WS}, s98')
            a.label('PCL'); I('s_getpc_b64 s[96:97]'); I('s_sub_u32 s96, s96, PCL+4-%s_kernel' % NAME); I('s_subb_u32 s97, s97, 0')
            I('v_mov_b32 v62, s96'); I('v_mov_b32 v63, s97'); I('s_mov_b32 s96, 0xCF0000')
            I(f'buffer_store_dwordx2 v[62:63], off, {WS}, s96')
        a.waitcnt(vm=0, lg=0); a._emit('s_endpgm')
    lab = [0]
    def poll(reload, cmp):
        lab[0] += 1; n = f'P{lab[0]}'; inf = a.infill; a.infill = True
        cmp(); a.settle(); a._emit(f's_cbranch_scc0 {n}_ok'); st = a.snap()
        I(f's_mov_b32 s{sST+3}, 0x40000'); a.label(f'{n}_lp')
        reload(); a._emit('s_waitcnt vmcnt(0)'); a.vm = []
        I(f's_sub_u32 s{sST+3}, s{sST+3}, 1'); a._emit(f's_cbranch_scc1 {n}_ok')
        cmp(); a.settle(); a._emit(f's_cbranch_scc1 {n}_lp')
        a.label(f'{n}_ok'); a.restore(st); a.infill = inf
    def cmp_flag(vf):
        def f(): I(f'v_cmp_ne_u32 vcc, s{sNON}, v{vf}'); I('s_and_b64 vcc, vcc, exec')
        return f
    def flag_store(soff, off=0):
        I(f'v_mov_b32 v62, s{sNON}'); I('s_mov_b64 exec, 1')
        I(f'buffer_store_dword v62, off, {WS}, s{soff} offset:{off} sc1'); I('s_mov_b64 exec, -1')
    def unpack(dlo, dhi, src):
        I(f'v_lshlrev_b32 v{dlo}, 16, v{src}'); I(f'v_and_b32 v{dhi}, s{sHI}, v{src}')
    def rne2(x, y, t):
        I(f'v_cvt_pk_bf16_f32 v{t}, v{x}, v{y}'); unpack(x, y, t)
    def bar(*toks):
        a.wait(*toks); a._emit('s_barrier')
    seq = lambda l: (lambda: [I(x) for x in l] and None)
    def chunks(l, n=4): return [seq(l[i:i+n]) for i in range(0, len(l), n)]

    I('s_load_dwordx16 s[4:19], s[0:1], 0'); I('s_load_dwordx16 s[20:35], s[0:1], 64'); I('s_load_dwordx2 s[36:37], s[0:1], 128')
    I('s_cmp_ge_u32 s2, 224'); a._emit('s_cbranch_scc1 END0')
    I('s_getpc_b64 s[98:99]'); a.label('PC0')
    I(f's_lshl_b32 s{sT0}, s2, 11'); I(f's_and_b32 s{sT0}, s{sT0}, 0x4000'); I(f'v_lshl_add_u32 v1, v0, 6, s{sT0}'); I('v_min_u32 v1, END-PC0, v1')
    a.pf('global_load_dword a255, v1, s[98:99]')
    if stamps: I('s_memtime s[100:101]'); I('s_memrealtime s[96:97]')
    rho, c8, hb, q0_, q1_, q2_ = 54, 55, 56, 57, 58, 59
    I(f's_lshl_b32 s{sT0}, s2, 10'); I(f'v_lshl_add_u32 v{q0_}, v0, 2, s{sT0}')
    I('v_lshrrev_b32 v1, 6, v0'); I('v_and_b32 v0, 63, v0'); I(f'v_readfirstlane_b32 s{sW}, v1')
    MAP = E_('MAP', '0')
    if MAP:
        I(f's_lshr_b32 s{sT1}, s2, 3'); I(f's_mul_i32 s{sK}, s{sT1}, 37'); I(f's_lshr_b32 s{sK}, s{sK}, 8'); I(f's_mul_i32 s{sT0}, s{sK}, 7')
        I(f's_sub_u32 s{sJ}, s{sT1}, s{sT0}'); I(f's_and_b32 s{sT1}, s2, 7'); I(f's_lshl_b32 s{sT1}, s{sT1}, 2'); I(f's_add_u32 s{sR}, s{sK}, s{sT1}')
    else:
        I(f's_and_b32 s{sT0}, s2, 1'); I(f's_mul_i32 s{sT0}, s{sT0}, 28'); I(f's_lshr_b32 s{sT1}, s2, 3'); I(f's_add_u32 s{sT0}, s{sT0}, s{sT1}')
        I(f's_lshr_b32 s{sJ}, s{sT0}, 3'); I(f's_and_b32 s{sK}, s{sT0}, 7'); I(f's_and_b32 s{sT1}, s2, 6'); I(f's_lshl_b32 s{sT1}, s{sT1}, 2')
        I(f's_add_u32 s{sR}, s{sK}, s{sT1}')
    I(f'v_lshrrev_b32 v{rho}, 3, v0'); I(f'v_and_b32 v{c8}, 7, v0')
    I(f'v_mul_u32_u24 v{xa}, 896, v{rho}'); I(f'v_lshl_add_u32 v{xa}, v{c8}, 4, v{xa}')
    I(f's_lshl_b32 s{sT0}, s{sR}, 2'); I(f's_add_u32 s{sT0}, s{sT0}, s{sW}'); I(f's_mul_i32 s{sT0}, s{sT0}, {16*896}')
    I(f'v_add_u32 v{xa}, s{sT0}, v{xa}'); I(f'v_add_u32 v{xb}, 7168, v{xa}')
    sXC = 76
    I(f's_lshl_b32 s{sXC}, s{sJ}, 7')
    for i in range(1, 7):
        I(f's_add_u32 s{sXC+i}, s{sXC+i-1}, 384'); I(f's_cmp_ge_u32 s{sXC+i}, 896'); I(f's_cselect_b32 s{sT1}, 896, 0'); I(f's_sub_u32 s{sXC+i}, s{sXC+i}, s{sT1}')
    I(f'v_mul_u32_u24 v{vD1}, 3584, v{rho}'); I(f'v_lshl_add_u32 v{p1}, v{c8}, 6, v{vD1}')
    assert not MAP
    PFO = E_('PFO', '0')
    if PFO:
        I(f's_lshl_b32 s{sT2}, s{sK}, 2'); I(f's_add_u32 s{sT2}, s{sT2}, s{sW}'); I(f's_mul_i32 s{sT0}, s{sT2}, {14*3584}')
        I(f's_lshl_b32 s{sT1}, s{sJ}, 9'); I(f's_add_u32 s{sT0}, s{sT0}, s{sT1}'); I(f'v_add_u32 v{p1}, s{sT0}, v{p1}')
        I(f's_cmp_ge_u32 s{sK}, 4'); I(f's_cselect_b32 s{sT0}, {(-224*3584) & 0xffffffff}, 0'); I(f's_cselect_b32 s{sT1}, 0, {224*3584}')
        I(f's_add_u32 s{sT0}, s{sT0}, s{sT1}'); I(f'v_add_u32 v{p1+1}, s{sT0}, v{p1}'); I(f's_mov_b32 s{sY8}, {8*3584}')
    else:
        sQ, sJS = 38, 39
        I(f's_lshr_b32 s{sT1}, s2, 3'); I(f's_mul_i32 s{sJS}, s{sT1}, 37'); I(f's_lshr_b32 s{sJS}, s{sJS}, 8'); I(f's_mul_i32 s{sT0}, s{sJS}, 7')
        I(f's_sub_u32 s{sT1}, s{sT1}, s{sT0}'); I(f's_lshl_b32 s{sT1}, s{sT1}, 2'); I(f's_add_u32 s{sQ}, s{sT1}, s{sW}')
        I(f's_and_b32 s{sT0}, s2, 1'); I(f's_mul_i32 s{sT0}, s{sT0}, 3'); I(f's_add_u32 s{sJS}, s{sJS}, s{sT0}')
        I(f's_mul_i32 s{sT0}, s{sQ}, {8*3584}'); I(f's_lshl_b32 s{sT1}, s{sJS}, 9'); I(f's_add_u32 s{sT0}, s{sT0}, s{sT1}'); I(f'v_add_u32 v{p1}, s{sT0}, v{p1}')
        I(f's_mul_i32 s{sT0}, s{sQ}, {32*896}'); I(f's_lshl_b32 s{sT1}, s{sJS}, 7'); I(f's_add_u32 s{sT2}, s{sT0}, s{sT1}'); I(f's_mov_b32 s{sY8}, {224*3584}')
    I(f's_mov_b32 s{SW1+2}, {448*3584}'); I(f's_mov_b32 s{SW1+3}, 0x00020000')
    I(f's_mov_b32 s{SX+2}, {2048*896}'); I(f's_mov_b32 s{SX+3}, 0x00020000'); I(f's_lshl_b32 s{sT1}, s2, 2')
    for i in range(6): I(f'global_load_dword v{vPAR+i}, v{q0_}, s[{6+2*i}:{7+2*i}]')
    I(f's_load_dword s{sLD}, s[18:19], s{sT1}')
    I(f's_mov_b32 s{SX}, s4'); I(f's_mov_b32 s{SX+1}, s5'); I(f's_mov_b32 s{SW1}, s24'); I(f's_mov_b32 s{SW1+1}, s25')
    X0, X1 = 192, 220
    if PFO:
        def wpf(p, S_, so, nm):
            def g():
                I(f's_cmp_lg_u32 s{sJ}, 3'); a._emit(f's_cbranch_scc1 {nm}')
                a._emit(f'buffer_load_dword a255, v{p+1}, s[{S_}:{S_+3}], 0 offen'); a._emit(f'buffer_load_dword a255, v{p+1}, s[{S_}:{S_+3}], s{so} offen')
                a.label(nm)
            return [lambda: a.pf(f'buffer_load_dword a255, v{p}, s[{S_}:{S_+3}], 0 offen'), lambda: a.pf(f'buffer_load_dword a255, v{p}, s[{S_}:{S_+3}], s{so} offen'), g]
    else:
        def wpf(p, S_, so, nm): return [(lambda o=o: a.pf(f'buffer_load_dword a255, v{p}, s[{S_}:{S_+3}], {o} offen')) for o in ('0', f's{so}')]
    B1R = 176; CB = 144
    src = {'x': [seq([f'buffer_load_dwordx4 {V(X+4*i,4)}, v{v_}, s[{SX}:{SX+3}], s{sXC+i} offen']) for i in range(7) for X, v_ in ((X0, xa), (X1, xb))],
           'f': wpf(p1, SW1, sY8, 'NOPF1'), 'h': wpf(p2, SW2, sPF2, 'NOPF2'),
           'r': [(lambda k=k, hh=hh: dma1(k, hh)) for k in range(NSLOT) for hh in range(2)],
           'b': [seq([f'global_load_dwordx4 {V(B1R+8*fb+4*q,4)}, v{vb1}, s[26:27] offset:{64*fb+16*q}']) for fb in range(2) for q in range(2)]}
    NW = E_('NW', '9'); WB = 192 - 8*NW; WS0 = 56 - NW
    def wld(st_, hh):
        def f():
            n, sg = divmod(st_ - 28, 4)
            I(f's_add_u32 s{sDM}, s{sW2+n if WL else 12+n}, {(32*(sg>>1) + 8*(sg&1) + 16*hh)*896}')
            I(f'buffer_load_dwordx4 {A(WB+8*(st_-WS0)+4*hh,4)}, v{vD2}, s[{SW2}:{SW2+3}], s{sDM} offen')
        return f
    WL = E_('WL', '1')
    src['w'] = [] if WL else [wld(st_, hh) for st_ in list(range(max(48, WS0), 56)) + list(range(WS0, 48)) for hh in range(2)]
    src['r'] = src['r'][:18]; vNON = 57
    ldNON = lambda: I(f'buffer_load_dword v{vNON}, off, s[{SDBG}:{SDBG+3}], 0 sc1')
    src['n'] = [ldNON]
    sched = {}
    for it in os.environ.get('KS', ('p:x6f,0:f,1:x,2:fx,3:x,4:x,5:x,6:x,7:x,a2:x,a6:h,9:h2,12:b4,15:n,' if PFO else 'p:x6f,0:f,1:x,2:x,3:x,4:x,5:x,6:x,7:x,a2:x,a6:h,10:h,12:b4,15:n,') + ','.join([f'{i}:r' for i in (11,13,14)]+[f'c{i}:r' for i in range(9)]+[f'{17+i}:r' for i in (0,1,3,5,7,8)]) + ''.join(f',{40-len(src["w"])+i}:w' if len(src['w']) - i <= 14 else f',m{i}:w' for i in range(len(src['w'])))).split(','):
        k_, v_ = it.split(':'); sched[k_] = sched.get(k_, []) + [src[c].pop(0) for c, n in re.findall(r'([a-z])(\d*)', v_) for _ in range(int(n or 1))]
    assert not any(src.values()), src
    hk = [0]
    def hook(nm=None):
        for f in sched.pop(nm or str(hk[0]), []): f()
        if not nm: hk[0] += 1
    sched.pop('z', None)
    for f in sched.pop('p', []): f()
    I('s_memrealtime s[38:39]')
    if stamps:
        I('s_mov_b32 s22, s96')
        if LVL >= 3: I('s_memtime s[96:97]'); I('s_mov_b32 s23, s96')
    I(f's_mov_b32 s{sHI}, 0xffff0000')
    I(f's_and_b32 s{sP}, s{sW}, 1'); I(f's_lshr_b32 s{sC}, s{sW}, 1'); I(f'v_lshlrev_b32 v{vL16}, 4, v0'); I(f'v_lshrrev_b32 v{hb}, 5, v0')
    I(f's_lshl_b32 s{sRK}, s{sJ}, 7'); srd(SWS, 36, 0x1000000); srd(SDBG, 34, 256); srd(SW2, 28, 1792*896)
    I(f's_or_b32 s{sNON}, s2, s{sW}'); I(f's_cmp_lg_u32 s{sNON}, 0'); a.settle(); a._emit('s_cbranch_scc1 NONCE')
    st = a.snap(); I('s_or_b32 s38, s38, 1'); I('v_mov_b32 v62, s38'); I('s_mov_b64 exec, 1')
    I(f'buffer_store_dword v62, off, s[{SDBG}:{SDBG+3}], 0 sc1'); I('s_mov_b64 exec, -1'); a.settle()
    a.label('NONCE'); a.restore(st)
    I(f'v_lshrrev_b32 v{p2}, 1, v0'); I(f'v_mul_u32_u24 v{p2}, 896, v{p2}'); I(f'v_and_b32 v{q0_}, 1, v0'); I(f'v_lshl_add_u32 v{p2}, v{q0_}, 6, v{p2}')
    if PFO:
        I(f's_mul_i32 s{sT0}, s{sT2}, {56*896}'); I(f's_add_u32 s{sT0}, s{sT0}, s{sRK}'); I(f'v_add_u32 v{p2}, s{sT0}, v{p2}')
        I(f's_cmp_ge_u32 s{sK}, 4'); I(f's_cselect_b32 s{sT0}, {(-896*896) & 0xffffffff}, 0'); I(f's_cselect_b32 s{sT1}, 0, {896*896}'); I(f's_add_u32 s{sT0}, s{sT0}, s{sT1}')
        I(f'v_add_u32 v{p2+1}, s{sT0}, v{p2}'); I(f's_mov_b32 s{sPF2}, {32*896}')
    else:
        I(f'v_add_u32 v{p2}, s{sT2}, v{p2}'); I(f's_mov_b32 s{sPF2}, {896*896}')
    I(f'v_lshrrev_b32 v{q0_}, 2, v0'); I(f'v_and_b32 v{q0_}, 4, v{q0_}'); I(f'v_xor_b32 v{q0_}, v{q0_}, v{c8}'); I(f'v_lshlrev_b32 v{q0_}, 4, v{q0_}')
    I(f'v_mul_u32_u24 v{vD2}, 896, v{rho}'); I(f'v_add_u32 v{vD2}, v{vD2}, v{q0_}')
    I(f's_lshl_b32 s{sT2}, s{sJ}, 2'); I(f's_add_u32 s{sT2}, s{sT2}, s{sW}'); I(f's_lshl_b32 s{sT0}, s{sT2}, 7')
    I(f'v_add3_u32 v{vD1}, s{sT0}, v{vD1}, v{q0_}')
    I(f'v_lshl_add_u32 v{vb1}, v{hb}, 5, s{sT0}')
    I(f's_mul_i32 s{sT0}, s{sW}, {64*896}'); I(f's_add_u32 s{sT0}, s{sT0}, s{sRK}')
    for n in ((4, 5, 6) if not WL else ()):
        I(f's_add_u32 s{sT1}, s{sJ}, {n}'); I(f's_cmp_ge_u32 s{sT1}, 7'); I(f's_cselect_b32 s{12+n}, 7, 0'); I(f's_sub_u32 s{sT1}, s{sT1}, s{12+n}')
        I(f's_mul_i32 s{sT1}, s{sT1}, {256*896}'); I(f's_add_u32 s{12+n}, s{sT1}, s{sT0}')
    I(f's_mul_i32 s{sRING}, s{sW}, {NSLOT*2048}'); I(f's_add_u32 s{sRING}, s{sRING}, {LRING}')
    I(f's_lshl_b32 s{sXF}, s{sJ}, 5'); I(f's_add_u32 s{sXF}, s{sXF}, s{sR}'); I(f's_lshl_b32 s{sXF}, s{sXF}, 4'); I(f's_add_u32 s{sXF}, s{sXF}, {XF}')
    I(f's_lshl_b32 s{sXT}, s{sJ}, 18'); I(f's_lshl_b32 s{sT0}, s{sR}, 7'); I(f's_add_u32 s{sXT}, s{sXT}, s{sT0}'); I(f's_lshl_b32 s{sT0}, s{sW}, 5'); I(f's_add_u32 s{sXT}, s{sXT}, s{sT0}')
    dtok = {}
    def slot(step):
        if step < 28: return 0, (step % NSLOT) * 2048
        q = (step - 28) % (NSLOT + NEXT)
        return (0, ((28 + q) % NSLOT) * 2048) if q < NSLOT else (1, (q - NSLOT) * 2048)
    def dma1(step, hh):
        ex_, so = slot(step)
        I(f's_add_u32 m0, s{sEXT if ex_ else sRING}, {so + hh*1024}')
        if step < 28:
            I(f's_mov_b32 s{sDM}, {(16*step + 8*hh)*3584}')
            dtok[step if hh else -1] = I(f'buffer_load_dwordx4 v{vD1}, s[{SW1}:{SW1+3}], s{sDM} offen lds')
        else:
            n, sg = divmod(step - 28, 4)
            I(f's_add_u32 s{sDM}, s{sW2+n}, {(32*(sg>>1) + 8*(sg&1) + 16*hh)*896}')
            dtok[step if hh else -1] = I(f'buffer_load_dwordx4 v{vD2}, s[{SW2}:{SW2+3}], s{sDM} offen lds')
    g, r4, c4 = q0_, q1_, q2_
    I(f'v_bfe_u32 v{g}, v0, 4, 1'); I(f'v_bfe_u32 v{r4}, v0, 2, 2'); I(f'v_and_b32 v{c4}, 3, v0')
    I(f'v_lshlrev_b32 v{vTR}, 5, v{g}'); I(f'v_lshl_add_u32 v{vTR}, v{c4}, 3, v{vTR}')
    u, w_ = 40, 41
    I(f'v_and_b32 v{u}, 1, v0'); I(f'v_lshlrev_b32 v{u}, 5, v{u}'); I(f'v_lshl_or_b32 v{u}, v{g}, 4, v{u}'); I(f'v_bfe_u32 v{w_}, v0, 1, 1'); I(f'v_lshl_or_b32 v{u}, v{w_}, 3, v{u}')
    I(f'v_bfe_u32 v{w_}, v0, 3, 1'); I(f'v_lshl_or_b32 v{u}, v{w_}, 6, v{u}')
    I(f'v_lshl_add_u32 v{u}, v{r4}, 7, v{u}'); I(f'v_add_u32 v{u}, s{sRING}, v{u}')
    I(f'v_lshl_add_u32 v{vA0}, v{hb}, 10, v{u}'); I(f'v_xor_b32 v{vA1}, 64, v{vA0}')
    I(f's_lshl_b32 s{sT0}, s{sP}, 6'); I(f'v_xor_b32 v{vG2}, s{sT0}, v{vA0}')
    I(f'v_and_b32 v{u}, 15, v0'); I(f'v_mul_u32_u24 v{vB0}, {Y2S}, v{u}'); I(f'v_mul_u32_u24 v{wst}, 144, v{u}'); I(f'v_mul_u32_u24 v{w_}, {WR}, v{g}')
    I(f'v_add_u32 v{vB0}, v{vB0}, v{w_}'); I(f'v_lshl_add_u32 v{vB0}, v{hb}, 4, v{vB0}')
    I(f's_mul_i32 s{sT0}, s{sC}, {2*WR}'); I(f's_sub_u32 s{sT1}, {2*WR}, s{sT0}'); I(f'v_add_u32 v{vB1}, s{sT1}, v{vB0}'); I(f'v_add_u32 v{vB0}, s{sT0}, v{vB0}')
    I(f'v_lshl_add_u32 v{wst}, v{hb}, 5, v{wst}'); I(f's_lshl_b32 s{sT1}, s{sP}, 6'); I(f's_add_u32 s{sT0}, s{sT0}, s{sT1}'); I(f's_add_u32 s{sT0}, s{sT0}, {LXS}')
    I(f'v_mul_u32_u24 v{wstn}, {16*144}, v{g}'); I(f'v_add_u32 v{wstn}, v{wstn}, v{wst}'); I(f'v_add3_u32 v{wst}, v{wst}, v{w_}, s{sT0}')
    I(f's_mul_i32 s{sT0}, s{sC}, {32*144}'); I(f's_add_u32 s{sT0}, s{sT0}, s{sT1}'); I(f's_add_u32 s{sT0}, s{sT0}, {LB}'); I(f'v_add_u32 v{wstn}, s{sT0}, v{wstn}')
    I(f's_mul_i32 s{sT2}, s{sW}, {WR}')
    I(f'v_mul_u32_u24 v{wy}, {Y2S}, v{rho}'); I(f'v_lshl_add_u32 v{wy}, v{c8}, 4, v{wy}'); I(f'v_add_u32 v{wy}, s{sT2}, v{wy}')
    I(f'v_mul_u32_u24 v{wx}, 144, v{rho}'); I(f'v_lshl_add_u32 v{wx}, v{c8}, 4, v{wx}')
    I(f's_mul_i32 s{sT0}, s{sW}, {16*144}'); I(f's_add_u32 s{sT0}, s{sT0}, {LB}'); I(f'v_add_u32 v{wxn}, s{sT0}, v{wx}')
    I(f's_add_u32 s{sT0}, s{sT2}, {LXS}'); I(f'v_add_u32 v{wx}, s{sT0}, v{wx}')
    I(f's_add_u32 s{sT0}, s{sRING}, {9*2048}'); I(f'v_add_u32 v{xk}, s{sT0}, v{vL16}'); I(f's_xor_b32 s{sT1}, s{sW}, 1'); I(f's_mul_i32 s{sT1}, s{sT1}, {NSLOT*2048}')
    I(f's_add_u32 s{sT1}, s{sT1}, {LRING + 9*2048}'); I(f'v_add_u32 v{xp}, s{sT1}, v{vL16}')
    I(f'v_lshl_add_u32 v{xr}, v{g}, 3, v{r4}'); I(f'v_mul_u32_u24 v{xr}, 144, v{xr}'); I(f'v_lshl_add_u32 v{xr}, v{c4}, 3, v{xr}'); I(f'v_lshl_add_u32 v{xr}, v{hb}, 5, v{xr}')
    I(f's_mul_i32 s{sT0}, s{sW}, {16*144}'); I(f's_add_u32 s{sT0}, s{sT0}, {LB}'); I(f'v_add_u32 v{xr}, s{sT0}, v{xr}')
    I(f'v_lshl_add_u32 v{xs}, v{hb}, 4, v{u}'); I(f'v_lshlrev_b32 v{xs}, 12, v{xs}'); I(f'v_lshl_add_u32 v{xs}, v{g}, 4, v{xs}')
    I(f'v_mul_u32_u24 v{tw}, 272, v0'); I(f'v_add_u32 v{tw}, s{sT2}, v{tw}')
    I(f's_lshl_b32 s{sT0}, s{sP}, 5'); I(f'v_add_u32 v{twA}, s{sT0}, v{tw}'); I(f'v_subrev_u32 v{twB}, s{sT0}, v{tw}')
    I(f'v_bfe_u32 v{w_}, v0, 3, 1'); I(f'v_lshl_add_u32 v{w_}, v{hb}, 2, v{w_}'); I(f'v_mul_u32_u24 v{w_}, {8*272}, v{w_}')
    I(f'v_bfe_u32 v{tr}, v0, 2, 1'); I(f'v_lshl_add_u32 v{tr}, v{tr}, 6, v{vTR}'); I(f'v_add3_u32 v{tr}, v{tr}, v{w_}, s{sT2}')
    I(f's_lshl_b32 s{sT1}, s{sC}, 4'); I(f's_lshr_b32 s{sT1}, s{sLD}, s{sT1}'); I(f's_lshl_b32 s{sT1}, s{sT1}, 16')
    I(f'v_mov_b32 v{dt}, {f2u(math.log2(math.e))}'); I(f'v_mul_f32 v{dt}, s{sT1}, v{dt}'); I(f'v_exp_f32 v{dt}, v{dt}')
    I(f'v_cvt_pk_bf16_f32 v{dt}, v{dt}, v{dt}'); I(f'v_lshlrev_b32 v{dt}, 16, v{dt}')
    stamp(1, 100); stamp(3, 23); stamp(3, nm='ad')

    def cmuls(lst):
        for d, p, q in lst: I(f'v_pk_mul_f32 {V(d,2)}, {V(p,2)}, {V(q,2)} op_sel:[0,0] op_sel_hi:[0,1]')
        for d, p, q in lst: I(f'v_pk_fma_f32 {V(d,2)}, {V(p,2)}, {V(q,2)}, {V(d,2)} op_sel:[1,1,0] op_sel_hi:[1,0,1] neg_lo:[1,0,0]')
    G = lambda b: 64 + 2*b
    Sx = lambda i: 128 + 2*i
    HH = {i: Sx(i) for i in range(9)}
    for n, o in enumerate((256, 258, 260, 262, 264)): HH[o] = 146 + 2*n
    for n, o in enumerate((512, 516, 520, 768, 772, 776)): HH[o] = G(1 + n)
    for n, o in enumerate((1024, 1032, 1280, 1288, 1536, 1544, 1792, 1800)): HH[o] = G(8 + n)
    g1, g256, g2 = 40, 42, 44; er, ph = 46, 47; P = 48; PK = 156; KD = 208
    h0 = [0,1,2,3,4,5,6,7, 512,516,520, 1024,1032,1280,1288, None]
    h1 = [256,256,258,260,260,260,262,264, 768,772,776, 1536,1544,1792,1800, None]
    pkn = [0]; kq = []
    def kread(bt, s_):
        for o, x in ((0, 0), (2, 16*272), (4, 128), (6, 16*272+128)): I(f'ds_read_b64_tr_b16 {A(64*bt+8*s_+o,2)}, v{tr} offset:{x + 272*s_}')
    kmf = lambda bt, s_: (lambda: I(f'v_mfma_f32_32x32x16_bf16 {A(KD,16)}, {A(64*bt+8*s_,4)}, {A(64*bt+8*s_+4,4)}, {0 if (bt == 0 and s_ == 0) else A(KD,16)}'))
    def wr8(srcs, ad, off, neg):
        n_ = pkn[0]; p = PK + 8*(n_ & 1); pkn[0] += 1
        for comp in range(2):
            n = '-' if (neg and comp) else ''
            for e in range(4):
                x, y = srcs[2*e], srcs[2*e+1]
                if y is None: y = x
                I(f'v_cvt_pk_bf16_f32 v{p+4*comp+e}, {n}v{x+comp}, {n}v{y+comp}')
        for comp in range(2): I(f'ds_write_b128 v{ad}, {V(p+4*comp,4)} offset:{off + 64*comp}')
        hook()
    def preamble(bt):
        l = [f'v_lshlrev_b32 v{P+i}, 16, v{vPAR+i}' if bt == 0 else f'v_and_b32 v{P+i}, s{sHI}, v{vPAR+i}' for i in range(6)]
        l += [f'v_mul_f32 v{P+i}, v{dt}, v{P+i}' for i in range(4)]
        l += [f'v_mul_f32 v{er}, {f2u(math.log2(math.e))}, v{P}', f'v_mul_f32 v{ph}, 0.15915494, v{P+1}']
        d, p, q = Sx(0), P+4, P+2
        l += [f'v_mul_f32 v{d}, v{p}, v{q}', f'v_mul_f32 v{d+1}, v{p}, v{q+1}', f'v_fma_f32 v{d}, -v{p+1}, v{q+1}, v{d}', f'v_fma_f32 v{d+1}, v{p+1}, v{q}, v{d+1}']
        T3 = ((g1, 1.0, er, ph), (G(1), 8.0, P, P+1), (g256, 256.0, P+2, P+3))
        for d, sc, m_, f_ in T3[1:]: l += [f'v_mul_f32 v{m_}, {f2u(sc)}, v{er}', f'v_mul_f32 v{f_}, {f2u(sc)}, v{ph}']
        for d, sc, m_, f_ in T3: l += [f'v_fract_f32 v{f_}, v{f_}', f'v_exp_f32 v{m_}, v{m_}']
        for d, sc, m_, f_ in T3: l += [f'v_cos_f32 v{d}, v{f_}', f'v_sin_f32 v{d+1}, v{f_}']
        for d, sc, m_, f_ in T3: l += [f'v_mul_f32 v{d}, v{d}, v{m_}', f'v_mul_f32 v{d+1}, v{d+1}, v{m_}']
        return l
    for bt in range(2):
        l = preamble(bt)
        if bt == 0:
            [I(l.pop(0)) for _ in range(6)]; stamp(3, nm='pw'); hook('q')
        else:
            kread(0, 0); kread(0, 1)
            for _ in range(E_('PA0', '12')): I(l.pop(0))
            for s_ in range(8):
                kmf(0, s_)()
                if s_ < 6: kread(0, s_ + 2)
                hook(f'a{s_}')
                for _ in range(E_('PA1', '3') + 2*(s_ >= 6)):
                    if l: I(l.pop(0))
            stamp(3, nm='ba')
        for x in l: I(x)
        if bt == 0: I(f'v_mov_b32 v{G(0)}, 1.0'); I(f'v_mov_b32 v{G(0)+1}, 0')
        cmuls([(G(2), G(1), G(1)), (g2, g1, g1), (Sx(1), Sx(0), g1), (Sx(8), Sx(0), G(1))])
        cmuls([(G(3), G(2), G(1)), (G(4), G(2), G(2)), (Sx(2), Sx(0), g2), (Sx(3), Sx(1), g2)])
        cmuls([(G(5), G(4), G(1)), (G(6), G(4), G(2)), (G(7), G(4), G(3)), (G(8), G(4), G(4)), (Sx(4), Sx(2), g2), (Sx(5), Sx(3), g2)])
        wr8([G(b) for b in range(8)], tw, 128, False)
        cmuls([(G(8+i), G(8), G(i)) for i in range(1, 9)] + [(Sx(6), Sx(4), g2), (Sx(7), Sx(5), g2)])
        wr8([G(b) for b in range(8, 16)], tw, 144, False)
        cmuls([(G(16+i), G(16), G(i)) for i in range(1, 8)] + [(HH[256+i], Sx(i), g256) for i in (0, 2, 4, 6, 8)])
        wr8([G(b) for b in range(16, 24)], tw, 160, False)
        cmuls([(G(16+i), G(16), G(i)) for i in range(8, 16)] + [(HH[512+i], HH[256+i], g256) for i in (0, 4, 8)])
        wr8([G(b) for b in range(24, 32)], tw, 176, False)
        cmuls([(HH[768+i], HH[512+i], g256) for i in (0, 4, 8)])
        wr8([HH[o] for o in h0[0:4] + h1[0:4]], twA, 0, True)
        cmuls([(HH[1024+i], HH[768+i], g256) for i in (0, 8)])
        cmuls([(HH[1280+i], HH[1024+i], g256) for i in (0, 8)])
        wr8([HH[o] for o in h0[4:8] + h1[4:8]], twA, 16, True)
        cmuls([(HH[1536+i], HH[1280+i], g256) for i in (0, 8)])
        wr8([HH.get(o) for o in h0[8:12] + h1[8:12]], twB, 32, True)
        cmuls([(HH[1792+i], HH[1536+i], g256) for i in (0, 8)])
        wr8([HH.get(o) for o in h0[12:16] + h1[12:16]], twB, 48, True)
        stamp(2, nm='k%d' % bt)
    s0, s1, q0, q1 = 64, 80, 66, 67; ON = 84; mk = 38
    KA = E_('KA', '3')
    for s_ in range(KA): kread(1, s_)
    I(f's_mov_b32 s{mk}, 0x22221111'); I(f's_mov_b32 s{mk+1}, 0x88884444'); I(f'v_mov_b32 v{ON+1}, 0x3f803f80'); I(f'v_cndmask_b32 v{ON}, 0, v{ON+1}, s[{mk}:{mk+1}]')
    for e in range(1, 4): I(f'v_mov_b32 v{ON+e}, v{ON}')
    sm = [f'v_mfma_f32_16x16x32_bf16 {V(D,4)}, {V(ON,4)}, {V(X+4*i,4)}, {0 if i == 0 else V(D,4)}' for i in range(7) for D, X in ((s0, X0), (s1, X1))]
    for x in sm[:6]: I(x)
    hook('c8'); sm = sm[6:]
    for s_ in range(8):
        kmf(1, s_)()
        if s_ + KA < 8: kread(1, s_ + KA)
        if s_ >= 6: I(f'ds_write_b128 v{wx}, {V((X0, X1)[s_-6],4)} offset:{8*144*(s_-6)}')
        hook(f'c{s_}')
        if s_ < 4:
            for _ in range(2): I(sm.pop(0))
        if s_ in (5, 6, 7):
            e = s_ - 4
            I(f's_mov_b32 s{mk}, {"0xffff0000" if e == 1 else 0}'); I(f's_mov_b32 s{mk+1}, {(0, 0, "0xffff", "0xffff0000")[e]}')
            for D in (s0, s1): I(f'v_cndmask_b32 v{D}, v{D}, v{D+e}, s[{mk}:{mk+1}]')
    assert not sm
    stamp(3, nm='bb')
    for r in (q0, q1): I(f'v_mov_b32 v{r}, 0')
    hk[0] = 17
    for i in range(7):
        for e in range(4):
            for X, q_ in ((X0, q0), (X1, q1)): I(f'v_dot2c_f32_bf16 v{q_}, v{X+4*i+e}, v{X+4*i+e}')
        hook()
    stamp(2, nm='dot')
    for m in ('quad_perm:[1,0,3,2]', 'quad_perm:[2,3,0,1]', 'row_half_mirror'):
        for r in (s0, s1, q0, q1): I(f'v_add_f32_dpp v{r}, v{r}, v{r} {m} row_mask:0xf bank_mask:0xf')
    MR0, MR1, AB0, AB1 = 68, 70, 72, 74
    t = 76
    for r in (s0, s1, q0, q1): I(f'v_mul_f32 v{r}, {f2u(1/448)}, v{r}')
    for s_, q_ in ((s0, q0), (s1, q1)): I(f'v_fma_f32 v{q_}, -v{s_}, v{s_}, v{q_}')
    for q_ in (q0, q1): I(f'v_max_f32 v{q_}, 0, v{q_}')
    def rstd(va, vb, oa, ob):
        I(f'v_cvt_pk_bf16_f32 v{t}, v{va}, v{vb}'); unpack(oa, ob, t)
        for o in (oa, ob): I(f'v_add_f32 v{o}, {f2u(1e-5)}, v{o}')
        rne2(oa, ob, t)
        for o in (oa, ob): I(f'v_sqrt_f32 v{o}, v{o}')
        rne2(oa, ob, t)
        for o in (oa, ob): I(f'v_rcp_f32 v{o}, v{o}')
    I(f'v_cvt_pk_bf16_f32 v{t}, v{s0}, v{s1}'); unpack(MR0, MR1, t)
    rstd(q0, q1, MR0+1, MR1+1)
    for s_, q_, M in ((s0, q0, MR0), (s1, q1, MR1)):
        I(f'v_sub_f32 v{s_}, v{s_}, v{M}'); I(f'v_mul_f32 v{q_}, v{q_}, v{M+1}')
    for s_, q_, M in ((s0, q0, MR0), (s1, q1, MR1)):
        I(f'v_mul_f32 v{s_}, v{s_}, v{M+1}'); I(f'v_mul_f32 v{q_}, v{q_}, v{M+1}')
    rne2(s0, s1, t)
    rstd(q0, q1, AB0+1, AB1+1)
    for s_, M, AB in ((s0, MR0, AB0), (s1, MR1, AB1)):
        I(f'v_mul_f32 v{AB}, v{M+1}, v{AB+1}'); I(f'v_mul_f32 v{s_}, v{s_}, v{AB+1}')
    for s_, M, AB in ((s0, MR0, AB0), (s1, MR1, AB1)):
        I(f'v_fma_f32 v{AB+1}, -v{M}, v{AB}, -v{s_}')
    a.flush(); stamp(4)
    for O, M, off, Z in ((X0, MR0, 0, 96), (X1, MR1, 8*144, 100)):
        for e in range(4): unpack(t+2*e, t+2*e+1, O+e)
        for e in range(4): I(f'v_pk_add_f32 {V(t+2*e,2)}, {V(t+2*e,2)}, {V(M,2)} op_sel_hi:[1,0] neg_lo:[0,1] neg_hi:[0,1]')
        for e in range(4): I(f'v_cvt_pk_bf16_f32 v{Z+e}, v{t+2*e}, v{t+2*e+1}')
        for e in range(4): unpack(t+2*e, t+2*e+1, Z+e)
        for e in range(4): I(f'v_pk_mul_f32 {V(t+2*e,2)}, {V(t+2*e,2)}, {V(M,2)} op_sel:[0,1] op_sel_hi:[1,1]')
        for e in range(4): I(f'v_cvt_pk_bf16_f32 v{Z+e}, v{t+2*e}, v{t+2*e+1}')
        I(f'ds_write_b128 v{wxn}, {V(Z,4)} offset:{off}')
        if off:
            for q in range(2):
                for z in range(2): I(f'ds_read_b64_tr_b16 {V(112+4*q+2*z,2)}, v{xr} offset:{64*q + 576*z}')
        hook()
    tk = {}; stamp(4)
    I(f's_add_u32 s{sT0}, s{sXT}, {32*4096}')
    for i in range(7):
        if i in (1, 3, 5): stamp(4)
        I(f'v_add_u32 v{104+i}, s{sXC+i}, v{wy}')
        for n, (X, AB, off) in enumerate(((X0, AB0, 0), (X1, AB1, 8*Y2S))):
            tt = t + 8*n
            for e in range(4): unpack(tt+2*e, tt+2*e+1, X+4*i+e)
            for e in range(4): I(f'v_pk_fma_f32 {V(tt+2*e,2)}, {V(tt+2*e,2)}, {V(AB,2)}, {V(AB,2)} op_sel:[0,0,1] op_sel_hi:[1,0,1]')
            for e in range(4): I(f'v_cvt_pk_bf16_f32 v{X+4*i+e}, v{tt+2*e}, v{tt+2*e+1}')
            I(f'ds_write_b128 v{104+i}, {V(X+4*i,4)} offset:{off}')
            if i == 0: tk['xn'] = I(f'buffer_store_dwordx4 {V(112+4*n,4)}, v{xs}, {WS}, s{(sXT, sT0)[n]} offen sc1')
            hook()
    for q in range(2): I(f'ds_write_b128 v{xk}, {A(KD+8+4*q,4)} offset:{1024*q}')
    assert not sched, sched
    for fb in range(2):
        for e in range(8): unpack(CB+16*fb+2*e, CB+16*fb+2*e+1, B1R+8*fb+e)
    stamp(4, nm='y2')
    def cm(): I(f'v_readfirstlane_b32 s{sNON}, v{vNON}'); I(f's_cmp_eq_u32 s{sNON}, 0')
    poll(ldNON, cm)
    stamp(3)
    a.wait(tk['xn']); a.barrier()
    stamp()
    late_[0] = 1
    ACC = 64
    def gemm(base, FA, bfrag, breads, cinit, va, extra, nstep=28, npre=0, dm=None):
        def reads(k):
            ex_, so = slot(base + k)
            r = [f'ds_read_b64_tr_b16 {A(FA(k)+o,2)}, v{v_} offset:{so+x}' for v_, o0 in ((va[ex_][0], 0), (va[ex_][1], 4)) for o, x in ((o0, 0), (o0+2, 512))]
            b = breads(k)
            return r[:2] + b[:1] + r[2:] + b[1:]
        if nstep == 0: return reads
        for k in range(npre, 2):
            a.wait(dtok[base+k])
            for x in reads(k): I(x)
        for f in extra.get((-1, 0), []): f()
        for k in range(nstep):
            nx = reads(k+2) if npre <= k + 2 < nstep else []
            nd = base + k + NSLOT
            for mi, (fb, tb) in enumerate(((0, 0), (1, 0), (0, 1), (1, 1))):
                d = V(ACC + 32*tb + 16*fb, 16)
                I(f'v_mfma_f32_32x32x16_bf16 {d}, {A(FA(k)+4*fb,4)}, {bfrag(k, tb)}, {cinit(fb) if k == 0 else d}')
                if mi == 0 and nx:
                    a.wait(dtok[base+k+2])
                    for x in nx[:len(nx)//2]: I(x)
                if mi == 1:
                    for x in nx[len(nx)//2:]: I(x)
                if mi >= 2 and not base: dma1(nd, mi - 2)
                for f in extra.get((k, mi), []): f()
            if k in (3, 9, 17): stamp(3)
    ex = defaultdict(list)
    def place(fns, k, mi, skip=()):
        for f in fns:
            while (k, mi) in skip or (k, mi) in ex:
                mi += 1
                if mi == 4: k += 1; mi = 0
            ex[(k, mi)].append(f)
        return k, mi
    def e_xe(i):
        return seq([f'ds_read_b128 {A(192+4*i,4)}, v{(wst, wstn)[i>>1]} offset:{16*(i&1)}'])
    KE, KO, KT = 128, 136, 144
    def e_kr(): I(f'ds_read_b128 {V(KE,4)}, v{xp}'); tk['kr'] = I(f'ds_read_b128 {V(KE+4,4)}, v{xp} offset:1024')
    ex[(0, 0)].append(lambda: flag_store(sXF)); ex[(0, 1)].append(e_kr)
    ex[(2, 0)].append(lambda: (bar(tk['kr']), dma1(9, 0))); ex[(2, 1)].append(lambda: dma1(9, 1))
    for i in range(4): ex[(3 + i, 1)].append(e_xe(i))
    l = chunks([f'v_accvgpr_read_b32 v{KO+e}, a{KD+e}' for e in range(8)], 3)
    l += chunks([f'v_add_f32 v{KE+e}, v{KE+e}, v{KO+e}' for e in range(8)] + [f'v_mov_b32 v{KT+16+e}, 0' for e in range(4)]
              + [f'v_cvt_pk_bf16_f32 v{KT+e}, v{KE+7-2*e}, v{KE+6-2*e}' for e in range(4)]
              + [f'v_cvt_pk_bf16_f32 v{KT+4+e}, v{KE+x}, v{KE+y}' for e, (x, y) in enumerate(((2, 2), (1, 1), (1, 0), (0, 0)))]
              + [f'v_and_b32 v{bm}, 1, v0', f'v_add_u32 v{bm}, -1, v{bm}'], 3)
    l2 = []
    for z, v0_ in enumerate((KE+3, KE+5)):
        tt = KT + 8 + 4*z
        l2 += [f'v_bfi_b32 v{KO}, v{bm}, v{v0_}, v{v0_+1}', f'v_cvt_pk_bf16_f32 v{tt}, v{v0_+1}, v{v0_+1}', f'v_cvt_pk_bf16_f32 v{tt+2}, v{v0_}, v{v0_}',
               f'v_cvt_pk_bf16_f32 v{tt+1}, v{v0_+1}, v{KO}', f'v_mov_b32 v{tt+3}, v{tt+2}']
    place(l + chunks(l2, 3), 2, 2)
    late = []; sA, sB, sD = 38, 39, sXO
    late += [f's_mov_b32 s{SOUT}, s32', f's_mov_b32 s{SOUT+1}, s33', f's_mov_b32 s{SOUT+2}, {2048*896}', f's_mov_b32 s{SOUT+3}, 0x00020000']
    late += [f's_mul_i32 s{sA}, s{sW}, {64*896}', f's_add_u32 s{sA}, s{sA}, s{sRK}', f'v_add_u32 v{vD2}, s{sA}, v{vD2}', f's_mul_i32 s{sB}, s{sR}, 28']
    late += [f's_add_u32 s{sB}, s{sB}, s{sW}', f's_lshl_b32 s{sB}, s{sB}, 13', f's_add_u32 s{sB}, s{sB}, {HB}']
    late = chunks(late, 4)
    for n in range(7):
        late += [seq([f's_add_u32 s{sA}, s{sJ}, {n}', f's_cmp_ge_u32 s{sA}, 7', f's_cselect_b32 s{sD}, 7, 0', f's_sub_u32 s{sA}, s{sA}, s{sD}']),
                 seq([f's_mul_i32 s{sW2+n}, s{sA}, {256*896}', f's_lshl_b32 s{sA}, s{sA}, 15', f's_add_u32 s{sH+n}, s{sA}, s{sB}'])]
    bef = set(ex); kk = place(late, 0, 2); assert kk[0] < 17, kk
    keep1 = set(ex) - bef
    vXF, vXFa, vHF, vHFa, vH2 = 14, 15, 16, 17, 18
    uE, uA, u3, uw, u3w, cu0, ck, ys, vL4 = 19, 20, 21, 22, 23, 24, 25, 26, 27
    xc, xq, vSH, vE2, vE3, vG3 = 28, 29, 30, 31, 32, 33
    m0_, m1_, m2_ = 57, 58, 59
    ad = [f's_lshr_b32 s{sT1}, s2, 5', f's_lshl_b32 s{sT1}, s{sT1}, 9', f's_add_u32 s{sT1}, s{sT1}, {XF}', f'v_and_b32 v{vXFa}, 31, v0',
          f'v_lshl_add_u32 v{vXFa}, v{vXFa}, 4, s{sT1}',
          f's_lshl_b32 s{sT1}, s{sR}, 2', f's_add_u32 s{sT1}, s{sT1}, s{sW}', f's_lshl_b32 s{sT1}, s{sT1}, 10', f's_add_u32 s{sT1}, s{sT1}, {HF}',
          f'v_and_b32 v{vHFa}, 7, v0', f'v_min_u32 v{vHFa}, 6, v{vHFa}', f'v_lshlrev_b32 v{vHFa}, 7, v{vHFa}', f'v_add_u32 v{vHFa}, s{sT1}, v{vHFa}',
          f's_add_u32 s{sHF0}, s{sRK}, s{sT1}',
          f's_lshl_b32 s{sT1}, s2, 1', f's_add_u32 s{sT1}, s{sT1}, s{sC}', f's_lshl_b32 s{sT1}, s{sT1}, 12', '',
          f's_add_u32 s{SU}, s36, s{sT1}', f's_addc_u32 s{SU+1}, s37, 0', f's_mov_b32 s{SU+2}, 4096', f's_mov_b32 s{SU+3}, 0x00020000',
          f's_lshl_b32 s{sT0}, s{sP}, 11', f's_add_u32 s{sY}, s{sT1}, s{sT0}', f's_add_u32 s{sY}, s{sY}, {YT}',
          f'v_add_u32 v{uE}, s{sT0}, v{vL16}', f'v_add_u32 v{uA}, -16, v{uE}', '',
          f's_cmp_eq_u32 s{sP}, 0', f's_cselect_b32 s{sT1}, -16, 4080', f'v_and_b32 v{u3}, 2, v0', f'v_mul_u32_u24 v{u3}, s{sP}, v{u3}', f'v_lshl_add_u32 v{u3}, v{u3}, 1, s{sT1}',
          f'v_and_b32 v{vSH}, 1, v0', f'v_lshlrev_b32 v{vSH}, 4, v{vSH}',
          f's_mul_i32 s{sUB}, s{sC}, {UCH}', f's_add_u32 s{sT1}, s{sUB}, 16', f'v_add_u32 v{uw}, s{sT1}, v{uE}',
          f's_mul_i32 s{sT1}, s{sP}, {257*16}', f's_add_u32 s{sT1}, s{sT1}, s{sUB}', f'v_and_b32 v{u3w}, 3, v0', f'v_mul_u32_u24 v{u3w}, 4160, v{u3w}', f'v_add_u32 v{u3w}, s{sT1}, v{u3w}',
          f's_mul_i32 s{sKB}, s{sC}, 4608', f's_add_u32 s{sKB}, s{sKB}, {LB}',
          f'v_and_b32 v{m0_}, 15, v0', f'v_add_u32 v{m1_}, 1, v{m0_}', f'v_and_b32 v{m2_}, 3, v{m1_}', f'v_sub_u32 v{m1_}, v{m1_}, v{m2_}',
          f'v_mul_u32_u24 v{m2_}, 4160, v{m2_}', f'v_lshl_add_u32 v{m2_}, v{m1_}, 1, v{m2_}', f'v_lshrrev_b32 v{m1_}, 4, v0', f'v_lshl_add_u32 v{m2_}, v{m1_}, 4, v{m2_}',
          f's_lshl_b32 s{sT1}, s{sP}, 8', f's_add_u32 s{sT1}, s{sT1}, s{sUB}', f'v_add_u32 v{cu0}, s{sT1}, v{m2_}',
          f'v_and_b32 v{m1_}, 1, v{m1_}', f'v_sub_u32 v{m2_}, v{hb}, v{m0_}', f'v_add_u32 v{m2_}, 15, v{m2_}', f'v_mul_u32_u24 v{ck}, 2304, v{m1_}',
          f'v_lshl_add_u32 v{ck}, v{m2_}, 4, v{ck}', f's_lshl_b32 s{sT1}, s{sP}, 7', f's_add_u32 s{sT1}, s{sT1}, s{sKB}', f'v_add_u32 v{ck}, s{sT1}, v{ck}',
          f'v_lshlrev_b32 v{ys}, 9, v{m1_}', f'v_lshl_add_u32 v{ys}, v{m0_}, 5, v{ys}', f'v_lshl_add_u32 v{ys}, v{hb}, 4, v{ys}', f'v_add_u32 v{vL4}, 4096, v{vL16}',
          f'v_and_b32 v{m2_}, 31, v0', f'v_sub_u32 v{m2_}, 255, v{m2_}', f'v_and_b32 v{k1}, 1, v{m2_}', f'v_lshrrev_b32 v{m2_}, 1, v{m2_}',
          f'v_mul_u32_u24 v{k1}, 2304, v{k1}', f'v_lshl_add_u32 v{k1}, v{m2_}, 4, v{k1}', f's_sub_u32 s{sT1}, s{sKB}, 512', f'v_add_u32 v{k1}, s{sT1}, v{k1}',
          f'v_lshlrev_b32 v{m2_}, 8, v{hb}', f'v_sub_u32 v{k1}, v{k1}, v{m2_}', f'v_sub_u32 v{k2}, v{k1}, v{m2_}', f'v_add_u32 v{k2}, -768, v{k2}',
          f'v_mul_u32_u24 v{kz}, 2304, v{m1_}', f'v_lshl_add_u32 v{kz}, v{m0_}, 4, v{kz}', f'v_add_u32 v{kz}, s{sKB}, v{kz}',
          f's_lshl_b32 s{sT1}, s{sW}, 12', f'v_add_u32 v{xc}, s{sT1}, v{vL16}', f'v_xor_b32 v{xq}, 4096, v{xc}',
          f's_lshl_b32 s{sT1}, s{sW}, 13', f's_add_u32 s{sEXT}, s{sT1}, {LEXT}', f's_sub_u32 s{sT1}, s{sEXT}, s{sRING}', f'v_xor_b32 v{vG3}, 64, v{vG2}',
          f'v_add_u32 v{vE2}, s{sT1}, v{vG2}', f'v_add_u32 v{vE3}, s{sT1}, v{vG3}',
          f'v_add_u32 v8, s{sRING}, v{vL16}', f'v_add_u32 v9, s{sEXT}, v{vL16}',
          f's_lshl_b32 s{sYF}, s2, 2', f's_add_u32 s{sYF}, s{sYF}, s{sW}', f's_lshl_b32 s{sYF}, s{sYF}, 4', f's_add_u32 s{sYF}, s{sYF}, {YF}']
    grp = [[]]
    for x in ad:
        if x == '' or len(grp[-1]) == 3 + all(y[0] == 's' for y in grp[-1]): grp.append([])
        if x: grp[-1].append(x)
    kk = place([seq(x) for x in grp if x], 11, 0); assert kk[0] < 21, kk; print('ad end', kk)
    ldXF = lambda: I(f'buffer_load_dword v{vXF}, v{vXFa}, {WS}, 0 offen sc1')
    XP = E_('XPS', '27')
    ex[(XP - 5, 1)].append(ldXF); ex[(XP, 3)].append(lambda: poll(ldXF, cmp_flag(vXF)))
    U0 = 40; UU = f's[{SU}:{SU+3}]'
    ul = [f'buffer_load_dwordx4 {V(U0,4)}, v{uA}, {UU}, 0 offen sc1', f'buffer_load_dwordx2 {V(U0+4,2)}, v{uE}, {UU}, 0 offen sc1',
          f'buffer_load_dwordx4 {V(U0+6,4)}, v{uE}, {UU}, 0 offen offset:1008 sc1', f'buffer_load_dwordx2 {V(U0+10,2)}, v{uE}, {UU}, 0 offen offset:1024 sc1',
          f'buffer_load_dwordx4 {V(U0+12,4)}, v{u3}, {UU}, 0 offen sc1']
    F1 = lambda k: 16*(k % 3)
    gemm(0, F1, lambda k, tb: A(F1(k)+8+4*tb, 4),
         lambda k: [f'ds_read_b128 {A(F1(k)+8+4*tb,4)}, v{vb} offset:{32*k}' for tb, vb in ((0, vB0), (1, vB1))],
         lambda fb: V(CB+16*fb, 16), [(vA0, vA1)], ex)
    a._emit('s_barrier')
    stamp()
    k0 = -2*math.sqrt(2/math.pi)*math.log2(math.e)
    I(f's_mov_b32 s{sK}, {f2u(k0*0.044715)}'); I(f's_mov_b32 s{sK+1}, {f2u(k0)}')
    for x in ul: I(x)
    def copies(d, off):
        c = 164
        def f0(): I(f'ds_write_b128 v{uw}, {V(d,4)} offset:{off}')
        def f1():
            for e in range(4): I(f'v_alignbit_b32 v{c+e}, v{d+e+1}, v{d+e}, 16')
            for e in range(4): I(f'v_mov_b32 v{c+4+e}, v{d+e+1}')
            for e in range(4): I(f'v_alignbit_b32 v{c+8+e}, v{d+e+2}, v{d+e+1}, 16')
        return f0, f1, [seq([f'ds_write_b128 v{uw}, {V(c-4+4*s_,4)} offset:{off + 4160*s_}']) for s_ in range(1, 4)]
    def e_kw():
        I(f's_cmp_eq_u32 s{sP}, 1')
        a.ifelse('KE', seq([f'ds_write_b128 v{k1}, {V(KT,4)} offset:512', f'ds_write_b128 v{kz}, {V(KT+16,4)} offset:2048', f'ds_write_b128 v{kz}, {V(KT+16,4)} offset:2048']),
                 seq([f'ds_write_b128 v{k1}, {V(KT+4,4)}', f'ds_write_b128 v{k2}, {V(KT+8,4)} offset:256', f'ds_write_b128 v{k2}, {V(KT+12,4)}']))
    def e_u3():
        for e in range(4): I(f'v_alignbit_b32 v{176+e}, {"v%d" % (U0+13+e) if e < 3 else 0}, v{U0+12+e}, v{vSH}')
        I('s_mov_b64 exec, 15'); I(f'ds_write_b128 v{u3w}, {V(176,4)}'); I('s_mov_b64 exec, -1')
    ca, cb_ = copies(U0, 0), copies(U0+6, 1024)
    exd = lambda i: [lambda: dma1(38 + i, 0), lambda: dma1(38 + i, 1)]
    gx = {3: [ca[0], cb_[0], ca[1]], 4: ca[2] + [e_kw], 5: [cb_[1]], 6: cb_[2] + [e_u3]}
    for i in range(NEXT): gx[i + E_('EXF', '0')] = exd(i) + gx.get(i + E_('EXF', '0'), [])
    wq = [wld(st_, hh) for st_ in range(WS0, 56) for hh in range(2)] if WL else []
    for f in [int(c) for c in os.environ.get('WGL', '012345')][:len(wq)]: gx[f] = gx.get(f, []) + [wq.pop(0)]
    GX = E_('GX', '1')
    if GX:
        wq = [wld(st_, hh) for st_ in range(WS0, 56) for hh in range(2)]
        vm = [f_ for i in range(NEXT) for f_ in exd(i)] + [wq.pop(0) for _ in range(E_('GW', '12'))]
        gx = {f: [vm.pop(0)] for f in range(E_('GE', '7'))}
        ls = [ca[0], ca[1], cb_[0]] + ca[2] + [cb_[1], e_kw] + cb_[2] + [e_u3]; o_ = []
        while ls or vm:
            if ls: o_.append(ls.pop(0))
            if vm: o_.append(vm.pop(0))
        gx[7] = gx.get(7, []) + o_
    t = 128
    for tb in range(2):
        for sg in range(4):
            x = ACC + 32*tb + 8*sg; Pp = lambda e: V(t+2*e, 2); Xp = lambda e: V(x+2*e, 2)
            for e in range(4): I(f'v_pk_mul_f32 {Pp(e)}, {Xp(e)}, {Xp(e)}')
            for e in range(4): I(f'v_pk_fma_f32 {Pp(e)}, {Pp(e)}, s[{sK}:{sK+1}], s[{sK}:{sK+1}] op_sel:[0,0,1] op_sel_hi:[1,0,1]')
            for e in range(4): I(f'v_pk_mul_f32 {Pp(e)}, {Pp(e)}, {Xp(e)}')
            for e in range(8): I(f'v_exp_f32 v{t+e}, v{t+e}')
            for e in range(4): I(f'v_pk_add_f32 {Pp(e)}, {Pp(e)}, 1.0 op_sel_hi:[1,0]')
            for e in range(8): I(f'v_rcp_f32 v{t+e}, v{t+e}')
            for e in range(4): I(f'v_pk_mul_f32 {Pp(e)}, {Pp(e)}, {Xp(e)}')
            f = 4*tb + sg
            for e in range(4): I(f'v_cvt_pk_bf16_f32 v{HOWN+4*f+e}, v{t+2*e}, v{t+2*e+1}')
            if f == E_('HF0', '7') and not E_('ONEF', '1'): a.wait(tk['h0']); flag_store(sHF0)
            tk['h%d' % tb] = I(f'buffer_store_dwordx4 {V(HOWN+4*f,4)}, v{vL16 if tb == 0 else vL4}, {WS}, s{sH} offen offset:{1024*sg} sc1')
            DS_ = E_('DS', '0')
            if DS_ == 1: tk['h%d' % tb] = I(f'buffer_store_dwordx4 {V(HOWN+4*f,4)}, v{vL16 if tb == 0 else vL4}, {WS}, s{sH} offen offset:{1024*sg}')
            if DS_ == 2 and f > 0: I(f'buffer_store_dwordx4 {V(HOWN+4*f-4,4)}, v{vL16 if f <= 4 else vL4}, {WS}, s{sH} offen offset:{1024*((f-1)&3)}')
            if DS_ == 2 and f == 7: I(f'buffer_store_dwordx4 {V(HOWN+4*f,4)}, v{vL4}, {WS}, s{sH} offen offset:{1024*3}')
            for g_ in gx.get(f, []): g_()
            if f < 7: stamp(4)
    stamp()
    a.barrier()
    stamp()
    if stop == 2:
        I(f's_mul_i32 s{sT0}, s2, 9216'); I(f's_add_u32 s{sT0}, s{sT0}, 0xD00000'); I(f'v_add_u32 v40, {LB}, v{vL16}')
        for i in range(9):
            I(f'ds_read_b128 v[64:67], v40 offset:{1024*i}'); I(f'buffer_store_dwordx4 v[64:67], v{vL16}, {WS}, s{sT0} offen'); I(f's_add_u32 s{sT0}, s{sT0}, 1024')
            a.waitcnt(vm=0)
        fin(); return a
    CA, CBf, CC = [64, 96], [128, 160], 192
    hld = lambda n, f: (lambda: I(f'buffer_load_dwordx4 {A(32*(n-1)+4*f,4)}, v{vL16 if f < 4 else vL4}, {WS}, s{sH+n} offen offset:{1024*(f&3)} sc1'))
    if E_('NOH', '0') in (1, 2): hld = lambda n, f: (lambda: None)
    if E_('NOH', '0') == 4: hld = lambda n, f: (lambda: I(f'buffer_load_dwordx4 {A(32*(n-1)+4*f,4)}, v{vL16 if f < 4 else vL4}, s[{SX}:{SX+3}], 0 offen offset:{1024*(f&3)} sc1'))
    if E_('NOH', '0') >= 2: poll_ = lambda *x: None
    else: poll_ = poll
    ldH0 = lambda: I(f'buffer_load_dword v{vHF}, v{vHFa}, {WS}, 0 offen sc1')
    ldH1 = lambda: I(f'buffer_load_dword v{vH2}, v{vHFa}, {WS}, 0 offen offset:64 sc1')
    cx = defaultdict(list)
    c_l0, c_p0, c_f1, c_l1, c_p1, hev = E_('CL0', '44'), E_('CP0', '80'), E_('CF1', '6'), E_('CL1', '104'), E_('CP1', '143'), E_('HEV', '5')
    ONEF = E_('ONEF', '1')
    if ONEF: c_l1, c_p1 = E_('CL', '40'), E_('CP', '76'); c_p0 = c_p1
    else: cx[c_l0].append(ldH0); cx[c_p0].append(lambda: (poll_(ldH0, cmp_flag(vHF)), stamp(3)))
    cx[c_f1].append(lambda: (a.wait(tk['h1']), flag_store(sHF0, 64), stamp(3)))
    if E_('HF0', '7') == 8: cx[E_('CF0', '3')].append(lambda: (a.wait(tk['h0']), flag_store(sHF0)))
    cx[c_l1].append(ldH1); cx[c_p1].append(lambda: (poll_(ldH1, cmp_flag(vH2)), stamp(3)))
    NPRE = E_('NPRE', '5')
    F2 = lambda k: 208 + 8*(k - 3) if 3 <= k < NPRE else 224 + 8*(k % 3)
    VA2 = [(vG2, vG3), (vE2, vE3)]
    rd2 = gemm(28, F2, None, lambda k: [], None, VA2, None, nstep=0)
    def e_pre(k):
        def f():
            a.wait(dtok[28 + k])
            for x in rd2(k): tk['pre%d' % k] = I(x)
        return f
    def e_pd(k, hh): return lambda: (a.wait(tk['pre%d' % k]), dma1(38 + NEXT + k, hh))
    for k in range(NPRE):
        cx[k if k < 3 else 28 + 2*k].append(e_pre(k))
    its = [(0 if i < 6 else 44, e_pd(i // 2, i & 1)) for i in range(2*NPRE)]; its = its[:6] + [(0, w_) for w_ in wq] + its[6:]; wq = []
    c = E_('C0', '9'); SP = float(os.environ.get('SP', '4.5'))
    while its:
        ci = int(c)
        while ci in cx: ci += 1
        ok = [x for x in its if x[0] <= ci]; ok = [x for x in ok if x[0]] or ok
        if ok: cx[ci].append(ok[0][1]); its.remove(ok[0])
        c += SP
    print('conv pre items end', ci); c_h0 = max(c_p0 + 1, int(c))
    hq0 = [(n, f) for n in range(1, 7) for f in range(4)]; hq1 = [(n, f+4) for n in range(1, 7) for f in range(4)]
    c = E_('WC0', '5')
    while wq:
        while any(c + d_ in cx for d_ in (0, 1, -1)): c += 1
        cx[c].append(wq.pop(0))
    print('w loads end', c)
    wsl = sorted([(k_, 3) for k_ in range(2, 20)] + [(int(k_), 1) for k_ in os.environ.get('WX', '9,11,13,15').split(',')]); wt = {}
    for s_ in range(WS0, 56):
        for hh in range(2):
            while wsl[0][0] < s_ - 44: wsl.pop(0)
            wt[(s_, hh)] = wsl.pop(0)
    rel = lambda n, f: (wt[(WS0 + (32*(n-1) + 4*f - WB)//8, f & 1)][0] + 0.5) if 32*(n-1) + 4*f >= WB else -1
    hlate = [x for x in hq0 + hq1 if rel(*x) >= 0]; hq0 = [x for x in hq0 if rel(*x) < 0]; hq1 = [x for x in hq1 if rel(*x) < 0]
    c = c_h0
    while c < 144:
        if c <= c_p1:
            if hq0: cx[c].append(hld(*hq0.pop(0)))
        else:
            q = hq1 if (not hq0 or hq1[0][0] < hq0[0][0] + (not ONEF)) else hq0
            cx[c].append(hld(*q.pop(0)))
        c += hev
    hrest = sorted(hq0 + hq1 + hlate); print('h loads left', len(hrest))
    def creads(st):
        r = []
        for i in range(8):
            o = 64*st + 512*i
            r.append(f'ds_read_b64 {V(CA[st&1]+4*i,2)}, v{cu0} offset:{o}'); r.append(f'ds_read_b64 {V(CA[st&1]+4*i+2,2)}, v{cu0} offset:{o+8}')
        b = [f'ds_read_b128 {V(CBf[st&1]+4*i,4)}, v{ck} offset:{256*(7-i) + 32*st}' for i in range(8)]
        return r[:2] + b + r[2:]
    ml = [(st, i, cb) for st in range(4) for i in range(8) for cb in range(i, 8)]
    idx = lambda st, pr: [n for n, m in enumerate(ml) if m[0] == st and pr(m)]
    rq = []
    for st in range(4):
        for i in range(8):
            o = 64*st + 512*i; fu = idx(st, lambda m: m[1] == i)[0]; fr = idx(st-2, lambda m: m[1] == i)[-1] if st >= 2 else -1
            rq += [(fu, fr, f'ds_read_b64 {V(CA[st&1]+4*i,2)}, v{cu0} offset:{o}'), (fu, fr, f'ds_read_b64 {V(CA[st&1]+4*i+2,2)}, v{cu0} offset:{o+8}')]
            fu = idx(st, lambda m: m[2]-m[1] == i)[0]; fr = idx(st-2, lambda m: m[2]-m[1] == i)[-1] if st >= 2 else -1
            rq.append((fu, fr, f'ds_read_b128 {V(CBf[st&1]+4*i,4)}, v{ck} offset:{256*(7-i) + 32*st}'))
    rq.sort(key=lambda x: x[0]); LAT = E_('CLAT', '9'); maxa = E_('CMAX', '40')
    while rq[0][0] < E_('CPRE', '8') + 1: I(rq.pop(0)[2])
    for cg, (st, i, cb) in enumerate(ml):
        d = V(CC+4*cb, 4)
        I(f'v_mfma_f32_16x16x32_bf16 {d}, {V(CA[st&1]+4*i,4)}, {V(CBf[st&1]+4*(cb-i),4)}, {0 if (st == 0 and i == 0) else d}')
        n_ = 0
        while rq and rq[0][1] <= cg and (rq[0][0] - cg <= LAT + (n_ == 0 and cg in cx)*(-3) or (n_ == 0 and cg not in cx and rq[0][0] - cg <= maxa)):
            I(rq.pop(0)[2]); n_ += 1
        assert not rq or rq[0][0] > cg + 1
        for f in cx.get(cg, []): f()
        if str(cg) in os.environ.get('CST', '').split(','): stamp(1)
    a._emit('s_barrier')
    stamp()
    ex = defaultdict(list)
    E1, T = 128, 160
    def e_cw(h_):
        def w(o):
            def f():
                for q in (2*h_, 2*h_+1): tk['cw'] = I(f'ds_write_b128 v{xc}, {V(CC+o+4*q,4)} offset:{1024*q}')
            return f
        return lambda: (I(f's_cmp_eq_u32 s{sP}, 1'), a.ifelse(f'CS{h_}', w(16), w(0)))
    def e_ca(q):
        def f():
            I(f's_cmp_eq_u32 s{sP}, 1'); a.wait(tk['cr%d' % q])
            a._emit(f's_cbranch_scc1 CA{q}_b'); st = a.snap()
            for e in range(4*q, 4*q+4): I(f'v_add_f32 v{E1+e}, v{E1+e}, v{CC+e}')
            a._emit(f's_branch CA{q}_j'); a.label(f'CA{q}_b'); a.restore(st)
            for e in range(4*q, 4*q+4): I(f'v_add_f32 v{E1+e}, v{E1+e}, v{CC+16+e}')
            a.label(f'CA{q}_j')
        return f
    def e_cr():
        for q in range(4): tk['cr%d' % q] = I(f'ds_read_b128 {V(E1+4*q,4)}, v{xq} offset:{1024*q}')
    DCW = E_('DCW', '0')
    if DCW:
        ex[(0, 0)].append(e_cw(0)); ex[(0, 1)].append(e_cw(1)); ex[(1, 0)].append(lambda: (bar(tk['cw']), e_cr()))
        for q in range(4): ex[(2, q)].append(e_ca(q))
    else:
        ex[(-1, 0)].append(e_cw(0)); ex[(-1, 0)].append(e_cw(1)); ex[(0, 2)].append(lambda: (bar(tk['cw']), e_cr()))
        for q in range(4): ex[(1 + (q+2)//4, (q+2) % 4)].append(e_ca(q))
    l = chunks([f'v_cvt_pk_bf16_f32 v{T+e}, v{E1+2*e}, v{E1+2*e+1}' for e in range(8)], 4)
    def e_ys(pr):
        def f(): tk['y'] = I(f'buffer_store_dwordx4 {V(T+4*pr,4)}, v{ys}, {WS}, s{sY} offen offset:{1024*pr} sc1')
        return f
    l += [seq([f'v_permlane16_swap_b32 v{T+4*pr+e}, v{T+4*pr+2+e}' for pr in range(2) for e in range(2)]), e_ys(0), e_ys(1)]
    kk = place(l, 3 if DCW else 2, 0 if DCW else 2); print('ys end', kk)
    vYF, vYFa, vX, vBD = 14, 15, 16, 19
    B2, DS, YR, XF32, XN, t = 128, 136, 144, 152, 208, 28
    ya, yw, yr, rw = 20, 21, 22, 4
    ldYF = lambda: I(f'buffer_load_dword v{vYF}, v{vYFa}, {WS}, 0 offen sc1')
    ex[(E_('YFS', '9'), 1)].append(lambda: (a.wait(tk['y']), flag_store(sYF)))
    l = [[f's_lshl_b32 s{sT2}, s{sJ}, 1', f's_add_u32 s{sT2}, s{sT2}, s{sP}', f's_lshl_b32 s{sT1}, s{sR}, 1', f's_add_u32 s{sT1}, s{sT1}, s{sC}'],
         [f's_mul_i32 s{sXO}, s{sT1}, {32*896}', f's_lshl_b32 s{sK}, s{sT2}, 6', f's_add_u32 s{sXO}, s{sXO}, s{sK}'],
         [f'v_and_b32 v{vX}, 31, v0', f'v_mul_u32_u24 v{vX}, 896, v{vX}', f'v_lshl_add_u32 v{vX}, v{hb}, 5, v{vX}'],
         [f'v_lshl_add_u32 v{vBD}, v{hb}, 5, s{sK}', f's_lshl_b32 s{sK}, s{sT2}, 10', f's_add_u32 s{sK}, s{sK}, {YF}', f'v_lshl_add_u32 v{vYFa}, v0, 4, s{sK}'],
         [f's_lshl_b32 s{sT2}, s{sT2}, 17', f's_lshl_b32 s{sK}, s{sT1}, 6', f's_add_u32 s{sT2}, s{sT2}, s{sK}', f's_add_u32 s{sT2}, s{sT2}, {YT}'],
         [f'v_lshrrev_b32 v{ya}, 2, v0', f'v_lshlrev_b32 v{ya}, 12, v{ya}', f'v_and_b32 v{yw}, 3, v0', f'v_lshl_add_u32 v{ya}, v{yw}, 4, v{ya}'],
         [f's_lshl_b32 s{sK}, s{sW}, 11', f's_add_u32 s{sK}, s{sK}, {LB}', f'v_add_u32 v{yw}, s{sK}, v{vL16}'],
         [f'v_bfe_u32 v{yr}, v0, 2, 2', f'v_lshl_add_u32 v{yr}, v{hb}, 4, v{yr}', f'v_lshl_add_u32 v{yr}, v{yr}, 6, v{vTR}', f'v_add_u32 v{yr}, s{sK}, v{yr}'],
         [f'v_add_u32 v{rw}, s{sRING}, v{vL16}', f'v_add_u32 v{rw+1}, {LRING}, v{vL16}']]
    for x in (3, 2, 1): l.append([f's_xor_b32 s{sK}, s{sW}, {x}', f's_mul_i32 s{sK}, s{sK}, {NSLOT*2048}', f'v_add_u32 v{rw+x}, s{sK}, v{rw+1}'])
    l[-1].append(f's_add_u32 s{sK}, s{sT2}, 65536')
    for i, f in enumerate(l): ex[(6 + i, 1)].append(seq(f))
    ex[(18, 2)].append(seq([f'global_load_dwordx4 {V(B2+4*q,4)}, v{vBD}, s[30:31] offset:{16*q}' for q in range(2)]))
    ex[(18, 3)].append(seq([f'global_load_dwordx4 {V(DS+4*q,4)}, v{vBD}, s[20:21] offset:{16*q}' for q in range(2)]))
    ex[(E_('YL', '21'), 2)].append(ldYF)
    for i in range(4): ex[(19 + i//2, 3*(i & 1))].append(seq([f'v_accvgpr_read_b32 v{44+4*i+e}, a{192+4*i+e}' for e in range(4)]))
    def e_unp(dst, src): return lambda: [unpack(dst+2*e, dst+2*e+1, src+e) for e in range(2)]
    l = [e_unp(XF32 + 4*i, 44 + 2*i) for i in range(4)] + [e_unp(XN + 4*i, 52 + 2*i) for i in range(4)]
    for i, f in enumerate(l): ex[(21 + i//3, 1 + i % 3)].append(f)
    def e_yl():
        poll(ldYF, cmp_flag(vYF))
        I(f'buffer_load_dwordx4 {V(YR,4)}, v{ya}, {WS}, s{sT2} offen sc1'); I(f'buffer_load_dwordx4 {V(YR+4,4)}, v{ya}, {WS}, s{sK} offen sc1')
    YTP = E_('YTP', '11')
    if YTP < 0: ex[(23, 3)].append(e_yl)
    items = [(4*n - 5, rel(n, f), hld(n, f)) for n, f in hrest] + [(s_ - 28 - 7, s_ - 28 - NSLOT - NEXT, (lambda s_=s_, hh=hh: dma1(s_, hh))) for s_ in range(38 + NEXT + NPRE, WS0) for hh in range(2)]
    items.sort(key=lambda x: x[0])
    for s_ in range(WS0, 56):
        dtok[s_] = None; ex_, so = slot(s_)
        for hh in range(2): ex[wt[(s_, hh)]].insert(0, seq([f'ds_write_b128 v{8+ex_}, {A(WB+8*(s_-WS0)+4*hh,4)} offset:{so + 1024*hh}']))
    busy = ({(0, 0), (3, 2), (4, 0), (4, 2)} if DCW else {(0, 2), (3, 2)}) if not E_('NOYG', '0') else set()
    VP = E_('VP', '2')
    xs_ = [int(x) for x in os.environ.get('VX', '1,3,5').split(',') if x]
    for sh in sorted(list(range(0, 96, VP)) + xs_):
        k_, mi = divmod(sh, 4)
        if (k_, mi) in busy: continue
        for it in items:
            if it[1] < k_ or (it[1] == k_ and mi >= 2):
                ex[(k_, mi)].insert(0, it[2]); items.remove(it)
                if k_ > it[0] + 3: print('late item', it[:2], k_)
                break
    assert not items, len(items)
    def hfrag(k, tb):
        n, sg = divmod(k, 4)
        return V(HOWN + 16*tb + 4*sg, 4) if n == 0 else A(32*(n-1) + 16*tb + 4*sg, 4)
    FT = 168
    def e_ft(s_):
        def f():
            a.wait(dtok[52 + s_]); ex_, so = slot(52 + s_)
            for fb in (1, 0):
                for o in (0, 2): I(f'ds_read_b64_tr_b16 {V(FT+16*fb+4*s_+o,2)}, v{[(vG2, vG3), (vE2, vE3)][ex_][fb]} offset:{so + 256*o}')
        return f
    for s_ in range(4): ex[(22 + s_//2, s_ & 1)].insert(0, e_ft(s_))
    gemm(28, F2, hfrag, lambda k: [], lambda fb: '0', VA2, ex, nstep=24, npre=NPRE)
    stamp()
    fill = []
    for e in range(8): fill += [f'v_lshlrev_b32 v{t+2*e}, 16, v{DS+e}', f'v_and_b32 v{t+2*e+1}, s{sHI}, v{DS+e}']
    for e in range(16): fill.append(f'v_mul_f32 v{XN+e}, v{XN+e}, v{t+e}')
    for e in range(8): fill += [f'v_lshlrev_b32 v{t+2*e}, 16, v{B2+e}', f'v_and_b32 v{t+2*e+1}, s{sHI}, v{B2+e}']
    prev = None; n_ = 0
    for x in (3, 2, 1, 0):
        fb, tb = x & 1, x >> 1; d = V(ACC + 16*x, 16)
        for s_ in range(4):
            I(f'v_mfma_f32_32x32x16_bf16 {d}, {V(FT+16*fb+4*s_,4)}, {hfrag(24+s_, tb)}, {d}')
            if prev:
                for q in ((), (0,), (1,), (2, 3))[s_] if E_('TW', '1') else ((), (), (0, 1), (2, 3))[s_]: I(f'ds_write_b128 v{rw}, {V(ACC+16*prev+4*q,4)} offset:{4096*(prev-1) + 1024*q}')
            if n_ == YTP: e_yl()
            elif not prev or s_ < 3:
                for _ in range((4 if not prev else (5, 3, 3)[s_])):
                    if fill: I(fill.pop(0))
            n_ += 1
        prev = x
    for f in fill: I(f)
    stamp(3)
    a.barrier()
    stamp(3)
    for hf in range(2):
        for x in range(1, 4):
            for q in (2*hf, 2*hf+1): I(f'ds_read_b128 {V(ACC+16*x+4*q,4)}, v{rw+x} offset:{4096*(x-1) + 1024*q}')
    I(f's_mov_b32 s{sK}, {f2u(-math.log2(math.e))}')
    for e in range(8): I(f'v_pk_add_f32 {V(ACC+2*e,2)}, {V(ACC+2*e,2)}, {V(t+2*e,2)}')
    OSC = os.environ.get('OSC', ''); ty = 44
    for hf in range(2):
        R8 = range(4*hf, 4*hf+4)
        for x in range(1, 4):
            for e in R8: I(f'v_pk_add_f32 {V(ACC+2*e,2)}, {V(ACC+2*e,2)}, {V(ACC+16*x+2*e,2)}')
        if hf == E_('YW', '1'):
            I(f'ds_write_b128 v{yw}, {V(YR,4)}'); I(f'ds_write_b128 v{yw}, {V(YR+4,4)} offset:1024')
            for q in range(4): I(f'ds_read_b64_tr_b16 {V(YR+2*q,2)}, v{yr} offset:{256*q}')
        for e in R8: I(f'v_pk_mul_f32 {V(t+2*e,2)}, {V(ACC+2*e,2)}, s[{sK}:{sK+1}] op_sel_hi:[1,0]')
        for e in range(8*hf, 8*hf+8): I(f'v_exp_f32 v{t+e}, v{t+e}')
        for e in R8: I(f'v_pk_add_f32 {V(t+2*e,2)}, {V(t+2*e,2)}, 1.0 op_sel_hi:[1,0]')
        for e in range(8*hf, 8*hf+8): I(f'v_rcp_f32 v{t+e}, v{t+e}')
        for e in R8: I(f'v_pk_mul_f32 {V(t+2*e,2)}, {V(t+2*e,2)}, {V(ACC+2*e,2)}')
    for hf in range(2):
        R8 = range(4*hf, 4*hf+4)
        for e in R8: unpack(ty+2*e, ty+2*e+1, YR+e)
        for e in R8: I(f'v_pk_add_f32 {V(XN+2*e,2)}, {V(XN+2*e,2)}, {V(ty+2*e,2)}')
        for e in R8: I(f'v_pk_fma_f32 {V(XN+2*e,2)}, {V(XN+2*e,2)}, {V(t+2*e,2)}, {V(XF32+2*e,2)}')
        for e in R8: I(f'v_cvt_pk_bf16_f32 v{YR+e}, v{XN+2*e}, v{XN+2*e+1}')
        I(f'buffer_store_dwordx4 {V(YR+4*hf,4)}, v{vX}, s[{SOUT}:{SOUT+3}], s{sXO} offen offset:{16*hf} {OSC}')
    stamp()
    fin()
    return a

def build(stop=99, stamps=False):
    a = gen(stop, stamps)
    ref = open(f'cdna_kernels/{NAME}.s.ref').read()
    head = ref[:ref.index('; @launch')]
    txt = head + f'; @launch grid=(224,1,1) block=(256,1,1) lds={LEND}\n'
    txt += f'.amdgcn_target "amdgcn-amd-amdhsa--gfx950"\n.text\n.globl {NAME}_kernel\n.p2align 8\n.type {NAME}_kernel,@function\n{NAME}_kernel:\n'
    pre = txt
    tail = 'END:\n    s_endpgm\nEND0:\n    s_waitcnt lgkmcnt(0)\n    s_endpgm\n'
    sz = sizes(pre + a.text() + tail)
    if ALIGN:
        a.out, tot, np_, nn = align(a.out, sz); print('align: residual', tot, 'promoted', np_, 'nops', nn, 'bytes', sum(sz))
    txt += a.text() + tail
    txt += f'''.section .rodata,"a"
.p2align 6
.amdhsa_kernel {NAME}_kernel
  .amdhsa_next_free_vgpr 512
  .amdhsa_next_free_sgpr 102
  .amdhsa_accum_offset 256
  .amdhsa_group_segment_fixed_size 0
  .amdhsa_kernarg_size 136
  .amdhsa_user_sgpr_count 2
  .amdhsa_user_sgpr_kernarg_segment_ptr 1
  .amdhsa_system_sgpr_workgroup_id_x 1
.end_amdhsa_kernel
'''
    return txt, a
if __name__ == '__main__':
    stop = int(sys.argv[2]) if len(sys.argv) > 2 else 99
    stamps = int(sys.argv[3]) if len(sys.argv) > 3 else 0
    txt, a = build(stop, stamps)
    open(sys.argv[1], 'w').write(txt)
    print('instrs', a.n, 'nops', a.nops)
```

```python
import sys, struct, math, os
from collections import defaultdict
sys.path.insert(0, 'work')
from asmlib import *
NAME = 'recurrent_scan__ssm_conv_s4__mixer_channel_mlp__prompt'
def f2u(x): return '0x%08x' % struct.unpack('<I', struct.pack('<f', x))[0]
E_ = lambda k, d: int(os.environ.get(k, d))
LA, LB, LRING, LEND = 0, 69888, 79104, 161024
WR = 17408; LXS = 14592
UCH = 16656; LEXT = 33312
Y2S = 912; NSLOT = 10; NEXT = E_('NEXT', '4')
XNT, YT, HB, FL, STAMP = 0, 0x200000, 0x400000, 0xB00000, 0xC00000
XF, HF, YF = FL, FL + 0x20000, FL + 0x40000
SX, SW1, SW2, SWS, SOUT, SU, SDBG = 40, 44, 48, 52, 56, 60, 64
sJ, sR, sW, sNON, sRING, sT0, sT1, sT2 = 68, 69, 70, 71, 72, 73, 74, 75
sW2 = 76; sH = 83; sK = 90; sXO = 92; sLD = 93; sP = 94; sC = 95; sHI = 3; sST = 96
sXF, sXT, sPF2, sHF0, sY, sKB, sYF, sUB, sEXT, sDM, sRK, sDL, sY8 = 4, 5, 6, 7, 8, 9, 10, 11, 12, 13, 14, 15, 89
vD1, vD2, vA0, vA1, vB0, vB1, vPAR, vL16 = 1, 2, 3, 4, 5, 6, 7, 13
xa, xb, p1, p2, vb1, wy, wx, wxn, wst, wstn, xr, xs = 14, 15, 16, 18, 20, 21, 22, 23, 24, 25, 26, 27
xk, xp, k1, k2, kz, bm = 28, 29, 35, 36, 37, 34
tw, twA, twB, tr, dt = 35, 36, 37, 38, 39
vG2, vTR = 60, 61
HOWN = 224
ALIGN = E_('ALIGN', '1'); LVL = E_('LVL', '1')
WS = f's[{SWS}:{SWS+3}]'

def gen(stop=99, stamps=False):
    a = Asm(); I = a
    nst = [0]; late_ = [0]
    def stamp(lvl=1, pre=None, nm=None):
        if nm in os.environ.get('ST', '').split(','): lvl = 1
        if not stamps or lvl > LVL: return
        if LVL == 4 and lvl == 3 and late_[0]: return
        inf = a.infill; a.infill = True
        if pre is None: I(f's_memtime s[{sST}:{sST+1}]'); a.waitcnt(lg=0)
        else: I(f's_mov_b32 s{sST}, s{pre}')
        I(f'v_mov_b32 v63, s{sST}'); I(f's_lshl_b32 s{sST+2}, s2, 2'); I(f's_add_u32 s{sST+2}, s{sST+2}, s{sW}')
        I(f's_lshl_b32 s{sST+2}, s{sST+2}, 7'); I(f's_add_u32 s{sST+2}, s{sST+2}, {STAMP + 4*nst[0]}')
        I('s_mov_b64 exec, 1'); I(f'buffer_store_dword v63, off, {WS}, s{sST+2}'); I('s_mov_b64 exec, -1')
        nst[0] += 1; a.infill = inf; assert nst[0] <= 30
    def srd(d, b, n):
        I(f's_mov_b32 s{d}, s{b}'); I(f's_mov_b32 s{d+1}, s{b+1}'); I(f's_mov_b32 s{d+2}, {n}'); I(f's_mov_b32 s{d+3}, 0x00020000')
    def fin():
        if stamps:
            I('v_mov_b32 v62, s22'); I('s_memrealtime s[96:97]'); I('v_mov_b32 v63, s96'); I(f's_lshl_b32 s98, s2, 2'); I(f's_add_u32 s98, s98, s{sW}')
            I('s_lshl_b32 s98, s98, 7'); I(f's_add_u32 s98, s98, {STAMP + 120}'); I(f'buffer_store_dwordx2 v[62:63], off, {WS}, s98')
            a.label('PCL'); I('s_getpc_b64 s[96:97]'); I('s_sub_u32 s96, s96, PCL+4-%s_kernel' % NAME); I('s_subb_u32 s97, s97, 0')
            I('v_mov_b32 v62, s96'); I('v_mov_b32 v63, s97'); I('s_mov_b32 s96, 0xCF0000')
            I(f'buffer_store_dwordx2 v[62:63], off, {WS}, s96')
        a.waitcnt(vm=0, lg=0); a._emit('s_endpgm')
    lab = [0]
    def poll(reload, cmp):
        lab[0] += 1; n = f'P{lab[0]}'; inf = a.infill; a.infill = True
        cmp(); a.settle(); a._emit(f's_cbranch_scc0 {n}_ok'); st = a.snap()
        I(f's_mov_b32 s{sST+3}, 0x40000'); a.label(f'{n}_lp')
        reload(); a._emit('s_waitcnt vmcnt(0)'); a.vm = []
        I(f's_sub_u32 s{sST+3}, s{sST+3}, 1'); a._emit(f's_cbranch_scc1 {n}_ok')
        cmp(); a.settle(); a._emit(f's_cbranch_scc1 {n}_lp')
        a.label(f'{n}_ok'); a.restore(st); a.infill = inf
    def cmp_flag(vf):
        def f(): I(f'v_cmp_ne_u32 vcc, s{sNON}, v{vf}'); I('s_and_b64 vcc, vcc, exec')
        return f
    def flag_store(soff, off=0):
        I(f'v_mov_b32 v62, s{sNON}'); I('s_mov_b64 exec, 1')
        I(f'buffer_store_dword v62, off, {WS}, s{soff} offset:{off} sc1'); I('s_mov_b64 exec, -1')
    def unpack(dlo, dhi, src):
        I(f'v_lshlrev_b32 v{dlo}, 16, v{src}'); I(f'v_and_b32 v{dhi}, s{sHI}, v{src}')
    def rne2(x, y, t):
        I(f'v_cvt_pk_bf16_f32 v{t}, v{x}, v{y}'); unpack(x, y, t)
    def bar(*toks):
        a.wait(*toks); a._emit('s_barrier')
    seq = lambda l: (lambda: [I(x) for x in l] and None)
    def chunks(l, n=4): return [seq(l[i:i+n]) for i in range(0, len(l), n)]

    I('s_load_dwordx16 s[4:19], s[0:1], 0'); I('s_load_dwordx16 s[20:35], s[0:1], 64'); I('s_load_dwordx2 s[36:37], s[0:1], 128')
    I('s_cmp_ge_u32 s2, 224'); a._emit('s_cbranch_scc1 END0')
    I('s_getpc_b64 s[98:99]'); a.label('PC0')
    I(f's_lshl_b32 s{sT0}, s2, 11'); I(f's_and_b32 s{sT0}, s{sT0}, 0x4000'); I(f'v_lshl_add_u32 v1, v0, 6, s{sT0}'); I('v_min_u32 v1, END-PC0, v1')
    a.pf('global_load_dword a255, v1, s[98:99]')
    if stamps: I('s_memtime s[100:101]'); I('s_memrealtime s[96:97]')
    rho, c8, hb, q0_, q1_, q2_ = 54, 55, 56, 57, 58, 59
    I(f's_lshl_b32 s{sT0}, s2, 10'); I(f'v_lshl_add_u32 v{q0_}, v0, 2, s{sT0}')
    I('v_lshrrev_b32 v1, 6, v0'); I('v_and_b32 v0, 63, v0'); I(f'v_readfirstlane_b32 s{sW}, v1')
    MAP = E_('MAP', '0')
    if MAP:
        I(f's_lshr_b32 s{sT1}, s2, 3'); I(f's_mul_i32 s{sK}, s{sT1}, 37'); I(f's_lshr_b32 s{sK}, s{sK}, 8'); I(f's_mul_i32 s{sT0}, s{sK}, 7')
        I(f's_sub_u32 s{sJ}, s{sT1}, s{sT0}'); I(f's_and_b32 s{sT1}, s2, 7'); I(f's_lshl_b32 s{sT1}, s{sT1}, 2'); I(f's_add_u32 s{sR}, s{sK}, s{sT1}')
    else:
        I(f's_and_b32 s{sT0}, s2, 1'); I(f's_mul_i32 s{sT0}, s{sT0}, 28'); I(f's_lshr_b32 s{sT1}, s2, 3'); I(f's_add_u32 s{sT0}, s{sT0}, s{sT1}')
        I(f's_lshr_b32 s{sJ}, s{sT0}, 3'); I(f's_and_b32 s{sK}, s{sT0}, 7'); I(f's_and_b32 s{sT1}, s2, 6'); I(f's_lshl_b32 s{sT1}, s{sT1}, 2')
        I(f's_add_u32 s{sR}, s{sK}, s{sT1}')
    I(f'v_lshrrev_b32 v{rho}, 3, v0'); I(f'v_and_b32 v{c8}, 7, v0')
    I(f'v_mul_u32_u24 v{xa}, 896, v{rho}'); I(f'v_lshl_add_u32 v{xa}, v{c8}, 4, v{xa}')
    I(f's_lshl_b32 s{sT0}, s{sR}, 2'); I(f's_add_u32 s{sT0}, s{sT0}, s{sW}'); I(f's_mul_i32 s{sT0}, s{sT0}, {16*896}')
    I(f'v_add_u32 v{xa}, s{sT0}, v{xa}'); I(f'v_add_u32 v{xb}, 7168, v{xa}')
    sXC = 76
    I(f's_lshl_b32 s{sXC}, s{sJ}, 7')
    for i in range(1, 7):
        I(f's_add_u32 s{sXC+i}, s{sXC+i-1}, 384'); I(f's_cmp_ge_u32 s{sXC+i}, 896'); I(f's_cselect_b32 s{sT1}, 896, 0'); I(f's_sub_u32 s{sXC+i}, s{sXC+i}, s{sT1}')
    I(f'v_mul_u32_u24 v{vD1}, 3584, v{rho}'); I(f'v_lshl_add_u32 v{p1}, v{c8}, 6, v{vD1}')
    assert not MAP
    PFO = E_('PFO', '0')
    if PFO:
        I(f's_lshl_b32 s{sT2}, s{sK}, 2'); I(f's_add_u32 s{sT2}, s{sT2}, s{sW}'); I(f's_mul_i32 s{sT0}, s{sT2}, {14*3584}')
        I(f's_lshl_b32 s{sT1}, s{sJ}, 9'); I(f's_add_u32 s{sT0}, s{sT0}, s{sT1}'); I(f'v_add_u32 v{p1}, s{sT0}, v{p1}')
        I(f's_cmp_ge_u32 s{sK}, 4'); I(f's_cselect_b32 s{sT0}, {(-224*3584) & 0xffffffff}, 0'); I(f's_cselect_b32 s{sT1}, 0, {224*3584}')
        I(f's_add_u32 s{sT0}, s{sT0}, s{sT1}'); I(f'v_add_u32 v{p1+1}, s{sT0}, v{p1}'); I(f's_mov_b32 s{sY8}, {8*3584}')
    else:
        sQ, sJS = 38, 39
        I(f's_lshr_b32 s{sT1}, s2, 3'); I(f's_mul_i32 s{sJS}, s{sT1}, 37'); I(f's_lshr_b32 s{sJS}, s{sJS}, 8'); I(f's_mul_i32 s{sT0}, s{sJS}, 7')
        I(f's_sub_u32 s{sT1}, s{sT1}, s{sT0}'); I(f's_lshl_b32 s{sT1}, s{sT1}, 2'); I(f's_add_u32 s{sQ}, s{sT1}, s{sW}')
        I(f's_and_b32 s{sT0}, s2, 1'); I(f's_mul_i32 s{sT0}, s{sT0}, 3'); I(f's_add_u32 s{sJS}, s{sJS}, s{sT0}')
        I(f's_mul_i32 s{sT0}, s{sQ}, {8*3584}'); I(f's_lshl_b32 s{sT1}, s{sJS}, 9'); I(f's_add_u32 s{sT0}, s{sT0}, s{sT1}'); I(f'v_add_u32 v{p1}, s{sT0}, v{p1}')
        I(f's_mul_i32 s{sT0}, s{sQ}, {32*896}'); I(f's_lshl_b32 s{sT1}, s{sJS}, 7'); I(f's_add_u32 s{sT2}, s{sT0}, s{sT1}'); I(f's_mov_b32 s{sY8}, {224*3584}')
    I(f's_mov_b32 s{SW1+2}, {448*3584}'); I(f's_mov_b32 s{SW1+3}, 0x00020000')
    I(f's_mov_b32 s{SX+2}, {2048*896}'); I(f's_mov_b32 s{SX+3}, 0x00020000'); I(f's_lshl_b32 s{sT1}, s2, 2')
    for i in range(6): I(f'global_load_dword v{vPAR+i}, v{q0_}, s[{6+2*i}:{7+2*i}]')
    I(f's_load_dword s{sLD}, s[18:19], s{sT1}')
    I(f's_mov_b32 s{SX}, s4'); I(f's_mov_b32 s{SX+1}, s5'); I(f's_mov_b32 s{SW1}, s24'); I(f's_mov_b32 s{SW1+1}, s25')
    X0, X1 = 192, 220
    if PFO:
        def wpf(p, S_, so, nm):
            def g():
                I(f's_cmp_lg_u32 s{sJ}, 3'); a._emit(f's_cbranch_scc1 {nm}')
                a._emit(f'buffer_load_dword a255, v{p+1}, s[{S_}:{S_+3}], 0 offen'); a._emit(f'buffer_load_dword a255, v{p+1}, s[{S_}:{S_+3}], s{so} offen')
                a.label(nm)
            return [lambda: a.pf(f'buffer_load_dword a255, v{p}, s[{S_}:{S_+3}], 0 offen'), lambda: a.pf(f'buffer_load_dword a255, v{p}, s[{S_}:{S_+3}], s{so} offen'), g]
    else:
        def wpf(p, S_, so, nm): return [(lambda o=o: a.pf(f'buffer_load_dword a255, v{p}, s[{S_}:{S_+3}], {o} offen')) for o in ('0', f's{so}')]
    B1R = 176; CB = 144
    src = {'x': [seq([f'buffer_load_dwordx4 {V(X+4*i,4)}, v{v_}, s[{SX}:{SX+3}], s{sXC+i} offen']) for i in range(7) for X, v_ in ((X0, xa), (X1, xb))],
           'f': wpf(p1, SW1, sY8, 'NOPF1'), 'h': wpf(p2, SW2, sPF2, 'NOPF2'),
           'r': [(lambda k=k, hh=hh: dma1(k, hh)) for k in range(NSLOT) for hh in range(2)],
           'b': [seq([f'global_load_dwordx4 {V(B1R+8*fb+4*q,4)}, v{vb1}, s[26:27] offset:{64*fb+16*q}']) for fb in range(2) for q in range(2)]}
    NW = E_('NW', '9'); WB = 192 - 8*NW; WS0 = 56 - NW
    def wld(st_, hh):
        def f():
            n, sg = divmod(st_ - 28, 4)
            I(f's_add_u32 s{sDM}, s{sW2+n if WL else 12+n}, {(32*(sg>>1) + 8*(sg&1) + 16*hh)*896}')
            I(f'buffer_load_dwordx4 {A(WB+8*(st_-WS0)+4*hh,4)}, v{vD2}, s[{SW2}:{SW2+3}], s{sDM} offen')
        return f
    WL = E_('WL', '1')
    src['w'] = [] if WL else [wld(st_, hh) for st_ in list(range(max(48, WS0), 56)) + list(range(WS0, 48)) for hh in range(2)]
    src['r'] = src['r'][:18]; vNON = 57
    ldNON = lambda: I(f'buffer_load_dword v{vNON}, off, s[{SDBG}:{SDBG+3}], 0 sc1')
    src['n'] = [ldNON]
    sched = {}
    for it in os.environ.get('KS', ('p:x6f,0:f,1:x,2:fx,3:x,4:x,5:x,6:x,7:x,a2:x,a6:h,9:h2,12:b4,15:n,' if PFO else 'p:x6f,0:f,1:x,2:x,3:x,4:x,5:x,6:x,7:x,a2:x,a6:h,10:h,12:b4,15:n,') + ','.join([f'{i}:r' for i in (11,13,14)]+[f'c{i}:r' for i in range(9)]+[f'{17+i}:r' for i in (0,1,3,5,7,8)]) + ''.join(f',{40-len(src["w"])+i}:w' if len(src['w']) - i <= 14 else f',m{i}:w' for i in range(len(src['w'])))).split(','):
        k_, v_ = it.split(':'); sched[k_] = sched.get(k_, []) + [src[c].pop(0) for c, n in re.findall(r'([a-z])(\d*)', v_) for _ in range(int(n or 1))]
    assert not any(src.values()), src
    hk = [0]
    def hook(nm=None):
        for f in sched.pop(nm or str(hk[0]), []): f()
        if not nm: hk[0] += 1
    sched.pop('z', None)
    for f in sched.pop('p', []): f()
    I('s_memrealtime s[38:39]')
    if stamps:
        I('s_mov_b32 s22, s96')
        if LVL >= 3: I('s_memtime s[96:97]'); I('s_mov_b32 s23, s96')
    I(f's_mov_b32 s{sHI}, 0xffff0000')
    I(f's_and_b32 s{sP}, s{sW}, 1'); I(f's_lshr_b32 s{sC}, s{sW}, 1'); I(f'v_lshlrev_b32 v{vL16}, 4, v0'); I(f'v_lshrrev_b32 v{hb}, 5, v0')
    I(f's_lshl_b32 s{sRK}, s{sJ}, 7'); srd(SWS, 36, 0x1000000); srd(SDBG, 34, 256); srd(SW2, 28, 1792*896)
    I(f's_or_b32 s{sNON}, s2, s{sW}'); I(f's_cmp_lg_u32 s{sNON}, 0'); a.settle(); a._emit('s_cbranch_scc1 NONCE')
    st = a.snap(); I('s_or_b32 s38, s38, 1'); I('v_mov_b32 v62, s38'); I('s_mov_b64 exec, 1')
    I(f'buffer_store_dword v62, off, s[{SDBG}:{SDBG+3}], 0 sc1'); I('s_mov_b64 exec, -1'); a.settle()
    a.label('NONCE'); a.restore(st)
    I(f'v_lshrrev_b32 v{p2}, 1, v0'); I(f'v_mul_u32_u24 v{p2}, 896, v{p2}'); I(f'v_and_b32 v{q0_}, 1, v0'); I(f'v_lshl_add_u32 v{p2}, v{q0_}, 6, v{p2}')
    if PFO:
        I(f's_mul_i32 s{sT0}, s{sT2}, {56*896}'); I(f's_add_u32 s{sT0}, s{sT0}, s{sRK}'); I(f'v_add_u32 v{p2}, s{sT0}, v{p2}')
        I(f's_cmp_ge_u32 s{sK}, 4'); I(f's_cselect_b32 s{sT0}, {(-896*896) & 0xffffffff}, 0'); I(f's_cselect_b32 s{sT1}, 0, {896*896}'); I(f's_add_u32 s{sT0}, s{sT0}, s{sT1}')
        I(f'v_add_u32 v{p2+1}, s{sT0}, v{p2}'); I(f's_mov_b32 s{sPF2}, {32*896}')
    else:
        I(f'v_add_u32 v{p2}, s{sT2}, v{p2}'); I(f's_mov_b32 s{sPF2}, {896*896}')
    I(f'v_lshrrev_b32 v{q0_}, 2, v0'); I(f'v_and_b32 v{q0_}, 4, v{q0_}'); I(f'v_xor_b32 v{q0_}, v{q0_}, v{c8}'); I(f'v_lshlrev_b32 v{q0_}, 4, v{q0_}')
    I(f'v_mul_u32_u24 v{vD2}, 896, v{rho}'); I(f'v_add_u32 v{vD2}, v{vD2}, v{q0_}')
    I(f's_lshl_b32 s{sT2}, s{sJ}, 2'); I(f's_add_u32 s{sT2}, s{sT2}, s{sW}'); I(f's_lshl_b32 s{sT0}, s{sT2}, 7')
    I(f'v_add3_u32 v{vD1}, s{sT0}, v{vD1}, v{q0_}')
    I(f'v_lshl_add_u32 v{vb1}, v{hb}, 5, s{sT0}')
    I(f's_mul_i32 s{sT0}, s{sW}, {64*896}'); I(f's_add_u32 s{sT0}, s{sT0}, s{sRK}')
    for n in ((4, 5, 6) if not WL else ()):
        I(f's_add_u32 s{sT1}, s{sJ}, {n}'); I(f's_cmp_ge_u32 s{sT1}, 7'); I(f's_cselect_b32 s{12+n}, 7, 0'); I(f's_sub_u32 s{sT1}, s{sT1}, s{12+n}')
        I(f's_mul_i32 s{sT1}, s{sT1}, {256*896}'); I(f's_add_u32 s{12+n}, s{sT1}, s{sT0}')
    I(f's_mul_i32 s{sRING}, s{sW}, {NSLOT*2048}'); I(f's_add_u32 s{sRING}, s{sRING}, {LRING}')
    I(f's_lshl_b32 s{sXF}, s{sJ}, 5'); I(f's_add_u32 s{sXF}, s{sXF}, s{sR}'); I(f's_lshl_b32 s{sXF}, s{sXF}, 4'); I(f's_add_u32 s{sXF}, s{sXF}, {XF}')
    I(f's_lshl_b32 s{sXT}, s{sJ}, 18'); I(f's_lshl_b32 s{sT0}, s{sR}, 7'); I(f's_add_u32 s{sXT}, s{sXT}, s{sT0}'); I(f's_lshl_b32 s{sT0}, s{sW}, 5'); I(f's_add_u32 s{sXT}, s{sXT}, s{sT0}')
    dtok = {}
    def slot(step):
        cyc = [0, 1, 9, 2, 3, 4, 5, 6, 7, 8]
        if step < 28: return 0, (step if step < 9 else cyc[(step - 9) % 10]) * 2048
        q = (step - 28) % (NSLOT + NEXT)
        return (0, cyc[(28 + q - 9) % 10] * 2048) if q < NSLOT else (1, (q - NSLOT) * 2048)
    def dma1(step, hh):
        ex_, so = slot(step)
        I(f's_add_u32 m0, s{sEXT if ex_ else sRING}, {so + hh*1024}')
        if step < 28:
            I(f's_mov_b32 s{sDM}, {(16*step + 8*hh)*3584}')
            dtok[step if hh else -1] = I(f'buffer_load_dwordx4 v{vD1}, s[{SW1}:{SW1+3}], s{sDM} offen lds')
        else:
            n, sg = divmod(step - 28, 4)
            I(f's_add_u32 s{sDM}, s{sW2+n}, {(32*(sg>>1) + 8*(sg&1) + 16*hh)*896}')
            dtok[step if hh else -1] = I(f'buffer_load_dwordx4 v{vD2}, s[{SW2}:{SW2+3}], s{sDM} offen lds')
    g, r4, c4 = q0_, q1_, q2_
    I(f'v_bfe_u32 v{g}, v0, 4, 1'); I(f'v_bfe_u32 v{r4}, v0, 2, 2'); I(f'v_and_b32 v{c4}, 3, v0')
    I(f'v_lshlrev_b32 v{vTR}, 5, v{g}'); I(f'v_lshl_add_u32 v{vTR}, v{c4}, 3, v{vTR}')
    u, w_ = 40, 41
    I(f'v_and_b32 v{u}, 1, v0'); I(f'v_lshlrev_b32 v{u}, 5, v{u}'); I(f'v_lshl_or_b32 v{u}, v{g}, 4, v{u}'); I(f'v_bfe_u32 v{w_}, v0, 1, 1'); I(f'v_lshl_or_b32 v{u}, v{w_}, 3, v{u}')
    I(f'v_bfe_u32 v{w_}, v0, 3, 1'); I(f'v_lshl_or_b32 v{u}, v{w_}, 6, v{u}')
    I(f'v_lshl_add_u32 v{u}, v{r4}, 7, v{u}'); I(f'v_add_u32 v{u}, s{sRING}, v{u}')
    I(f'v_lshl_add_u32 v{vA0}, v{hb}, 10, v{u}'); I(f'v_xor_b32 v{vA1}, 64, v{vA0}')
    I(f's_lshl_b32 s{sT0}, s{sP}, 6'); I(f'v_xor_b32 v{vG2}, s{sT0}, v{vA0}')
    I(f'v_and_b32 v{u}, 15, v0'); I(f'v_mul_u32_u24 v{vB0}, {Y2S}, v{u}'); I(f'v_mul_u32_u24 v{wst}, 144, v{u}'); I(f'v_mul_u32_u24 v{w_}, {WR}, v{g}')
    I(f'v_add_u32 v{vB0}, v{vB0}, v{w_}'); I(f'v_lshl_add_u32 v{vB0}, v{hb}, 4, v{vB0}')
    I(f's_mul_i32 s{sT0}, s{sC}, {2*WR}'); I(f's_sub_u32 s{sT1}, {2*WR}, s{sT0}'); I(f'v_add_u32 v{vB1}, s{sT1}, v{vB0}'); I(f'v_add_u32 v{vB0}, s{sT0}, v{vB0}')
    I(f'v_lshl_add_u32 v{wst}, v{hb}, 5, v{wst}'); I(f's_lshl_b32 s{sT1}, s{sP}, 6'); I(f's_add_u32 s{sT0}, s{sT0}, s{sT1}'); I(f's_add_u32 s{sT0}, s{sT0}, {LXS}')
    I(f'v_mul_u32_u24 v{wstn}, {16*144}, v{g}'); I(f'v_add_u32 v{wstn}, v{wstn}, v{wst}'); I(f'v_add3_u32 v{wst}, v{wst}, v{w_}, s{sT0}')
    I(f's_mul_i32 s{sT0}, s{sC}, {32*144}'); I(f's_add_u32 s{sT0}, s{sT0}, s{sT1}'); I(f's_add_u32 s{sT0}, s{sT0}, {LB}'); I(f'v_add_u32 v{wstn}, s{sT0}, v{wstn}')
    I(f's_mul_i32 s{sT2}, s{sW}, {WR}')
    I(f'v_mul_u32_u24 v{wy}, {Y2S}, v{rho}'); I(f'v_lshl_add_u32 v{wy}, v{c8}, 4, v{wy}'); I(f'v_add_u32 v{wy}, s{sT2}, v{wy}')
    I(f'v_mul_u32_u24 v{wx}, 144, v{rho}'); I(f'v_lshl_add_u32 v{wx}, v{c8}, 4, v{wx}')
    I(f's_mul_i32 s{sT0}, s{sW}, {16*144}'); I(f's_add_u32 s{sT0}, s{sT0}, {LB}'); I(f'v_add_u32 v{wxn}, s{sT0}, v{wx}')
    I(f's_add_u32 s{sT0}, s{sT2}, {LXS}'); I(f'v_add_u32 v{wx}, s{sT0}, v{wx}')
    I(f's_add_u32 s{sT0}, s{sRING}, {9*2048}'); I(f'v_add_u32 v{xk}, s{sT0}, v{vL16}'); I(f's_xor_b32 s{sT1}, s{sW}, 1'); I(f's_mul_i32 s{sT1}, s{sT1}, {NSLOT*2048}')
    I(f's_add_u32 s{sT1}, s{sT1}, {LRING + 9*2048}'); I(f'v_add_u32 v{xp}, s{sT1}, v{vL16}')
    I(f'v_lshl_add_u32 v{xr}, v{g}, 3, v{r4}'); I(f'v_mul_u32_u24 v{xr}, 144, v{xr}'); I(f'v_lshl_add_u32 v{xr}, v{c4}, 3, v{xr}'); I(f'v_lshl_add_u32 v{xr}, v{hb}, 5, v{xr}')
    I(f's_mul_i32 s{sT0}, s{sW}, {16*144}'); I(f's_add_u32 s{sT0}, s{sT0}, {LB}'); I(f'v_add_u32 v{xr}, s{sT0}, v{xr}')
    I(f'v_lshl_add_u32 v{xs}, v{hb}, 4, v{u}'); I(f'v_lshlrev_b32 v{xs}, 12, v{xs}'); I(f'v_lshl_add_u32 v{xs}, v{g}, 4, v{xs}')
    I(f'v_mul_u32_u24 v{tw}, 272, v0'); I(f'v_add_u32 v{tw}, s{sT2}, v{tw}')
    I(f's_lshl_b32 s{sT0}, s{sP}, 5'); I(f'v_add_u32 v{twA}, s{sT0}, v{tw}'); I(f'v_subrev_u32 v{twB}, s{sT0}, v{tw}')
    I(f'v_bfe_u32 v{w_}, v0, 3, 1'); I(f'v_lshl_add_u32 v{w_}, v{hb}, 2, v{w_}'); I(f'v_mul_u32_u24 v{w_}, {8*272}, v{w_}')
    I(f'v_bfe_u32 v{tr}, v0, 2, 1'); I(f'v_lshl_add_u32 v{tr}, v{tr}, 6, v{vTR}'); I(f'v_add3_u32 v{tr}, v{tr}, v{w_}, s{sT2}')
    I(f's_lshl_b32 s{sT1}, s{sC}, 4'); I(f's_lshr_b32 s{sT1}, s{sLD}, s{sT1}'); I(f's_lshl_b32 s{sT1}, s{sT1}, 16')
    I(f'v_mov_b32 v{dt}, {f2u(math.log2(math.e))}'); I(f'v_mul_f32 v{dt}, s{sT1}, v{dt}'); I(f'v_exp_f32 v{dt}, v{dt}')
    I(f'v_cvt_pk_bf16_f32 v{dt}, v{dt}, v{dt}'); I(f'v_lshlrev_b32 v{dt}, 16, v{dt}')
    stamp(1, 100); stamp(3, 23); stamp(3, nm='ad')

    def cmuls(lst):
        for d, p, q in lst: I(f'v_pk_mul_f32 {V(d,2)}, {V(p,2)}, {V(q,2)} op_sel:[0,0] op_sel_hi:[0,1]')
        for d, p, q in lst: I(f'v_pk_fma_f32 {V(d,2)}, {V(p,2)}, {V(q,2)}, {V(d,2)} op_sel:[1,1,0] op_sel_hi:[1,0,1] neg_lo:[1,0,0]')
    G = lambda b: 64 + 2*b
    Sx = lambda i: 128 + 2*i
    HH = {i: Sx(i) for i in range(9)}
    for n, o in enumerate((256, 258, 260, 262, 264)): HH[o] = 146 + 2*n
    for n, o in enumerate((512, 516, 520, 768, 772, 776)): HH[o] = G(1 + n)
    for n, o in enumerate((1024, 1032, 1280, 1288, 1536, 1544, 1792, 1800)): HH[o] = G(8 + n)
    g1, g256, g2 = 40, 42, 44; er, ph = 46, 47; P = 48; PK = 156; KD = 208
    h0 = [0,1,2,3,4,5,6,7, 512,516,520, 1024,1032,1280,1288, None]
    h1 = [256,256,258,260,260,260,262,264, 768,772,776, 1536,1544,1792,1800, None]
    pkn = [0]; kq = []
    def kread(bt, s_):
        for o, x in ((0, 0), (2, 16*272), (4, 128), (6, 16*272+128)): I(f'ds_read_b64_tr_b16 {A(64*bt+8*s_+o,2)}, v{tr} offset:{x + 272*s_}')
    kmf = lambda bt, s_: (lambda: I(f'v_mfma_f32_32x32x16_bf16 {A(KD,16)}, {A(64*bt+8*s_,4)}, {A(64*bt+8*s_+4,4)}, {0 if (bt == 0 and s_ == 0) else A(KD,16)}'))
    def wr8(srcs, ad, off, neg):
        n_ = pkn[0]; p = PK + 8*(n_ & 1); pkn[0] += 1
        for comp in range(2):
            n = '-' if (neg and comp) else ''
            for e in range(4):
                x, y = srcs[2*e], srcs[2*e+1]
                if y is None: y = x
                I(f'v_cvt_pk_bf16_f32 v{p+4*comp+e}, {n}v{x+comp}, {n}v{y+comp}')
        for comp in range(2): I(f'ds_write_b128 v{ad}, {V(p+4*comp,4)} offset:{off + 64*comp}')
        hook()
    def preamble(bt):
        l = [f'v_lshlrev_b32 v{P+i}, 16, v{vPAR+i}' if bt == 0 else f'v_and_b32 v{P+i}, s{sHI}, v{vPAR+i}' for i in range(6)]
        l += [f'v_mul_f32 v{P+i}, v{dt}, v{P+i}' for i in range(4)]
        l += [f'v_mul_f32 v{er}, {f2u(math.log2(math.e))}, v{P}', f'v_mul_f32 v{ph}, 0.15915494, v{P+1}']
        d, p, q = Sx(0), P+4, P+2
        l += [f'v_mul_f32 v{d}, v{p}, v{q}', f'v_mul_f32 v{d+1}, v{p}, v{q+1}', f'v_fma_f32 v{d}, -v{p+1}, v{q+1}, v{d}', f'v_fma_f32 v{d+1}, v{p+1}, v{q}, v{d+1}']
        T3 = ((g1, 1.0, er, ph), (G(1), 8.0, P, P+1), (g256, 256.0, P+2, P+3))
        for d, sc, m_, f_ in T3[1:]: l += [f'v_mul_f32 v{m_}, {f2u(sc)}, v{er}', f'v_mul_f32 v{f_}, {f2u(sc)}, v{ph}']
        for d, sc, m_, f_ in T3: l += [f'v_fract_f32 v{f_}, v{f_}', f'v_exp_f32 v{m_}, v{m_}']
        for d, sc, m_, f_ in T3: l += [f'v_cos_f32 v{d}, v{f_}', f'v_sin_f32 v{d+1}, v{f_}']
        for d, sc, m_, f_ in T3: l += [f'v_mul_f32 v{d}, v{d}, v{m_}', f'v_mul_f32 v{d+1}, v{d+1}, v{m_}']
        return l
    for bt in range(2):
        l = preamble(bt)
        if bt == 0:
            [I(l.pop(0)) for _ in range(6)]; stamp(3, nm='pw'); hook('q')
        else:
            kread(0, 0); kread(0, 1)
            for _ in range(E_('PA0', '12')): I(l.pop(0))
            for s_ in range(8):
                kmf(0, s_)()
                if s_ < 6: kread(0, s_ + 2)
                hook(f'a{s_}')
                for _ in range(E_('PA1', '3') + 2*(s_ >= 6)):
                    if l: I(l.pop(0))
            stamp(3, nm='ba')
        for x in l: I(x)
        if bt == 0: I(f'v_mov_b32 v{G(0)}, 1.0'); I(f'v_mov_b32 v{G(0)+1}, 0')
        cmuls([(G(2), G(1), G(1)), (g2, g1, g1), (Sx(1), Sx(0), g1), (Sx(8), Sx(0), G(1))])
        cmuls([(G(3), G(2), G(1)), (G(4), G(2), G(2)), (Sx(2), Sx(0), g2), (Sx(3), Sx(1), g2)])
        cmuls([(G(5), G(4), G(1)), (G(6), G(4), G(2)), (G(7), G(4), G(3)), (G(8), G(4), G(4)), (Sx(4), Sx(2), g2), (Sx(5), Sx(3), g2)])
        wr8([G(b) for b in range(8)], tw, 128, False)
        cmuls([(G(8+i), G(8), G(i)) for i in range(1, 9)] + [(Sx(6), Sx(4), g2), (Sx(7), Sx(5), g2)])
        wr8([G(b) for b in range(8, 16)], tw, 144, False)
        cmuls([(G(16+i), G(16), G(i)) for i in range(1, 8)] + [(HH[256+i], Sx(i), g256) for i in (0, 2, 4, 6, 8)])
        wr8([G(b) for b in range(16, 24)], tw, 160, False)
        cmuls([(G(16+i), G(16), G(i)) for i in range(8, 16)] + [(HH[512+i], HH[256+i], g256) for i in (0, 4, 8)])
        wr8([G(b) for b in range(24, 32)], tw, 176, False)
        cmuls([(HH[768+i], HH[512+i], g256) for i in (0, 4, 8)])
        wr8([HH[o] for o in h0[0:4] + h1[0:4]], twA, 0, True)
        cmuls([(HH[1024+i], HH[768+i], g256) for i in (0, 8)])
        cmuls([(HH[1280+i], HH[1024+i], g256) for i in (0, 8)])
        wr8([HH[o] for o in h0[4:8] + h1[4:8]], twA, 16, True)
        cmuls([(HH[1536+i], HH[1280+i], g256) for i in (0, 8)])
        wr8([HH.get(o) for o in h0[8:12] + h1[8:12]], twB, 32, True)
        cmuls([(HH[1792+i], HH[1536+i], g256) for i in (0, 8)])
        wr8([HH.get(o) for o in h0[12:16] + h1[12:16]], twB, 48, True)
        stamp(2, nm='k%d' % bt)
    s0, s1, q0, q1 = 64, 80, 66, 67; ON = 84; mk = 38
    KA = E_('KA', '3')
    for s_ in range(KA): kread(1, s_)
    I(f's_mov_b32 s{mk}, 0x22221111'); I(f's_mov_b32 s{mk+1}, 0x88884444'); I(f'v_mov_b32 v{ON+1}, 0x3f803f80'); I(f'v_cndmask_b32 v{ON}, 0, v{ON+1}, s[{mk}:{mk+1}]')
    for e in range(1, 4): I(f'v_mov_b32 v{ON+e}, v{ON}')
    sm = [f'v_mfma_f32_16x16x32_bf16 {V(D,4)}, {V(ON,4)}, {V(X+4*i,4)}, {0 if i == 0 else V(D,4)}' for i in range(7) for D, X in ((s0, X0), (s1, X1))]
    for x in sm[:6]: I(x)
    hook('c8'); sm = sm[6:]
    for s_ in range(8):
        kmf(1, s_)()
        if s_ + KA < 8: kread(1, s_ + KA)
        if s_ >= 6: I(f'ds_write_b128 v{wx}, {V((X0, X1)[s_-6],4)} offset:{8*144*(s_-6)}')
        hook(f'c{s_}')
        if s_ < 4:
            for _ in range(2): I(sm.pop(0))
        if s_ in (5, 6, 7):
            e = s_ - 4
            I(f's_mov_b32 s{mk}, {"0xffff0000" if e == 1 else 0}'); I(f's_mov_b32 s{mk+1}, {(0, 0, "0xffff", "0xffff0000")[e]}')
            for D in (s0, s1): I(f'v_cndmask_b32 v{D}, v{D}, v{D+e}, s[{mk}:{mk+1}]')
    assert not sm
    stamp(3, nm='bb')
    for r in (q0, q1): I(f'v_mov_b32 v{r}, 0')
    hk[0] = 17
    for i in range(7):
        for e in range(4):
            for X, q_ in ((X0, q0), (X1, q1)): I(f'v_dot2c_f32_bf16 v{q_}, v{X+4*i+e}, v{X+4*i+e}')
        hook()
    stamp(2, nm='dot')
    for m in ('quad_perm:[1,0,3,2]', 'quad_perm:[2,3,0,1]', 'row_half_mirror'):
        for r in (s0, s1, q0, q1): I(f'v_add_f32_dpp v{r}, v{r}, v{r} {m} row_mask:0xf bank_mask:0xf')
    MR0, MR1, AB0, AB1 = 68, 70, 72, 74
    t = 76
    for r in (s0, s1, q0, q1): I(f'v_mul_f32 v{r}, {f2u(1/448)}, v{r}')
    for s_, q_ in ((s0, q0), (s1, q1)): I(f'v_fma_f32 v{q_}, -v{s_}, v{s_}, v{q_}')
    for q_ in (q0, q1): I(f'v_max_f32 v{q_}, 0, v{q_}')
    def rstd(va, vb, oa, ob):
        I(f'v_cvt_pk_bf16_f32 v{t}, v{va}, v{vb}'); unpack(oa, ob, t)
        for o in (oa, ob): I(f'v_add_f32 v{o}, {f2u(1e-5)}, v{o}')
        rne2(oa, ob, t)
        for o in (oa, ob): I(f'v_sqrt_f32 v{o}, v{o}')
        rne2(oa, ob, t)
        for o in (oa, ob): I(f'v_rcp_f32 v{o}, v{o}')
    I(f'v_cvt_pk_bf16_f32 v{t}, v{s0}, v{s1}'); unpack(MR0, MR1, t)
    rstd(q0, q1, MR0+1, MR1+1)
    for s_, q_, M in ((s0, q0, MR0), (s1, q1, MR1)):
        I(f'v_sub_f32 v{s_}, v{s_}, v{M}'); I(f'v_mul_f32 v{q_}, v{q_}, v{M+1}')
    for s_, q_, M in ((s0, q0, MR0), (s1, q1, MR1)):
        I(f'v_mul_f32 v{s_}, v{s_}, v{M+1}'); I(f'v_mul_f32 v{q_}, v{q_}, v{M+1}')
    rne2(s0, s1, t)
    rstd(q0, q1, AB0+1, AB1+1)
    for s_, M, AB in ((s0, MR0, AB0), (s1, MR1, AB1)):
        I(f'v_mul_f32 v{AB}, v{M+1}, v{AB+1}'); I(f'v_mul_f32 v{s_}, v{s_}, v{AB+1}')
    for s_, M, AB in ((s0, MR0, AB0), (s1, MR1, AB1)):
        I(f'v_fma_f32 v{AB+1}, -v{M}, v{AB}, -v{s_}')
    a.flush(); stamp(4)
    for O, M, off, Z in ((X0, MR0, 0, 96), (X1, MR1, 8*144, 100)):
        for e in range(4): unpack(t+2*e, t+2*e+1, O+e)
        for e in range(4): I(f'v_pk_add_f32 {V(t+2*e,2)}, {V(t+2*e,2)}, {V(M,2)} op_sel_hi:[1,0] neg_lo:[0,1] neg_hi:[0,1]')
        for e in range(4): I(f'v_cvt_pk_bf16_f32 v{Z+e}, v{t+2*e}, v{t+2*e+1}')
        for e in range(4): unpack(t+2*e, t+2*e+1, Z+e)
        for e in range(4): I(f'v_pk_mul_f32 {V(t+2*e,2)}, {V(t+2*e,2)}, {V(M,2)} op_sel:[0,1] op_sel_hi:[1,1]')
        for e in range(4): I(f'v_cvt_pk_bf16_f32 v{Z+e}, v{t+2*e}, v{t+2*e+1}')
        I(f'ds_write_b128 v{wxn}, {V(Z,4)} offset:{off}')
        if off:
            for q in range(2):
                for z in range(2): I(f'ds_read_b64_tr_b16 {V(112+4*q+2*z,2)}, v{xr} offset:{64*q + 576*z}')
        hook()
    tk = {}; stamp(4)
    I(f's_add_u32 s{sT0}, s{sXT}, {32*4096}')
    for i in range(7):
        if i in (1, 3, 5): stamp(4)
        I(f'v_add_u32 v{104+i}, s{sXC+i}, v{wy}')
        for n, (X, AB, off) in enumerate(((X0, AB0, 0), (X1, AB1, 8*Y2S))):
            tt = t + 8*n
            for e in range(4): unpack(tt+2*e, tt+2*e+1, X+4*i+e)
            for e in range(4): I(f'v_pk_fma_f32 {V(tt+2*e,2)}, {V(tt+2*e,2)}, {V(AB,2)}, {V(AB,2)} op_sel:[0,0,1] op_sel_hi:[1,0,1]')
            for e in range(4): I(f'v_cvt_pk_bf16_f32 v{X+4*i+e}, v{tt+2*e}, v{tt+2*e+1}')
            I(f'ds_write_b128 v{104+i}, {V(X+4*i,4)} offset:{off}')
            if i == 0: tk['xn'] = I(f'buffer_store_dwordx4 {V(112+4*n,4)}, v{xs}, {WS}, s{(sXT, sT0)[n]} offen sc1')
            hook()
    for q in range(2): I(f'ds_write_b128 v{xk}, {A(KD+8+4*q,4)} offset:{1024*q}')
    assert not sched, sched
    for fb in range(2):
        for e in range(8): unpack(CB+16*fb+2*e, CB+16*fb+2*e+1, B1R+8*fb+e)
    stamp(4, nm='y2')
    def cm(): I(f'v_readfirstlane_b32 s{sNON}, v{vNON}'); I(f's_cmp_eq_u32 s{sNON}, 0')
    poll(ldNON, cm)
    stamp(3)
    a.wait(tk['xn']); a.barrier()
    stamp()
    late_[0] = 1
    ACC = 64
    def gemm(base, FA, bfrag, breads, cinit, va, extra, nstep=28, npre=0, dm=None):
        def reads(k):
            ex_, so = slot(base + k)
            r = [f'ds_read_b64_tr_b16 {A(FA(k)+o,2)}, v{v_} offset:{so+x}' for v_, o0 in ((va[ex_][0], 0), (va[ex_][1], 4)) for o, x in ((o0, 0), (o0+2, 512))]
            b = breads(k)
            return r[:2] + b[:1] + r[2:] + b[1:]
        if nstep == 0: return reads
        for k in range(npre, 2):
            a.wait(dtok[base+k])
            for x in reads(k): I(x)
        for f in extra.get((-1, 0), []): f()
        for k in range(nstep):
            nx = reads(k+2) if npre <= k + 2 < nstep else []
            nd = base + k + NSLOT - (k < 2)
            for mi, (fb, tb) in enumerate(((0, 0), (1, 0), (0, 1), (1, 1))):
                d = V(ACC + 32*tb + 16*fb, 16)
                I(f'v_mfma_f32_32x32x16_bf16 {d}, {A(FA(k)+4*fb,4)}, {bfrag(k, tb)}, {cinit(fb) if k == 0 else d}')
                if mi == 0 and nx:
                    a.wait(dtok[base+k+2])
                    for x in nx[:len(nx)//2]: I(x)
                if mi == 1:
                    for x in nx[len(nx)//2:]: I(x)
                if mi >= 2 and not base: dma1(nd, mi - 2)
                for f in extra.get((k, mi), []): f()
            if k in (3, 9, 17): stamp(3)
            if LVL < 3: stamp(9, nm=('g' if base else 'f') + str(k))
    ex = defaultdict(list)
    def place(fns, k, mi, skip=()):
        for f in fns:
            while (k, mi) in skip or (k, mi) in ex:
                mi += 1
                if mi == 4: k += 1; mi = 0
            ex[(k, mi)].append(f)
        return k, mi
    def e_xe(i):
        return seq([f'ds_read_b128 {A(192+4*i,4)}, v{(wst, wstn)[i>>1]} offset:{16*(i&1)}'])
    KE, KO, KT = 128, 136, 144
    def e_kr(): I(f'ds_read_b128 {V(KE,4)}, v{xp}'); tk['kr'] = I(f'ds_read_b128 {V(KE+4,4)}, v{xp} offset:1024')
    ex[(0, 0)].append(lambda: flag_store(sXF)); ex[(0, 1)].append(e_kr)
    ex[(2, 0)].append(lambda: (bar(tk['kr']), dma1(11, 0))); ex[(2, 1)].append(lambda: dma1(11, 1))
    for i in range(4): ex[(3 + i, 1)].append(e_xe(i))
    l = chunks([f'v_accvgpr_read_b32 v{KO+e}, a{KD+e}' for e in range(8)], 3)
    l += chunks([f'v_add_f32 v{KE+e}, v{KE+e}, v{KO+e}' for e in range(8)] + [f'v_mov_b32 v{KT+16+e}, 0' for e in range(4)]
              + [f'v_cvt_pk_bf16_f32 v{KT+e}, v{KE+7-2*e}, v{KE+6-2*e}' for e in range(4)]
              + [f'v_cvt_pk_bf16_f32 v{KT+4+e}, v{KE+x}, v{KE+y}' for e, (x, y) in enumerate(((2, 2), (1, 1), (1, 0), (0, 0)))]
              + [f'v_and_b32 v{bm}, 1, v0', f'v_add_u32 v{bm}, -1, v{bm}'], 3)
    l2 = []
    for z, v0_ in enumerate((KE+3, KE+5)):
        tt = KT + 8 + 4*z
        l2 += [f'v_bfi_b32 v{KO}, v{bm}, v{v0_}, v{v0_+1}', f'v_cvt_pk_bf16_f32 v{tt}, v{v0_+1}, v{v0_+1}', f'v_cvt_pk_bf16_f32 v{tt+2}, v{v0_}, v{v0_}',
               f'v_cvt_pk_bf16_f32 v{tt+1}, v{v0_+1}, v{KO}', f'v_mov_b32 v{tt+3}, v{tt+2}']
    kconv = l + chunks(l2, 3)
    late = []; sA, sB, sD = 38, 39, sXO
    late += [f's_mov_b32 s{SOUT}, s32', f's_mov_b32 s{SOUT+1}, s33', f's_mov_b32 s{SOUT+2}, {2048*896}', f's_mov_b32 s{SOUT+3}, 0x00020000']
    late += [f's_mul_i32 s{sA}, s{sW}, {64*896}', f's_add_u32 s{sA}, s{sA}, s{sRK}', f'v_add_u32 v{vD2}, s{sA}, v{vD2}', f's_mul_i32 s{sB}, s{sR}, 28']
    late += [f's_add_u32 s{sB}, s{sB}, s{sW}', f's_lshl_b32 s{sB}, s{sB}, 13', f's_add_u32 s{sB}, s{sB}, {HB}']
    late = chunks(late, 4)
    for n in range(7):
        late += [seq([f's_add_u32 s{sA}, s{sJ}, {n}', f's_cmp_ge_u32 s{sA}, 7', f's_cselect_b32 s{sD}, 7, 0', f's_sub_u32 s{sA}, s{sA}, s{sD}']),
                 seq([f's_mul_i32 s{sW2+n}, s{sA}, {256*896}', f's_lshl_b32 s{sA}, s{sA}, 15', f's_add_u32 s{sH+n}, s{sA}, s{sB}'])]
    bef = set(ex); kk = place(late, 0, 2); assert kk[0] < 17, kk
    keep1 = set(ex) - bef
    vXF, vXFa, vHF, vHFa, vH2 = 14, 15, 16, 17, 18
    uE, uA, u3, uw, u3w, cu0, ck, ys, vL4 = 19, 20, 21, 22, 23, 24, 25, 26, 27
    xc, xq, vSH, vE2, vE3, vG3 = 28, 29, 30, 31, 32, 33
    m0_, m1_, m2_ = 57, 58, 59
    ad = [f's_lshr_b32 s{sT1}, s2, 5', f's_lshl_b32 s{sT1}, s{sT1}, 9', f's_add_u32 s{sT1}, s{sT1}, {XF}', f'v_and_b32 v{vXFa}, 31, v0',
          f'v_lshl_add_u32 v{vXFa}, v{vXFa}, 4, s{sT1}',
          f's_lshl_b32 s{sT1}, s{sR}, 2', f's_add_u32 s{sT1}, s{sT1}, s{sW}', f's_lshl_b32 s{sT1}, s{sT1}, 10', f's_add_u32 s{sT1}, s{sT1}, {HF}',
          f'v_and_b32 v{vHFa}, 7, v0', f'v_min_u32 v{vHFa}, 6, v{vHFa}', f'v_lshlrev_b32 v{vHFa}, 7, v{vHFa}', f'v_add_u32 v{vHFa}, s{sT1}, v{vHFa}',
          f's_add_u32 s{sHF0}, s{sRK}, s{sT1}',
          f's_lshl_b32 s{sT1}, s2, 1', f's_add_u32 s{sT1}, s{sT1}, s{sC}', f's_lshl_b32 s{sT1}, s{sT1}, 12', '',
          f's_add_u32 s{SU}, s36, s{sT1}', f's_addc_u32 s{SU+1}, s37, 0', f's_mov_b32 s{SU+2}, 4096', f's_mov_b32 s{SU+3}, 0x00020000',
          f's_lshl_b32 s{sT0}, s{sP}, 11', f's_add_u32 s{sY}, s{sT1}, s{sT0}', f's_add_u32 s{sY}, s{sY}, {YT}',
          f'v_add_u32 v{uE}, s{sT0}, v{vL16}', f'v_add_u32 v{uA}, -16, v{uE}', '',
          f's_cmp_eq_u32 s{sP}, 0', f's_cselect_b32 s{sT1}, -16, 4080', f'v_and_b32 v{u3}, 2, v0', f'v_mul_u32_u24 v{u3}, s{sP}, v{u3}', f'v_lshl_add_u32 v{u3}, v{u3}, 1, s{sT1}',
          f'v_and_b32 v{vSH}, 1, v0', f'v_lshlrev_b32 v{vSH}, 4, v{vSH}',
          f's_mul_i32 s{sUB}, s{sC}, {UCH}', f's_add_u32 s{sT1}, s{sUB}, 16', f'v_add_u32 v{uw}, s{sT1}, v{uE}',
          f's_mul_i32 s{sT1}, s{sP}, {257*16}', f's_add_u32 s{sT1}, s{sT1}, s{sUB}', f'v_and_b32 v{u3w}, 3, v0', f'v_mul_u32_u24 v{u3w}, 4160, v{u3w}', f'v_add_u32 v{u3w}, s{sT1}, v{u3w}',
          f's_mul_i32 s{sKB}, s{sC}, 4608', f's_add_u32 s{sKB}, s{sKB}, {LB}',
          f'v_and_b32 v{m0_}, 15, v0', f'v_add_u32 v{m1_}, 1, v{m0_}', f'v_and_b32 v{m2_}, 3, v{m1_}', f'v_sub_u32 v{m1_}, v{m1_}, v{m2_}',
          f'v_mul_u32_u24 v{m2_}, 4160, v{m2_}', f'v_lshl_add_u32 v{m2_}, v{m1_}, 1, v{m2_}', f'v_lshrrev_b32 v{m1_}, 4, v0', f'v_lshl_add_u32 v{m2_}, v{m1_}, 4, v{m2_}',
          f's_lshl_b32 s{sT1}, s{sP}, 8', f's_add_u32 s{sT1}, s{sT1}, s{sUB}', f'v_add_u32 v{cu0}, s{sT1}, v{m2_}',
          f'v_and_b32 v{m1_}, 1, v{m1_}', f'v_sub_u32 v{m2_}, v{hb}, v{m0_}', f'v_add_u32 v{m2_}, 15, v{m2_}', f'v_mul_u32_u24 v{ck}, 2304, v{m1_}',
          f'v_lshl_add_u32 v{ck}, v{m2_}, 4, v{ck}', f's_lshl_b32 s{sT1}, s{sP}, 7', f's_add_u32 s{sT1}, s{sT1}, s{sKB}', f'v_add_u32 v{ck}, s{sT1}, v{ck}',
          f'v_lshlrev_b32 v{ys}, 9, v{m1_}', f'v_lshl_add_u32 v{ys}, v{m0_}, 5, v{ys}', f'v_lshl_add_u32 v{ys}, v{hb}, 4, v{ys}', f'v_add_u32 v{vL4}, 4096, v{vL16}',
          f'v_and_b32 v{m2_}, 31, v0', f'v_sub_u32 v{m2_}, 255, v{m2_}', f'v_and_b32 v{k1}, 1, v{m2_}', f'v_lshrrev_b32 v{m2_}, 1, v{m2_}',
          f'v_mul_u32_u24 v{k1}, 2304, v{k1}', f'v_lshl_add_u32 v{k1}, v{m2_}, 4, v{k1}', f's_sub_u32 s{sT1}, s{sKB}, 512', f'v_add_u32 v{k1}, s{sT1}, v{k1}',
          f'v_lshlrev_b32 v{m2_}, 8, v{hb}', f'v_sub_u32 v{k1}, v{k1}, v{m2_}', f'v_sub_u32 v{k2}, v{k1}, v{m2_}', f'v_add_u32 v{k2}, -768, v{k2}',
          f'v_mul_u32_u24 v{kz}, 2304, v{m1_}', f'v_lshl_add_u32 v{kz}, v{m0_}, 4, v{kz}', f'v_add_u32 v{kz}, s{sKB}, v{kz}',
          f's_lshl_b32 s{sT1}, s{sW}, 12', f'v_add_u32 v{xc}, s{sT1}, v{vL16}', f'v_xor_b32 v{xq}, 4096, v{xc}',
          f's_lshl_b32 s{sT1}, s{sW}, 13', f's_add_u32 s{sEXT}, s{sT1}, {LEXT}', f's_sub_u32 s{sT1}, s{sEXT}, s{sRING}', f'v_xor_b32 v{vG3}, 64, v{vG2}',
          f'v_add_u32 v{vE2}, s{sT1}, v{vG2}', f'v_add_u32 v{vE3}, s{sT1}, v{vG3}',
          f'v_add_u32 v8, s{sRING}, v{vL16}', f'v_add_u32 v9, s{sEXT}, v{vL16}',
          f's_lshl_b32 s{sYF}, s2, 2', f's_add_u32 s{sYF}, s{sYF}, s{sW}', f's_lshl_b32 s{sYF}, s{sYF}, 4', f's_add_u32 s{sYF}, s{sYF}, {YF}']
    grp = [[]]
    for x in ad:
        if x == '' or len(grp[-1]) >= E_('ADC', '2') + 2*all(y[0] == 's' for y in grp[-1]): grp.append([])
        if x: grp[-1].append(x)
    kk = place([seq(x) for x in grp if x], kk[0], kk[1]); assert kk[0] < 21, kk; print('ad end', kk)
    kk = place(kconv, max(kk[0], E_('KCS', '18')), 0); print('kconv end', kk); assert kk[0] < 28
    ldXF = lambda: I(f'buffer_load_dword v{vXF}, v{vXFa}, {WS}, 0 offen sc1')
    XP = E_('XPS', '27')
    ex[(XP - 5, 1)].append(ldXF); ex[(XP, 3)].append(lambda: poll(ldXF, cmp_flag(vXF)))
    U0 = 40; UU = f's[{SU}:{SU+3}]'
    ul = [f'buffer_load_dwordx4 {V(U0,4)}, v{uA}, {UU}, 0 offen sc1', f'buffer_load_dwordx2 {V(U0+4,2)}, v{uE}, {UU}, 0 offen sc1',
          f'buffer_load_dwordx4 {V(U0+6,4)}, v{uE}, {UU}, 0 offen offset:1008 sc1', f'buffer_load_dwordx2 {V(U0+10,2)}, v{uE}, {UU}, 0 offen offset:1024 sc1',
          f'buffer_load_dwordx4 {V(U0+12,4)}, v{u3}, {UU}, 0 offen sc1']
    F1 = lambda k: 16*(k % 3)
    gemm(0, F1, lambda k, tb: A(F1(k)+8+4*tb, 4),
         lambda k: [f'ds_read_b128 {A(F1(k)+8+4*tb,4)}, v{vb} offset:{32*k}' for tb, vb in ((0, vB0), (1, vB1))],
         lambda fb: V(CB+16*fb, 16), [(vA0, vA1)], ex)
    a._emit('s_barrier')
    stamp()
    k0 = -2*math.sqrt(2/math.pi)*math.log2(math.e)
    I(f's_mov_b32 s{sK}, {f2u(k0*0.044715)}'); I(f's_mov_b32 s{sK+1}, {f2u(k0)}')
    for x in ul: I(x)
    def copies(d, off):
        c = 164
        def f0(): I(f'ds_write_b128 v{uw}, {V(d,4)} offset:{off}')
        def f1():
            for e in range(4): I(f'v_alignbit_b32 v{c+e}, v{d+e+1}, v{d+e}, 16')
            for e in range(4): I(f'v_mov_b32 v{c+4+e}, v{d+e+1}')
            for e in range(4): I(f'v_alignbit_b32 v{c+8+e}, v{d+e+2}, v{d+e+1}, 16')
        return f0, f1, [seq([f'ds_write_b128 v{uw}, {V(c-4+4*s_,4)} offset:{off + 4160*s_}']) for s_ in range(1, 4)]
    def e_kw():
        I(f's_cmp_eq_u32 s{sP}, 1')
        a.ifelse('KE', seq([f'ds_write_b128 v{k1}, {V(KT,4)} offset:512', f'ds_write_b128 v{kz}, {V(KT+16,4)} offset:2048', f'ds_write_b128 v{kz}, {V(KT+16,4)} offset:2048']),
                 seq([f'ds_write_b128 v{k1}, {V(KT+4,4)}', f'ds_write_b128 v{k2}, {V(KT+8,4)} offset:256', f'ds_write_b128 v{k2}, {V(KT+12,4)}']))
    def e_u3():
        for e in range(4): I(f'v_alignbit_b32 v{176+e}, {"v%d" % (U0+13+e) if e < 3 else 0}, v{U0+12+e}, v{vSH}')
        I('s_mov_b64 exec, 15'); I(f'ds_write_b128 v{u3w}, {V(176,4)}'); I('s_mov_b64 exec, -1')
    ca, cb_ = copies(U0, 0), copies(U0+6, 1024)
    exd = lambda i: [lambda: dma1(38 + i, 0), lambda: dma1(38 + i, 1)]
    gx = {3: [ca[0], cb_[0], ca[1]], 4: ca[2] + [e_kw], 5: [cb_[1]], 6: cb_[2] + [e_u3]}
    for i in range(NEXT): gx[i + E_('EXF', '0')] = exd(i) + gx.get(i + E_('EXF', '0'), [])
    wq = [wld(st_, hh) for st_ in range(WS0, 56) for hh in range(2)] if WL else []
    for f in [int(c) for c in os.environ.get('WGL', '012345')][:len(wq)]: gx[f] = gx.get(f, []) + [wq.pop(0)]
    GX = E_('GX', '1')
    if GX:
        wq = [wld(st_, hh) for st_ in range(WS0, 56) for hh in range(2)]
        vm = [f_ for i in range(NEXT) for f_ in exd(i)] + [wq.pop(0) for _ in range(E_('GW', '12'))]
        gx = {f: [vm.pop(0)] for f in range(E_('GE', '7'))}
        ls = [ca[0], ca[1], cb_[0]] + ca[2] + [cb_[1], e_kw] + cb_[2] + [e_u3]; o_ = []
        while ls or vm:
            if ls: o_.append(ls.pop(0))
            if vm: o_.append(vm.pop(0))
        gx[7] = gx.get(7, []) + o_
    t = 128
    for tb in range(2):
        for sg in range(4):
            x = ACC + 32*tb + 8*sg; Pp = lambda e: V(t+2*e, 2); Xp = lambda e: V(x+2*e, 2)
            for e in range(4): I(f'v_pk_mul_f32 {Pp(e)}, {Xp(e)}, {Xp(e)}')
            for e in range(4): I(f'v_pk_fma_f32 {Pp(e)}, {Pp(e)}, s[{sK}:{sK+1}], s[{sK}:{sK+1}] op_sel:[0,0,1] op_sel_hi:[1,0,1]')
            for e in range(4): I(f'v_pk_mul_f32 {Pp(e)}, {Pp(e)}, {Xp(e)}')
            for e in range(8): I(f'v_exp_f32 v{t+e}, v{t+e}')
            for e in range(4): I(f'v_pk_add_f32 {Pp(e)}, {Pp(e)}, 1.0 op_sel_hi:[1,0]')
            for e in range(8): I(f'v_rcp_f32 v{t+e}, v{t+e}')
            for e in range(4): I(f'v_pk_mul_f32 {Pp(e)}, {Pp(e)}, {Xp(e)}')
            f = 4*tb + sg
            for e in range(4): I(f'v_cvt_pk_bf16_f32 v{HOWN+4*f+e}, v{t+2*e}, v{t+2*e+1}')
            if f == E_('HF0', '7') and not E_('ONEF', '1'): a.wait(tk['h0']); flag_store(sHF0)
            tk['h%d' % tb] = I(f'buffer_store_dwordx4 {V(HOWN+4*f,4)}, v{vL16 if tb == 0 else vL4}, {WS}, s{sH} offen offset:{1024*sg} sc1')
            DS_ = E_('DS', '0')
            if DS_ == 1: tk['h%d' % tb] = I(f'buffer_store_dwordx4 {V(HOWN+4*f,4)}, v{vL16 if tb == 0 else vL4}, {WS}, s{sH} offen offset:{1024*sg}')
            if DS_ == 2 and f > 0: I(f'buffer_store_dwordx4 {V(HOWN+4*f-4,4)}, v{vL16 if f <= 4 else vL4}, {WS}, s{sH} offen offset:{1024*((f-1)&3)}')
            if DS_ == 2 and f == 7: I(f'buffer_store_dwordx4 {V(HOWN+4*f,4)}, v{vL4}, {WS}, s{sH} offen offset:{1024*3}')
            for g_ in gx.get(f, []): g_()
            if f < 7: stamp(4)
    stamp()
    a.barrier()
    stamp()
    if stop == 2:
        I(f's_mul_i32 s{sT0}, s2, 9216'); I(f's_add_u32 s{sT0}, s{sT0}, 0xD00000'); I(f'v_add_u32 v40, {LB}, v{vL16}')
        for i in range(9):
            I(f'ds_read_b128 v[64:67], v40 offset:{1024*i}'); I(f'buffer_store_dwordx4 v[64:67], v{vL16}, {WS}, s{sT0} offen'); I(f's_add_u32 s{sT0}, s{sT0}, 1024')
            a.waitcnt(vm=0)
        fin(); return a
    CA, CBf, CC = [64, 96], [128, 160], 192
    hreg = lambda n, f: (208 + 4*(f-2) if f < 6 else 248 + 4*(f-6)) if (n == 6 and f >= 2 and NW == 9) else 32*(n-1) + 4*f
    hld = lambda n, f: (lambda: I(f'buffer_load_dwordx4 {A(hreg(n, f),4)}, v{vL16 if f < 4 else vL4}, {WS}, s{sH+n} offen offset:{1024*(f&3)} sc1'))
    if E_('NOH', '0') in (1, 2): hld = lambda n, f: (lambda: None)
    if E_('NOH', '0') == 4: hld = lambda n, f: (lambda: I(f'buffer_load_dwordx4 {A(32*(n-1)+4*f,4)}, v{vL16 if f < 4 else vL4}, s[{SX}:{SX+3}], 0 offen offset:{1024*(f&3)} sc1'))
    if E_('NOH', '0') >= 2: poll_ = lambda *x: None
    else: poll_ = poll
    ldH0 = lambda: I(f'buffer_load_dword v{vHF}, v{vHFa}, {WS}, 0 offen sc1')
    ldH1 = lambda: I(f'buffer_load_dword v{vH2}, v{vHFa}, {WS}, 0 offen offset:64 sc1')
    cx = defaultdict(list)
    c_l0, c_p0, c_f1, c_l1, c_p1, hev = E_('CL0', '44'), E_('CP0', '80'), E_('CF1', '6'), E_('CL1', '104'), E_('CP1', '143'), E_('HEV', '5')
    ONEF = E_('ONEF', '1')
    if ONEF: c_l1, c_p1 = E_('CL', '40'), E_('CP', '76'); c_p0 = c_p1
    else: cx[c_l0].append(ldH0); cx[c_p0].append(lambda: (poll_(ldH0, cmp_flag(vHF)), stamp(3)))
    cx[c_f1].append(lambda: (a.wait(tk['h1']), flag_store(sHF0, 64), stamp(3)))
    if E_('HF0', '7') == 8: cx[E_('CF0', '3')].append(lambda: (a.wait(tk['h0']), flag_store(sHF0)))
    cx[c_l1].append(ldH1); cx[c_p1].append(lambda: (poll_(ldH1, cmp_flag(vH2)), stamp(3)))
    NPRE = E_('NPRE', '5')
    F2 = lambda k: 208 + 8*(k - 3) if 3 <= k < NPRE else 224 + 8*(k % 3)
    VA2 = [(vG2, vG3), (vE2, vE3)]
    rd2 = gemm(28, F2, None, lambda k: [], None, VA2, None, nstep=0)
    def e_pre(k):
        def f():
            a.wait(dtok[28 + k])
            for x in rd2(k): tk['pre%d' % k] = I(x)
        return f
    def e_pd(k, hh): return lambda: (a.wait(tk['pre%d' % k]), dma1(38 + NEXT + k, hh))
    for k in range(NPRE):
        cx[k if k < 3 else 28 + 2*k].append(e_pre(k))
    its = [(0 if i < 6 else 44, e_pd(i // 2, i & 1)) for i in range(2*NPRE)]; its = its[:6] + [(0, w_) for w_ in wq] + its[6:]; wq = []
    c = E_('C0', '9'); SP = float(os.environ.get('SP', '4.5'))
    while its:
        ci = int(c)
        while ci in cx: ci += 1
        ok = [x for x in its if x[0] <= ci]; ok = [x for x in ok if x[0]] or ok
        if ok: cx[ci].append(ok[0][1]); its.remove(ok[0])
        c += SP
    print('conv pre items end', ci); c_h0 = max(c_p0 + 1, int(c))
    hq0 = [(n, f) for n in range(1, 7) for f in range(4)]; hq1 = [(n, f+4) for n in range(1, 7) for f in range(4)]
    c = E_('WC0', '5')
    while wq:
        while any(c + d_ in cx for d_ in (0, 1, -1)): c += 1
        cx[c].append(wq.pop(0))
    print('w loads end', c)
    wsl = sorted([(k_, 2 if E_('GL', '0') else 3) for k_ in range(2, 22)] + [(int(k_), 1) for k_ in os.environ.get('WX', '').split(',') if k_]); wt = {}
    for s_ in range(WS0, 56):
        for hh in range(2):
            while wsl[0][0] < s_ - 44: wsl.pop(0)
            wt[(s_, hh)] = wsl.pop(0)
    rel = lambda n, f: 4.5 if hreg(n, f) >= 208 else (wt[(WS0 + (32*(n-1) + 4*f - WB)//8, f & 1)][0] + 0.5) if 32*(n-1) + 4*f >= WB else -1
    hlate = [x for x in hq0 + hq1 if rel(*x) >= 0]; hq0 = [x for x in hq0 if rel(*x) < 0]; hq1 = [x for x in hq1 if rel(*x) < 0]
    c = c_h0
    while c < 144:
        if c <= c_p1:
            if hq0: cx[c].append(hld(*hq0.pop(0)))
        else:
            q = hq1 if (not hq0 or hq1[0][0] < hq0[0][0] + (not ONEF)) else hq0
            cx[c].append(hld(*q.pop(0)))
        c += hev
    hrest = sorted(hq0 + hq1 + hlate); print('h loads left', len(hrest))
    def creads(st):
        r = []
        for i in range(8):
            o = 64*st + 512*i
            r.append(f'ds_read_b64 {V(CA[st&1]+4*i,2)}, v{cu0} offset:{o}'); r.append(f'ds_read_b64 {V(CA[st&1]+4*i+2,2)}, v{cu0} offset:{o+8}')
        b = [f'ds_read_b128 {V(CBf[st&1]+4*i,4)}, v{ck} offset:{256*(7-i) + 32*st}' for i in range(8)]
        return r[:2] + b + r[2:]
    ml = [(st, i, cb) for st in range(4) for i in range(8) for cb in range(i, 8)]
    idx = lambda st, pr: [n for n, m in enumerate(ml) if m[0] == st and pr(m)]
    rq = []
    for st in range(4):
        for i in range(8):
            o = 64*st + 512*i; fu = idx(st, lambda m: m[1] == i)[0]; fr = idx(st-2, lambda m: m[1] == i)[-1] if st >= 2 else -1
            rq += [(fu, fr, f'ds_read_b64 {V(CA[st&1]+4*i,2)}, v{cu0} offset:{o}'), (fu, fr, f'ds_read_b64 {V(CA[st&1]+4*i+2,2)}, v{cu0} offset:{o+8}')]
            fu = idx(st, lambda m: m[2]-m[1] == i)[0]; fr = idx(st-2, lambda m: m[2]-m[1] == i)[-1] if st >= 2 else -1
            rq.append((fu, fr, f'ds_read_b128 {V(CBf[st&1]+4*i,4)}, v{ck} offset:{256*(7-i) + 32*st}'))
    rq.sort(key=lambda x: x[0]); LAT = E_('CLAT', '9'); maxa = E_('CMAX', '40')
    while rq[0][0] < E_('CPRE', '8') + 1: I(rq.pop(0)[2])
    for cg, (st, i, cb) in enumerate(ml):
        d = V(CC+4*cb, 4)
        I(f'v_mfma_f32_16x16x32_bf16 {d}, {V(CA[st&1]+4*i,4)}, {V(CBf[st&1]+4*(cb-i),4)}, {0 if (st == 0 and i == 0) else d}')
        n_ = 0
        while rq and rq[0][1] <= cg and (rq[0][0] - cg <= LAT + (n_ == 0 and cg in cx)*(-3) or (n_ == 0 and cg not in cx and rq[0][0] - cg <= maxa)):
            I(rq.pop(0)[2]); n_ += 1
        assert not rq or rq[0][0] > cg + 1
        for f in cx.get(cg, []): f()
        if str(cg) in os.environ.get('CST', '').split(','): stamp(1)
    a._emit('s_barrier')
    stamp()
    ex = defaultdict(list)
    E1, T = 128, 160
    def e_cw(h_):
        def w(o):
            def f():
                for q in (2*h_, 2*h_+1): tk['cw'] = I(f'ds_write_b128 v{xc}, {V(CC+o+4*q,4)} offset:{1024*q}')
            return f
        return lambda: (I(f's_cmp_eq_u32 s{sP}, 1'), a.ifelse(f'CS{h_}', w(16), w(0)))
    def e_ca(q):
        def f():
            I(f's_cmp_eq_u32 s{sP}, 1'); a.wait(tk['cr%d' % q])
            a._emit(f's_cbranch_scc1 CA{q}_b'); st = a.snap()
            for e in range(4*q, 4*q+4): I(f'v_add_f32 v{E1+e}, v{E1+e}, v{CC+e}')
            a._emit(f's_branch CA{q}_j'); a.label(f'CA{q}_b'); a.restore(st)
            for e in range(4*q, 4*q+4): I(f'v_add_f32 v{E1+e}, v{E1+e}, v{CC+16+e}')
            a.label(f'CA{q}_j')
        return f
    def e_cr():
        for q in range(4): tk['cr%d' % q] = I(f'ds_read_b128 {V(E1+4*q,4)}, v{xq} offset:{1024*q}')
    DCW = E_('DCW', '0')
    if DCW:
        ex[(0, 0)].append(e_cw(0)); ex[(0, 1)].append(e_cw(1)); ex[(1, 0)].append(lambda: (bar(tk['cw']), e_cr()))
        for q in range(4): ex[(2, q)].append(e_ca(q))
    else:
        ex[(-1, 0)].append(e_cw(0)); ex[(-1, 0)].append(e_cw(1)); ex[(0, 2)].append(lambda: (bar(tk['cw']), e_cr()))
        for q in range(4): ex[(1 + (q+2)//4, (q+2) % 4)].append(e_ca(q))
    l = chunks([f'v_cvt_pk_bf16_f32 v{T+e}, v{E1+2*e}, v{E1+2*e+1}' for e in range(8)], 4)
    def e_ys(pr):
        def f(): tk['y'] = I(f'buffer_store_dwordx4 {V(T+4*pr,4)}, v{ys}, {WS}, s{sY} offen offset:{1024*pr} sc1')
        return f
    l += [seq([f'v_permlane16_swap_b32 v{T+4*pr+e}, v{T+4*pr+2+e}' for pr in range(2) for e in range(2)]), e_ys(0), e_ys(1)]
    kk = place(l, 3 if DCW else 2, 0 if DCW else 2); print('ys end', kk)
    vYF, vYFa, vX, vBD = 14, 15, 16, 19
    B2, DS, YR, XF32, XN, t = 128, 136, 144, 152, 208, 28
    ya, yw, yr, rw = 20, 21, 22, 4
    ldYF = lambda: I(f'buffer_load_dword v{vYF}, v{vYFa}, {WS}, 0 offen sc1')
    ex[(E_('YFS', '10'), 3 if E_('GL', '0') else 1)].append(lambda: (a.wait(tk['y']), flag_store(sYF)))
    l = [[f's_lshl_b32 s{sT2}, s{sJ}, 1', f's_add_u32 s{sT2}, s{sT2}, s{sP}', f's_lshl_b32 s{sT1}, s{sR}, 1', f's_add_u32 s{sT1}, s{sT1}, s{sC}'],
         [f's_mul_i32 s{sXO}, s{sT1}, {32*896}', f's_lshl_b32 s{sK}, s{sT2}, 6', f's_add_u32 s{sXO}, s{sXO}, s{sK}'],
         [f'v_and_b32 v{vX}, 31, v0', f'v_mul_u32_u24 v{vX}, 896, v{vX}', f'v_lshl_add_u32 v{vX}, v{hb}, 5, v{vX}'],
         [f'v_lshl_add_u32 v{vBD}, v{hb}, 5, s{sK}', f's_lshl_b32 s{sK}, s{sT2}, 10', f's_add_u32 s{sK}, s{sK}, {YF}', f'v_lshl_add_u32 v{vYFa}, v0, 4, s{sK}'],
         [f's_lshl_b32 s{sT2}, s{sT2}, 17', f's_lshl_b32 s{sK}, s{sT1}, 6', f's_add_u32 s{sT2}, s{sT2}, s{sK}', f's_add_u32 s{sT2}, s{sT2}, {YT}'],
         [f'v_lshrrev_b32 v{ya}, 2, v0', f'v_lshlrev_b32 v{ya}, 12, v{ya}', f'v_and_b32 v{yw}, 3, v0', f'v_lshl_add_u32 v{ya}, v{yw}, 4, v{ya}'],
         [f's_lshl_b32 s{sK}, s{sW}, 11', f's_add_u32 s{sK}, s{sK}, {LB}', f'v_add_u32 v{yw}, s{sK}, v{vL16}'],
         [f'v_bfe_u32 v{yr}, v0, 2, 2', f'v_lshl_add_u32 v{yr}, v{hb}, 4, v{yr}', f'v_lshl_add_u32 v{yr}, v{yr}, 6, v{vTR}', f'v_add_u32 v{yr}, s{sK}, v{yr}'],
         [f'v_add_u32 v{rw}, s{sRING}, v{vL16}', f'v_add_u32 v{rw+1}, {LRING}, v{vL16}']]
    for x in (3, 2, 1): l.append([f's_xor_b32 s{sK}, s{sW}, {x}', f's_mul_i32 s{sK}, s{sK}, {NSLOT*2048}', f'v_add_u32 v{rw+x}, s{sK}, v{rw+1}'])
    l[-1].append(f's_add_u32 s{sK}, s{sT2}, 65536')
    for i, f in enumerate(l): ex[(6 + i, 3 if E_('GL', '0') else 1)].append(seq(f))
    ex[(18, 2)].append(seq([f'global_load_dwordx4 {V(B2+4*q,4)}, v{vBD}, s[30:31] offset:{16*q}' for q in range(2)]))
    ex[(18, 3)].append(seq([f'global_load_dwordx4 {V(DS+4*q,4)}, v{vBD}, s[20:21] offset:{16*q}' for q in range(2)]))
    ex[(E_('YL', '21'), 2)].append(ldYF)
    for i in range(4): ex[(19 + i//2, 3*(i & 1))].append(seq([f'v_accvgpr_read_b32 v{44+4*i+e}, a{192+4*i+e}' for e in range(4)]))
    def e_unp(dst, src): return lambda: [unpack(dst+2*e, dst+2*e+1, src+e) for e in range(2)]
    l = [e_unp(XF32 + 4*i, 44 + 2*i) for i in range(4)] + [e_unp(XN + 4*i, 52 + 2*i) for i in range(4)]
    for i, f in enumerate(l): ex[(21 + i//3, 1 + i % 3)].append(f)
    def e_yl():
        poll(ldYF, cmp_flag(vYF))
        I(f'buffer_load_dwordx4 {V(YR,4)}, v{ya}, {WS}, s{sT2} offen sc1'); I(f'buffer_load_dwordx4 {V(YR+4,4)}, v{ya}, {WS}, s{sK} offen sc1')
    YTP = E_('YTP', '11')
    if YTP < 0: ex[(23, 3)].append(e_yl)
    items = [(4*n - 5, rel(n, f), hld(n, f)) for n, f in hrest] + [(s_ - 28 - 7, s_ - 28 - NSLOT - NEXT, (lambda s_=s_, hh=hh: dma1(s_, hh))) for s_ in range(38 + NEXT + NPRE, WS0) for hh in range(2)]
    items.sort(key=lambda x: x[0])
    for s_ in range(WS0, 56):
        dtok[s_] = None; ex_, so = slot(s_)
        for hh in range(2): ex[wt[(s_, hh)]].insert(0, seq([f'ds_write_b128 v{8+ex_}, {A(WB+8*(s_-WS0)+4*hh,4)} offset:{so + 1024*hh}']))
    busy = ({(0, 0), (3, 2), (4, 0), (4, 2)} if DCW else {(0, 2), (3, 2)}) if not E_('NOYG', '0') else set()
    VP = E_('VP', '2')
    xs_ = [int(x) for x in os.environ.get('VX', '1,3,5').split(',') if x]
    for sh in sorted([x - (x % 4 == 2 and x > 16 and E_('GL', '0')) for x in range(0, 96, VP)] + xs_):
        k_, mi = divmod(sh, 4)
        if (k_, mi) in busy: continue
        for it in items:
            if it[1] < k_ or (it[1] == k_ and mi >= 2):
                ex[(k_, mi)].insert(0, it[2]); items.remove(it)
                if k_ > it[0] + 3: print('late item', it[:2], k_)
                break
    assert not items, len(items)
    def hfrag(k, tb):
        n, sg = divmod(k, 4)
        return V(HOWN + 16*tb + 4*sg, 4) if n == 0 else A(hreg(n, 4*tb + sg), 4)
    FT = 168
    def e_ft(s_):
        def f():
            a.wait(dtok[52 + s_]); ex_, so = slot(52 + s_)
            for fb in (1, 0):
                for o in (0, 2): I(f'ds_read_b64_tr_b16 {V(FT+16*fb+4*s_+o,2)}, v{[(vG2, vG3), (vE2, vE3)][ex_][fb]} offset:{so + 256*o}')
        return f
    for s_ in range(4): ex[(22 + s_//2, s_ & 1)].insert(0, e_ft(s_))
    gemm(28, F2, hfrag, lambda k: [], lambda fb: '0', VA2, ex, nstep=24, npre=NPRE)
    stamp()
    fill = []
    for e in range(8): fill += [f'v_lshlrev_b32 v{t+2*e}, 16, v{DS+e}', f'v_and_b32 v{t+2*e+1}, s{sHI}, v{DS+e}']
    for e in range(16): fill.append(f'v_mul_f32 v{XN+e}, v{XN+e}, v{t+e}')
    for e in range(8): fill += [f'v_lshlrev_b32 v{t+2*e}, 16, v{B2+e}', f'v_and_b32 v{t+2*e+1}, s{sHI}, v{B2+e}']
    prev = None; n_ = 0
    for x in (3, 2, 1, 0):
        fb, tb = x & 1, x >> 1; d = V(ACC + 16*x, 16)
        for s_ in range(4):
            I(f'v_mfma_f32_32x32x16_bf16 {d}, {V(FT+16*fb+4*s_,4)}, {hfrag(24+s_, tb)}, {d}')
            if prev:
                for q in ((), (0,), (1,), (2, 3))[s_] if E_('TW', '1') else ((), (), (0, 1), (2, 3))[s_]: I(f'ds_write_b128 v{rw}, {V(ACC+16*prev+4*q,4)} offset:{4096*(prev-1) + 1024*q}')
            if n_ == YTP: e_yl()
            elif not prev or s_ < 3:
                for _ in range((4 if not prev else (5, 3, 3)[s_])):
                    if fill: I(fill.pop(0))
            n_ += 1
        prev = x
    for f in fill: I(f)
    stamp(3, nm='t1')
    a.barrier()
    stamp(3, nm='t2')
    for hf in range(2):
        for x in range(1, 4):
            for q in (2*hf, 2*hf+1): I(f'ds_read_b128 {V(ACC+16*x+4*q,4)}, v{rw+x} offset:{4096*(x-1) + 1024*q}')
    I(f's_mov_b32 s{sK}, {f2u(-math.log2(math.e))}')
    for e in range(8): I(f'v_pk_add_f32 {V(ACC+2*e,2)}, {V(ACC+2*e,2)}, {V(t+2*e,2)}')
    OSC = os.environ.get('OSC', ''); ty = 44
    for hf in range(2):
        R8 = range(4*hf, 4*hf+4)
        for x in range(1, 4):
            for e in R8: I(f'v_pk_add_f32 {V(ACC+2*e,2)}, {V(ACC+2*e,2)}, {V(ACC+16*x+2*e,2)}')
        def ytr():
            I(f'ds_write_b128 v{yw}, {V(YR,4)}'); I(f'ds_write_b128 v{yw}, {V(YR+4,4)} offset:1024')
            for q in range(4): I(f'ds_read_b64_tr_b16 {V(YR+2*q,2)}, v{yr} offset:{256*q}')
        if hf == E_('YW', '1'): ytr()
        for e in R8: I(f'v_pk_mul_f32 {V(t+2*e,2)}, {V(ACC+2*e,2)}, s[{sK}:{sK+1}] op_sel_hi:[1,0]')
        for e in range(8*hf, 8*hf+8): I(f'v_exp_f32 v{t+e}, v{t+e}')
        if hf + 1 == E_('YW', '1') == 2: ytr()
        for e in R8: I(f'v_pk_add_f32 {V(t+2*e,2)}, {V(t+2*e,2)}, 1.0 op_sel_hi:[1,0]')
        for e in range(8*hf, 8*hf+8): I(f'v_rcp_f32 v{t+e}, v{t+e}')
        for e in R8: I(f'v_pk_mul_f32 {V(t+2*e,2)}, {V(t+2*e,2)}, {V(ACC+2*e,2)}')
    for hf in range(2):
        R8 = range(4*hf, 4*hf+4)
        for e in R8: unpack(ty+2*e, ty+2*e+1, YR+e)
        for e in R8: I(f'v_pk_add_f32 {V(XN+2*e,2)}, {V(XN+2*e,2)}, {V(ty+2*e,2)}')
        for e in R8: I(f'v_pk_fma_f32 {V(XN+2*e,2)}, {V(XN+2*e,2)}, {V(t+2*e,2)}, {V(XF32+2*e,2)}')
        for e in R8: I(f'v_cvt_pk_bf16_f32 v{YR+e}, v{XN+2*e}, v{XN+2*e+1}')
        I(f'buffer_store_dwordx4 {V(YR+4*hf,4)}, v{vX}, s[{SOUT}:{SOUT+3}], s{sXO} offen offset:{16*hf} {OSC}')
    stamp()
    fin()
    return a

def build(stop=99, stamps=False):
    a = gen(stop, stamps)
    ref = open(f'cdna_kernels/{NAME}.s.ref').read()
    head = ref[:ref.index('; @launch')]
    txt = head + f'; @launch grid=(224,1,1) block=(256,1,1) lds={LEND}\n'
    txt += f'.amdgcn_target "amdgcn-amd-amdhsa--gfx950"\n.text\n.globl {NAME}_kernel\n.p2align 8\n.type {NAME}_kernel,@function\n{NAME}_kernel:\n'
    pre = txt
    tail = 'END:\n    s_endpgm\nEND0:\n    s_waitcnt lgkmcnt(0)\n    s_endpgm\n'
    sz = sizes(pre + a.text() + tail)
    if ALIGN:
        a.out, tot, np_, nn = align(a.out, sz); print('align: residual', tot, 'promoted', np_, 'nops', nn, 'bytes', sum(sz))
    txt += a.text() + tail
    txt += f'''.section .rodata,"a"
.p2align 6
.amdhsa_kernel {NAME}_kernel
  .amdhsa_next_free_vgpr 512
  .amdhsa_next_free_sgpr 102
  .amdhsa_accum_offset 256
  .amdhsa_group_segment_fixed_size 0
  .amdhsa_kernarg_size 136
  .amdhsa_user_sgpr_count 2
  .amdhsa_user_sgpr_kernarg_segment_ptr 1
  .amdhsa_system_sgpr_workgroup_id_x 1
.end_amdhsa_kernel
'''
    return txt, a
if __name__ == '__main__':
    stop = int(sys.argv[2]) if len(sys.argv) > 2 else 99
    stamps = int(sys.argv[3]) if len(sys.argv) > 3 else 0
    txt, a = build(stop, stamps)
    open(sys.argv[1], 'w').write(txt)
    print('instrs', a.n, 'nops', a.nops)
```

```python
import sys, struct, math, os
from collections import defaultdict
sys.path.insert(0, 'work')
from asmlib import *
NAME = 'recurrent_scan__ssm_conv_s4__mixer_channel_mlp__prompt'
def f2u(x): return '0x%08x' % struct.unpack('<I', struct.pack('<f', x))[0]
E_ = lambda k, d: int(os.environ.get(k, d))
LA, LB, LRING, LEND = 0, 69888, 79104, 161024
WR = 17408; LXS = 14592
UCH = 16656; LEXT = 33312
Y2S = 912; NSLOT = 10; NEXT = E_('NEXT', '4')
XNT, YT, HB, FL, STAMP = 0, 0x200000, 0x400000, 0xB00000, 0xC00000
XF, HF, YF = FL, FL + 0x20000, FL + 0x40000
SX, SW1, SW2, SWS, SOUT, SU, SDBG = 40, 44, 48, 52, 56, 60, 64
sJ, sR, sW, sNON, sRING, sT0, sT1, sT2 = 68, 69, 70, 71, 72, 73, 74, 75
sW2 = 76; sH = 83; sK = 90; sXO = 92; sLD = 93; sP = 94; sC = 95; sHI = 3; sST = 96
sXF, sXT, sPF2, sHF0, sY, sKB, sYF, sUB, sEXT, sDM, sRK, sDL, sY8 = 4, 5, 6, 7, 8, 9, 10, 11, 12, 13, 14, 15, 89
vD1, vD2, vA0, vA1, vB0, vB1, vPAR, vL16 = 1, 2, 3, 4, 5, 6, 7, 13
xa, xb, p1, p2, vb1, wy, wx, wxn, wst, wstn, xr, xs = 14, 15, 16, 18, 20, 21, 22, 23, 24, 25, 26, 27
xk, xp, k1, k2, kz, bm = 28, 29, 35, 36, 37, 34
tw, twA, twB, tr, dt = 35, 36, 37, 38, 39
vG2, vTR = 60, 61
HOWN = 224
ALIGN = E_('ALIGN', '1'); LVL = E_('LVL', '1')
WS = f's[{SWS}:{SWS+3}]'

def gen(stop=99, stamps=False):
    a = Asm(); I = a
    nst = [0]; late_ = [0]
    def stamp(lvl=1, pre=None, nm=None):
        if nm in os.environ.get('ST', '').split(','): lvl = 1
        if not stamps or lvl > LVL: return
        if LVL == 4 and lvl == 3 and late_[0]: return
        inf = a.infill; a.infill = True
        if pre is None: I(f's_memtime s[{sST}:{sST+1}]'); a.waitcnt(lg=0)
        else: I(f's_mov_b32 s{sST}, s{pre}')
        I(f'v_mov_b32 v63, s{sST}'); I(f's_lshl_b32 s{sST+2}, s2, 2'); I(f's_add_u32 s{sST+2}, s{sST+2}, s{sW}')
        I(f's_lshl_b32 s{sST+2}, s{sST+2}, 7'); I(f's_add_u32 s{sST+2}, s{sST+2}, {STAMP + 4*nst[0]}')
        I('s_mov_b64 exec, 1'); I(f'buffer_store_dword v63, off, {WS}, s{sST+2}'); I('s_mov_b64 exec, -1')
        nst[0] += 1; a.infill = inf; assert nst[0] <= 30
    def srd(d, b, n):
        I(f's_mov_b32 s{d}, s{b}'); I(f's_mov_b32 s{d+1}, s{b+1}'); I(f's_mov_b32 s{d+2}, {n}'); I(f's_mov_b32 s{d+3}, 0x00020000')
    def fin():
        if stamps:
            I('v_mov_b32 v62, s22'); I('s_memrealtime s[96:97]'); I('v_mov_b32 v63, s96'); I(f's_lshl_b32 s98, s2, 2'); I(f's_add_u32 s98, s98, s{sW}')
            I('s_lshl_b32 s98, s98, 7'); I(f's_add_u32 s98, s98, {STAMP + 120}'); I(f'buffer_store_dwordx2 v[62:63], off, {WS}, s98')
            a.label('PCL'); I('s_getpc_b64 s[96:97]'); I('s_sub_u32 s96, s96, PCL+4-%s_kernel' % NAME); I('s_subb_u32 s97, s97, 0')
            I('v_mov_b32 v62, s96'); I('v_mov_b32 v63, s97'); I('s_mov_b32 s96, 0xCF0000')
            I(f'buffer_store_dwordx2 v[62:63], off, {WS}, s96')
        a.waitcnt(vm=0, lg=0); a._emit('s_endpgm')
    lab = [0]
    def poll(reload, cmp):
        lab[0] += 1; n = f'P{lab[0]}'; inf = a.infill; a.infill = True
        cmp(); a.settle(); a._emit(f's_cbranch_scc0 {n}_ok'); st = a.snap()
        I(f's_mov_b32 s{sST+3}, 0x40000'); a.label(f'{n}_lp')
        reload(); a._emit('s_waitcnt vmcnt(0)'); a.vm = []
        I(f's_sub_u32 s{sST+3}, s{sST+3}, 1'); a._emit(f's_cbranch_scc1 {n}_ok')
        cmp(); a.settle(); a._emit(f's_cbranch_scc1 {n}_lp')
        a.label(f'{n}_ok'); a.restore(st); a.infill = inf
    def cmp_flag(vf):
        def f(): I(f'v_cmp_ne_u32 vcc, s{sNON}, v{vf}'); I('s_and_b64 vcc, vcc, exec')
        return f
    def flag_store(soff, off=0):
        I(f'v_mov_b32 v62, s{sNON}'); I('s_mov_b64 exec, 1')
        I(f'buffer_store_dword v62, off, {WS}, s{soff} offset:{off} sc1'); I('s_mov_b64 exec, -1')
    def unpack(dlo, dhi, src):
        I(f'v_lshlrev_b32 v{dlo}, 16, v{src}'); I(f'v_and_b32 v{dhi}, s{sHI}, v{src}')
    def rne2(x, y, t):
        I(f'v_cvt_pk_bf16_f32 v{t}, v{x}, v{y}'); unpack(x, y, t)
    def bar(*toks):
        a.wait(*toks); a._emit('s_barrier')
    seq = lambda l: (lambda: [I(x) for x in l] and None)
    def chunks(l, n=4): return [seq(l[i:i+n]) for i in range(0, len(l), n)]

    I('s_load_dwordx16 s[4:19], s[0:1], 0'); I('s_load_dwordx16 s[20:35], s[0:1], 64'); I('s_load_dwordx2 s[36:37], s[0:1], 128')
    I('s_cmp_ge_u32 s2, 224'); a._emit('s_cbranch_scc1 END0')
    I('s_getpc_b64 s[98:99]'); a.label('PC0')
    I(f's_lshl_b32 s{sT0}, s2, 11'); I(f's_and_b32 s{sT0}, s{sT0}, 0x4000'); I(f'v_lshl_add_u32 v1, v0, 6, s{sT0}'); I('v_min_u32 v1, END-PC0, v1')
    I('v_mov_b32 v3, s99'); I('v_add_co_u32 v2, vcc, s98, v1'); I('v_addc_co_u32 v3, vcc, 0, v3, vcc')
    a.pf('global_load_dword a255, v[2:3], off')
    if stamps: I('s_memtime s[100:101]'); I('s_memrealtime s[96:97]')
    rho, c8, hb, q0_, q1_, q2_ = 54, 55, 56, 57, 58, 59
    I(f's_lshl_b32 s{sT0}, s2, 10'); I(f'v_lshl_add_u32 v{q0_}, v0, 2, s{sT0}')
    I('v_lshrrev_b32 v1, 6, v0'); I('v_and_b32 v0, 63, v0'); I(f'v_readfirstlane_b32 s{sW}, v1')
    MAP = E_('MAP', '0')
    if MAP:
        I(f's_lshr_b32 s{sT1}, s2, 3'); I(f's_mul_i32 s{sK}, s{sT1}, 37'); I(f's_lshr_b32 s{sK}, s{sK}, 8'); I(f's_mul_i32 s{sT0}, s{sK}, 7')
        I(f's_sub_u32 s{sJ}, s{sT1}, s{sT0}'); I(f's_and_b32 s{sT1}, s2, 7'); I(f's_lshl_b32 s{sT1}, s{sT1}, 2'); I(f's_add_u32 s{sR}, s{sK}, s{sT1}')
    else:
        I(f's_and_b32 s{sT0}, s2, 1'); I(f's_mul_i32 s{sT0}, s{sT0}, 28'); I(f's_lshr_b32 s{sT1}, s2, 3'); I(f's_add_u32 s{sT0}, s{sT0}, s{sT1}')
        I(f's_lshr_b32 s{sJ}, s{sT0}, 3'); I(f's_and_b32 s{sK}, s{sT0}, 7'); I(f's_and_b32 s{sT1}, s2, 6'); I(f's_lshl_b32 s{sT1}, s{sT1}, 2')
        I(f's_add_u32 s{sR}, s{sK}, s{sT1}')
    I(f'v_lshrrev_b32 v{rho}, 3, v0'); I(f'v_and_b32 v{c8}, 7, v0')
    I(f'v_mul_u32_u24 v{xa}, 896, v{rho}'); I(f'v_lshl_add_u32 v{xa}, v{c8}, 4, v{xa}')
    I(f's_lshl_b32 s{sT0}, s{sR}, 2'); I(f's_add_u32 s{sT0}, s{sT0}, s{sW}'); I(f's_mul_i32 s{sT0}, s{sT0}, {16*896}')
    I(f'v_add_u32 v{xa}, s{sT0}, v{xa}'); I(f'v_add_u32 v{xb}, 7168, v{xa}')
    sXC = 76
    I(f's_lshl_b32 s{sXC}, s{sJ}, 7')
    for i in range(1, 7):
        I(f's_add_u32 s{sXC+i}, s{sXC+i-1}, 384'); I(f's_cmp_ge_u32 s{sXC+i}, 896'); I(f's_cselect_b32 s{sT1}, 896, 0'); I(f's_sub_u32 s{sXC+i}, s{sXC+i}, s{sT1}')
    I(f'v_mul_u32_u24 v{vD1}, 3584, v{rho}'); I(f'v_lshl_add_u32 v{p1}, v{c8}, 6, v{vD1}')
    assert not MAP
    PFO = E_('PFO', '0')
    if PFO:
        I(f's_lshl_b32 s{sT2}, s{sK}, 2'); I(f's_add_u32 s{sT2}, s{sT2}, s{sW}'); I(f's_mul_i32 s{sT0}, s{sT2}, {14*3584}')
        I(f's_lshl_b32 s{sT1}, s{sJ}, 9'); I(f's_add_u32 s{sT0}, s{sT0}, s{sT1}'); I(f'v_add_u32 v{p1}, s{sT0}, v{p1}')
        I(f's_cmp_ge_u32 s{sK}, 4'); I(f's_cselect_b32 s{sT0}, {(-224*3584) & 0xffffffff}, 0'); I(f's_cselect_b32 s{sT1}, 0, {224*3584}')
        I(f's_add_u32 s{sT0}, s{sT0}, s{sT1}'); I(f'v_add_u32 v{p1+1}, s{sT0}, v{p1}'); I(f's_mov_b32 s{sY8}, {8*3584}')
    else:
        sQ, sJS = 38, 39
        I(f's_lshr_b32 s{sT1}, s2, 3'); I(f's_mul_i32 s{sJS}, s{sT1}, 37'); I(f's_lshr_b32 s{sJS}, s{sJS}, 8'); I(f's_mul_i32 s{sT0}, s{sJS}, 7')
        I(f's_sub_u32 s{sT1}, s{sT1}, s{sT0}'); I(f's_lshl_b32 s{sT1}, s{sT1}, 2'); I(f's_add_u32 s{sQ}, s{sT1}, s{sW}')
        I(f's_and_b32 s{sT0}, s2, 1'); I(f's_mul_i32 s{sT0}, s{sT0}, 3'); I(f's_add_u32 s{sJS}, s{sJS}, s{sT0}')
        I(f's_mul_i32 s{sT0}, s{sQ}, {8*3584}'); I(f's_lshl_b32 s{sT1}, s{sJS}, 9'); I(f's_add_u32 s{sT0}, s{sT0}, s{sT1}'); I(f'v_add_u32 v{p1}, s{sT0}, v{p1}')
        I(f's_mul_i32 s{sT0}, s{sQ}, {32*896}'); I(f's_lshl_b32 s{sT1}, s{sJS}, 7'); I(f's_add_u32 s{sT2}, s{sT0}, s{sT1}'); I(f's_mov_b32 s{sY8}, {224*3584}')
    I(f's_mov_b32 s{SW1+2}, {448*3584}'); I(f's_mov_b32 s{SW1+3}, 0x00020000')
    I(f's_mov_b32 s{SX+2}, {2048*896}'); I(f's_mov_b32 s{SX+3}, 0x00020000'); I(f's_lshl_b32 s{sT1}, s2, 2')
    for i in range(6): I(f'global_load_dword v{vPAR+i}, v{q0_}, s[{6+2*i}:{7+2*i}]')
    I(f's_load_dword s{sLD}, s[18:19], s{sT1}')
    I(f's_mov_b32 s{SX}, s4'); I(f's_mov_b32 s{SX+1}, s5'); I(f's_mov_b32 s{SW1}, s24'); I(f's_mov_b32 s{SW1+1}, s25')
    X0, X1 = 192, 220
    if PFO:
        def wpf(p, S_, so, nm):
            def g():
                I(f's_cmp_lg_u32 s{sJ}, 3'); a._emit(f's_cbranch_scc1 {nm}')
                a._emit(f'buffer_load_dword a255, v{p+1}, s[{S_}:{S_+3}], 0 offen'); a._emit(f'buffer_load_dword a255, v{p+1}, s[{S_}:{S_+3}], s{so} offen')
                a.label(nm)
            return [lambda: a.pf(f'buffer_load_dword a255, v{p}, s[{S_}:{S_+3}], 0 offen'), lambda: a.pf(f'buffer_load_dword a255, v{p}, s[{S_}:{S_+3}], s{so} offen'), g]
    else:
        def wpf(p, S_, so, nm): return [(lambda o=o: a.pf(f'buffer_load_dword a255, v{p}, s[{S_}:{S_+3}], {o} offen')) for o in ('0', f's{so}')]
    B1R = 176; CB = 144
    src = {'x': [seq([f'buffer_load_dwordx4 {V(X+4*i,4)}, v{v_}, s[{SX}:{SX+3}], s{sXC+i} offen']) for i in range(7) for X, v_ in ((X0, xa), (X1, xb))],
           'f': wpf(p1, SW1, sY8, 'NOPF1'), 'h': wpf(p2, SW2, sPF2, 'NOPF2'),
           'r': [(lambda k=k, hh=hh: dma1(k, hh)) for k in range(NSLOT) for hh in range(2)],
           'b': [seq([f'global_load_dwordx4 {V(B1R+8*fb+4*q,4)}, v{vb1}, s[26:27] offset:{64*fb+16*q}']) for fb in range(2) for q in range(2)]}
    NW = E_('NW', '9'); WB = 192 - 8*NW; WS0 = 56 - NW
    def wld(st_, hh):
        def f():
            n, sg = divmod(st_ - 28, 4)
            I(f's_add_u32 s{sDM}, s{sW2+n if WL else 12+n}, {(32*(sg>>1) + 8*(sg&1) + 16*hh)*896}')
            I(f'buffer_load_dwordx4 {A(WB+8*(st_-WS0)+4*hh,4)}, v{vD2}, s[{SW2}:{SW2+3}], s{sDM} offen')
        return f
    WL = E_('WL', '1')
    src['w'] = [] if WL else [wld(st_, hh) for st_ in list(range(max(48, WS0), 56)) + list(range(WS0, 48)) for hh in range(2)]
    src['r'] = src['r'][:18]; vNON = 57
    ldNON = lambda: I(f'buffer_load_dword v{vNON}, off, s[{SDBG}:{SDBG+3}], 0 sc1')
    src['n'] = [ldNON]
    sched = {}
    for it in os.environ.get('KS', ('p:x6f,0:f,1:x,2:fx,3:x,4:x,5:x,6:x,7:x,a2:x,a6:h,9:h2,12:b4,15:n,' if PFO else 'p:x6f,0:f,1:x,2:x,3:x,4:x,5:x,6:x,7:x,a2:x,a6:h,10:h,12:b4,15:n,') + ','.join([f'{i}:r' for i in (11,13,14)]+[f'c{i}:r' for i in range(9)]+[f'{17+i}:r' for i in (0,1,3,5,7,8)]) + ''.join(f',{40-len(src["w"])+i}:w' if len(src['w']) - i <= 14 else f',m{i}:w' for i in range(len(src['w'])))).split(','):
        k_, v_ = it.split(':'); sched[k_] = sched.get(k_, []) + [src[c].pop(0) for c, n in re.findall(r'([a-z])(\d*)', v_) for _ in range(int(n or 1))]
    assert not any(src.values()), src
    hk = [0]
    def hook(nm=None):
        for f in sched.pop(nm or str(hk[0]), []): f()
        if not nm: hk[0] += 1
    sched.pop('z', None)
    for f in sched.pop('p', []): f()
    I('s_memrealtime s[38:39]')
    if stamps:
        I('s_mov_b32 s22, s96')
        if LVL >= 3: I('s_memtime s[96:97]'); I('s_mov_b32 s23, s96')
    I(f's_mov_b32 s{sHI}, 0xffff0000')
    I(f's_and_b32 s{sP}, s{sW}, 1'); I(f's_lshr_b32 s{sC}, s{sW}, 1'); I(f'v_lshlrev_b32 v{vL16}, 4, v0'); I(f'v_lshrrev_b32 v{hb}, 5, v0')
    I(f's_lshl_b32 s{sRK}, s{sJ}, 7'); srd(SWS, 36, 0x1000000); srd(SDBG, 34, 256); srd(SW2, 28, 1792*896)
    I(f's_or_b32 s{sNON}, s2, s{sW}'); I(f's_cmp_lg_u32 s{sNON}, 0'); a.settle(); a._emit('s_cbranch_scc1 NONCE')
    st = a.snap(); I('s_or_b32 s38, s38, 1'); I('v_mov_b32 v62, s38'); I('s_mov_b64 exec, 1')
    I(f'buffer_store_dword v62, off, s[{SDBG}:{SDBG+3}], 0 sc1'); I('s_mov_b64 exec, -1'); a.settle()
    a.label('NONCE'); a.restore(st)
    I(f'v_lshrrev_b32 v{p2}, 1, v0'); I(f'v_mul_u32_u24 v{p2}, 896, v{p2}'); I(f'v_and_b32 v{q0_}, 1, v0'); I(f'v_lshl_add_u32 v{p2}, v{q0_}, 6, v{p2}')
    if PFO:
        I(f's_mul_i32 s{sT0}, s{sT2}, {56*896}'); I(f's_add_u32 s{sT0}, s{sT0}, s{sRK}'); I(f'v_add_u32 v{p2}, s{sT0}, v{p2}')
        I(f's_cmp_ge_u32 s{sK}, 4'); I(f's_cselect_b32 s{sT0}, {(-896*896) & 0xffffffff}, 0'); I(f's_cselect_b32 s{sT1}, 0, {896*896}'); I(f's_add_u32 s{sT0}, s{sT0}, s{sT1}')
        I(f'v_add_u32 v{p2+1}, s{sT0}, v{p2}'); I(f's_mov_b32 s{sPF2}, {32*896}')
    else:
        I(f'v_add_u32 v{p2}, s{sT2}, v{p2}'); I(f's_mov_b32 s{sPF2}, {896*896}')
    I(f'v_lshrrev_b32 v{q0_}, 2, v0'); I(f'v_and_b32 v{q0_}, 4, v{q0_}'); I(f'v_xor_b32 v{q0_}, v{q0_}, v{c8}'); I(f'v_lshlrev_b32 v{q0_}, 4, v{q0_}')
    I(f'v_mul_u32_u24 v{vD2}, 896, v{rho}'); I(f'v_add_u32 v{vD2}, v{vD2}, v{q0_}')
    I(f's_lshl_b32 s{sT2}, s{sJ}, 2'); I(f's_add_u32 s{sT2}, s{sT2}, s{sW}'); I(f's_lshl_b32 s{sT0}, s{sT2}, 7')
    I(f'v_add3_u32 v{vD1}, s{sT0}, v{vD1}, v{q0_}')
    I(f'v_lshl_add_u32 v{vb1}, v{hb}, 5, s{sT0}')
    I(f's_mul_i32 s{sT0}, s{sW}, {64*896}'); I(f's_add_u32 s{sT0}, s{sT0}, s{sRK}')
    for n in ((4, 5, 6) if not WL else ()):
        I(f's_add_u32 s{sT1}, s{sJ}, {n}'); I(f's_cmp_ge_u32 s{sT1}, 7'); I(f's_cselect_b32 s{12+n}, 7, 0'); I(f's_sub_u32 s{sT1}, s{sT1}, s{12+n}')
        I(f's_mul_i32 s{sT1}, s{sT1}, {256*896}'); I(f's_add_u32 s{12+n}, s{sT1}, s{sT0}')
    I(f's_mul_i32 s{sRING}, s{sW}, {NSLOT*2048}'); I(f's_add_u32 s{sRING}, s{sRING}, {LRING}')
    I(f's_lshl_b32 s{sXF}, s{sJ}, 5'); I(f's_add_u32 s{sXF}, s{sXF}, s{sR}'); I(f's_lshl_b32 s{sXF}, s{sXF}, 4'); I(f's_add_u32 s{sXF}, s{sXF}, {XF}')
    I(f's_lshl_b32 s{sXT}, s{sJ}, 18'); I(f's_lshl_b32 s{sT0}, s{sR}, 7'); I(f's_add_u32 s{sXT}, s{sXT}, s{sT0}'); I(f's_lshl_b32 s{sT0}, s{sW}, 5'); I(f's_add_u32 s{sXT}, s{sXT}, s{sT0}')
    dtok = {}
    def slot(step):
        cyc = [0, 1, 9, 2, 3, 4, 5, 6, 7, 8]
        if step < 28: return 0, (step if step < 9 else cyc[(step - 9) % 10]) * 2048
        q = (step - 28) % (NSLOT + NEXT)
        return (0, cyc[(28 + q - 9) % 10] * 2048) if q < NSLOT else (1, (q - NSLOT) * 2048)
    def dma1(step, hh):
        ex_, so = slot(step)
        I(f's_add_u32 m0, s{sEXT if ex_ else sRING}, {so + hh*1024}')
        if step < 28:
            I(f's_mov_b32 s{sDM}, {(16*step + 8*hh)*3584}')
            dtok[step if hh else -1] = I(f'buffer_load_dwordx4 v{vD1}, s[{SW1}:{SW1+3}], s{sDM} offen lds')
        else:
            n, sg = divmod(step - 28, 4)
            I(f's_add_u32 s{sDM}, s{sW2+n}, {(32*(sg>>1) + 8*(sg&1) + 16*hh)*896}')
            dtok[step if hh else -1] = I(f'buffer_load_dwordx4 v{vD2}, s[{SW2}:{SW2+3}], s{sDM} offen lds')
    g, r4, c4 = q0_, q1_, q2_
    I(f'v_bfe_u32 v{g}, v0, 4, 1'); I(f'v_bfe_u32 v{r4}, v0, 2, 2'); I(f'v_and_b32 v{c4}, 3, v0')
    I(f'v_lshlrev_b32 v{vTR}, 5, v{g}'); I(f'v_lshl_add_u32 v{vTR}, v{c4}, 3, v{vTR}')
    u, w_ = 40, 41
    I(f'v_and_b32 v{u}, 1, v0'); I(f'v_lshlrev_b32 v{u}, 5, v{u}'); I(f'v_lshl_or_b32 v{u}, v{g}, 4, v{u}'); I(f'v_bfe_u32 v{w_}, v0, 1, 1'); I(f'v_lshl_or_b32 v{u}, v{w_}, 3, v{u}')
    I(f'v_bfe_u32 v{w_}, v0, 3, 1'); I(f'v_lshl_or_b32 v{u}, v{w_}, 6, v{u}')
    I(f'v_lshl_add_u32 v{u}, v{r4}, 7, v{u}'); I(f'v_add_u32 v{u}, s{sRING}, v{u}')
    I(f'v_lshl_add_u32 v{vA0}, v{hb}, 10, v{u}'); I(f'v_xor_b32 v{vA1}, 64, v{vA0}')
    I(f's_lshl_b32 s{sT0}, s{sP}, 6'); I(f'v_xor_b32 v{vG2}, s{sT0}, v{vA0}')
    I(f'v_and_b32 v{u}, 15, v0'); I(f'v_mul_u32_u24 v{vB0}, {Y2S}, v{u}'); I(f'v_mul_u32_u24 v{wst}, 144, v{u}'); I(f'v_mul_u32_u24 v{w_}, {WR}, v{g}')
    I(f'v_add_u32 v{vB0}, v{vB0}, v{w_}'); I(f'v_lshl_add_u32 v{vB0}, v{hb}, 4, v{vB0}')
    I(f's_mul_i32 s{sT0}, s{sC}, {2*WR}'); I(f's_sub_u32 s{sT1}, {2*WR}, s{sT0}'); I(f'v_add_u32 v{vB1}, s{sT1}, v{vB0}'); I(f'v_add_u32 v{vB0}, s{sT0}, v{vB0}')
    I(f'v_lshl_add_u32 v{wst}, v{hb}, 5, v{wst}'); I(f's_lshl_b32 s{sT1}, s{sP}, 6'); I(f's_add_u32 s{sT0}, s{sT0}, s{sT1}'); I(f's_add_u32 s{sT0}, s{sT0}, {LXS}')
    I(f'v_mul_u32_u24 v{wstn}, {16*144}, v{g}'); I(f'v_add_u32 v{wstn}, v{wstn}, v{wst}'); I(f'v_add3_u32 v{wst}, v{wst}, v{w_}, s{sT0}')
    I(f's_mul_i32 s{sT0}, s{sC}, {32*144}'); I(f's_add_u32 s{sT0}, s{sT0}, s{sT1}'); I(f's_add_u32 s{sT0}, s{sT0}, {LB}'); I(f'v_add_u32 v{wstn}, s{sT0}, v{wstn}')
    I(f's_mul_i32 s{sT2}, s{sW}, {WR}')
    I(f'v_mul_u32_u24 v{wy}, {Y2S}, v{rho}'); I(f'v_lshl_add_u32 v{wy}, v{c8}, 4, v{wy}'); I(f'v_add_u32 v{wy}, s{sT2}, v{wy}')
    I(f'v_mul_u32_u24 v{wx}, 144, v{rho}'); I(f'v_lshl_add_u32 v{wx}, v{c8}, 4, v{wx}')
    I(f's_mul_i32 s{sT0}, s{sW}, {16*144}'); I(f's_add_u32 s{sT0}, s{sT0}, {LB}'); I(f'v_add_u32 v{wxn}, s{sT0}, v{wx}')
    I(f's_add_u32 s{sT0}, s{sT2}, {LXS}'); I(f'v_add_u32 v{wx}, s{sT0}, v{wx}')
    I(f's_add_u32 s{sT0}, s{sRING}, {9*2048}'); I(f'v_add_u32 v{xk}, s{sT0}, v{vL16}'); I(f's_xor_b32 s{sT1}, s{sW}, 1'); I(f's_mul_i32 s{sT1}, s{sT1}, {NSLOT*2048}')
    I(f's_add_u32 s{sT1}, s{sT1}, {LRING + 9*2048}'); I(f'v_add_u32 v{xp}, s{sT1}, v{vL16}')
    I(f'v_lshl_add_u32 v{xr}, v{g}, 3, v{r4}'); I(f'v_mul_u32_u24 v{xr}, 144, v{xr}'); I(f'v_lshl_add_u32 v{xr}, v{c4}, 3, v{xr}'); I(f'v_lshl_add_u32 v{xr}, v{hb}, 5, v{xr}')
    I(f's_mul_i32 s{sT0}, s{sW}, {16*144}'); I(f's_add_u32 s{sT0}, s{sT0}, {LB}'); I(f'v_add_u32 v{xr}, s{sT0}, v{xr}')
    I(f'v_lshl_add_u32 v{xs}, v{hb}, 4, v{u}'); I(f'v_lshlrev_b32 v{xs}, 12, v{xs}'); I(f'v_lshl_add_u32 v{xs}, v{g}, 4, v{xs}')
    I(f'v_mul_u32_u24 v{tw}, 272, v0'); I(f'v_add_u32 v{tw}, s{sT2}, v{tw}')
    I(f's_lshl_b32 s{sT0}, s{sP}, 5'); I(f'v_add_u32 v{twA}, s{sT0}, v{tw}'); I(f'v_subrev_u32 v{twB}, s{sT0}, v{tw}')
    I(f'v_bfe_u32 v{w_}, v0, 3, 1'); I(f'v_lshl_add_u32 v{w_}, v{hb}, 2, v{w_}'); I(f'v_mul_u32_u24 v{w_}, {8*272}, v{w_}')
    I(f'v_bfe_u32 v{tr}, v0, 2, 1'); I(f'v_lshl_add_u32 v{tr}, v{tr}, 6, v{vTR}'); I(f'v_add3_u32 v{tr}, v{tr}, v{w_}, s{sT2}')
    I(f's_lshl_b32 s{sT1}, s{sC}, 4'); I(f's_lshr_b32 s{sT1}, s{sLD}, s{sT1}'); I(f's_lshl_b32 s{sT1}, s{sT1}, 16')
    I(f'v_mov_b32 v{dt}, {f2u(math.log2(math.e))}'); I(f'v_mul_f32 v{dt}, s{sT1}, v{dt}'); I(f'v_exp_f32 v{dt}, v{dt}')
    I(f'v_cvt_pk_bf16_f32 v{dt}, v{dt}, v{dt}'); I(f'v_lshlrev_b32 v{dt}, 16, v{dt}')
    stamp(1, 100); stamp(3, 23); stamp(3, nm='ad')

    def cmuls(lst):
        for d, p, q in lst: I(f'v_pk_mul_f32 {V(d,2)}, {V(p,2)}, {V(q,2)} op_sel:[0,0] op_sel_hi:[0,1]')
        for d, p, q in lst: I(f'v_pk_fma_f32 {V(d,2)}, {V(p,2)}, {V(q,2)}, {V(d,2)} op_sel:[1,1,0] op_sel_hi:[1,0,1] neg_lo:[1,0,0]')
    G = lambda b: 64 + 2*b
    Sx = lambda i: 128 + 2*i
    HH = {i: Sx(i) for i in range(9)}
    for n, o in enumerate((256, 258, 260, 262, 264)): HH[o] = 146 + 2*n
    for n, o in enumerate((512, 516, 520, 768, 772, 776)): HH[o] = G(1 + n)
    for n, o in enumerate((1024, 1032, 1280, 1288, 1536, 1544, 1792, 1800)): HH[o] = G(8 + n)
    g1, g256, g2 = 40, 42, 44; er, ph = 46, 47; P = 48; PK = 156; KD = 208
    h0 = [0,1,2,3,4,5,6,7, 512,516,520, 1024,1032,1280,1288, None]
    h1 = [256,256,258,260,260,260,262,264, 768,772,776, 1536,1544,1792,1800, None]
    pkn = [0]; kq = []
    def kread(bt, s_):
        for o, x in ((0, 0), (2, 16*272), (4, 128), (6, 16*272+128)): I(f'ds_read_b64_tr_b16 {A(64*bt+8*s_+o,2)}, v{tr} offset:{x + 272*s_}')
    kmf = lambda bt, s_: (lambda: I(f'v_mfma_f32_32x32x16_bf16 {A(KD,16)}, {A(64*bt+8*s_,4)}, {A(64*bt+8*s_+4,4)}, {0 if (bt == 0 and s_ == 0) else A(KD,16)}'))
    def wr8(srcs, ad, off, neg):
        n_ = pkn[0]; p = PK + 8*(n_ & 1); pkn[0] += 1
        for comp in range(2):
            n = '-' if (neg and comp) else ''
            for e in range(4):
                x, y = srcs[2*e], srcs[2*e+1]
                if y is None: y = x
                I(f'v_cvt_pk_bf16_f32 v{p+4*comp+e}, {n}v{x+comp}, {n}v{y+comp}')
        for comp in range(2): I(f'ds_write_b128 v{ad}, {V(p+4*comp,4)} offset:{off + 64*comp}')
        hook()
    def preamble(bt):
        l = [f'v_lshlrev_b32 v{P+i}, 16, v{vPAR+i}' if bt == 0 else f'v_and_b32 v{P+i}, s{sHI}, v{vPAR+i}' for i in range(6)]
        l += [f'v_mul_f32 v{P+i}, v{dt}, v{P+i}' for i in range(4)]
        l += [f'v_mul_f32 v{er}, {f2u(math.log2(math.e))}, v{P}', f'v_mul_f32 v{ph}, 0.15915494, v{P+1}']
        d, p, q = Sx(0), P+4, P+2
        l += [f'v_mul_f32 v{d}, v{p}, v{q}', f'v_mul_f32 v{d+1}, v{p}, v{q+1}', f'v_fma_f32 v{d}, -v{p+1}, v{q+1}, v{d}', f'v_fma_f32 v{d+1}, v{p+1}, v{q}, v{d+1}']
        T3 = ((g1, 1.0, er, ph), (G(1), 8.0, P, P+1), (g256, 256.0, P+2, P+3))
        for d, sc, m_, f_ in T3[1:]: l += [f'v_mul_f32 v{m_}, {f2u(sc)}, v{er}', f'v_mul_f32 v{f_}, {f2u(sc)}, v{ph}']
        for d, sc, m_, f_ in T3: l += [f'v_fract_f32 v{f_}, v{f_}', f'v_exp_f32 v{m_}, v{m_}']
        for d, sc, m_, f_ in T3: l += [f'v_cos_f32 v{d}, v{f_}', f'v_sin_f32 v{d+1}, v{f_}']
        for d, sc, m_, f_ in T3: l += [f'v_mul_f32 v{d}, v{d}, v{m_}', f'v_mul_f32 v{d+1}, v{d+1}, v{m_}']
        return l
    for bt in range(2):
        l = preamble(bt)
        if bt == 0:
            [I(l.pop(0)) for _ in range(6)]; stamp(3, nm='pw'); hook('q')
        else:
            kread(0, 0); kread(0, 1)
            for _ in range(E_('PA0', '12')): I(l.pop(0))
            for s_ in range(8):
                kmf(0, s_)()
                if s_ < 6: kread(0, s_ + 2)
                hook(f'a{s_}')
                for _ in range(E_('PA1', '3') + 2*(s_ >= 6)):
                    if l: I(l.pop(0))
            stamp(3, nm='ba')
        for x in l: I(x)
        if bt == 0: I(f'v_mov_b32 v{G(0)}, 1.0'); I(f'v_mov_b32 v{G(0)+1}, 0')
        cmuls([(G(2), G(1), G(1)), (g2, g1, g1), (Sx(1), Sx(0), g1), (Sx(8), Sx(0), G(1))])
        cmuls([(G(3), G(2), G(1)), (G(4), G(2), G(2)), (Sx(2), Sx(0), g2), (Sx(3), Sx(1), g2)])
        cmuls([(G(5), G(4), G(1)), (G(6), G(4), G(2)), (G(7), G(4), G(3)), (G(8), G(4), G(4)), (Sx(4), Sx(2), g2), (Sx(5), Sx(3), g2)])
        wr8([G(b) for b in range(8)], tw, 128, False)
        cmuls([(G(8+i), G(8), G(i)) for i in range(1, 9)] + [(Sx(6), Sx(4), g2), (Sx(7), Sx(5), g2)])
        wr8([G(b) for b in range(8, 16)], tw, 144, False)
        cmuls([(G(16+i), G(16), G(i)) for i in range(1, 8)] + [(HH[256+i], Sx(i), g256) for i in (0, 2, 4, 6, 8)])
        wr8([G(b) for b in range(16, 24)], tw, 160, False)
        cmuls([(G(16+i), G(16), G(i)) for i in range(8, 16)] + [(HH[512+i], HH[256+i], g256) for i in (0, 4, 8)])
        wr8([G(b) for b in range(24, 32)], tw, 176, False)
        cmuls([(HH[768+i], HH[512+i], g256) for i in (0, 4, 8)])
        wr8([HH[o] for o in h0[0:4] + h1[0:4]], twA, 0, True)
        cmuls([(HH[1024+i], HH[768+i], g256) for i in (0, 8)])
        cmuls([(HH[1280+i], HH[1024+i], g256) for i in (0, 8)])
        wr8([HH[o] for o in h0[4:8] + h1[4:8]], twA, 16, True)
        cmuls([(HH[1536+i], HH[1280+i], g256) for i in (0, 8)])
        wr8([HH.get(o) for o in h0[8:12] + h1[8:12]], twB, 32, True)
        cmuls([(HH[1792+i], HH[1536+i], g256) for i in (0, 8)])
        wr8([HH.get(o) for o in h0[12:16] + h1[12:16]], twB, 48, True)
        stamp(2, nm='k%d' % bt)
    s0, s1, q0, q1 = 64, 80, 66, 67; ON = 84; mk = 38
    KA = E_('KA', '3')
    for s_ in range(KA): kread(1, s_)
    I(f's_mov_b32 s{mk}, 0x22221111'); I(f's_mov_b32 s{mk+1}, 0x88884444'); I(f'v_mov_b32 v{ON+1}, 0x3f803f80'); I(f'v_cndmask_b32 v{ON}, 0, v{ON+1}, s[{mk}:{mk+1}]')
    for e in range(1, 4): I(f'v_mov_b32 v{ON+e}, v{ON}')
    sm = [f'v_mfma_f32_16x16x32_bf16 {V(D,4)}, {V(ON,4)}, {V(X+4*i,4)}, {0 if i == 0 else V(D,4)}' for i in range(7) for D, X in ((s0, X0), (s1, X1))]
    for x in sm[:6]: I(x)
    hook('c8'); sm = sm[6:]
    for s_ in range(8):
        kmf(1, s_)()
        if s_ + KA < 8: kread(1, s_ + KA)
        if s_ >= 6: I(f'ds_write_b128 v{wx}, {V((X0, X1)[s_-6],4)} offset:{8*144*(s_-6)}')
        hook(f'c{s_}')
        if s_ < 4:
            for _ in range(2): I(sm.pop(0))
        if s_ in (5, 6, 7):
            e = s_ - 4
            I(f's_mov_b32 s{mk}, {"0xffff0000" if e == 1 else 0}'); I(f's_mov_b32 s{mk+1}, {(0, 0, "0xffff", "0xffff0000")[e]}')
            for D in (s0, s1): I(f'v_cndmask_b32 v{D}, v{D}, v{D+e}, s[{mk}:{mk+1}]')
    assert not sm
    stamp(3, nm='bb')
    for r in (q0, q1): I(f'v_mov_b32 v{r}, 0')
    hk[0] = 17
    for i in range(7):
        for e in range(4):
            for X, q_ in ((X0, q0), (X1, q1)): I(f'v_dot2c_f32_bf16 v{q_}, v{X+4*i+e}, v{X+4*i+e}')
        hook()
    stamp(2, nm='dot')
    for m in ('quad_perm:[1,0,3,2]', 'quad_perm:[2,3,0,1]', 'row_half_mirror'):
        for r in (s0, s1, q0, q1): I(f'v_add_f32_dpp v{r}, v{r}, v{r} {m} row_mask:0xf bank_mask:0xf')
    MR0, MR1, AB0, AB1 = 68, 70, 72, 74
    t = 76
    for r in (s0, s1, q0, q1): I(f'v_mul_f32 v{r}, {f2u(1/448)}, v{r}')
    for s_, q_ in ((s0, q0), (s1, q1)): I(f'v_fma_f32 v{q_}, -v{s_}, v{s_}, v{q_}')
    for q_ in (q0, q1): I(f'v_max_f32 v{q_}, 0, v{q_}')
    def rstd(va, vb, oa, ob):
        I(f'v_cvt_pk_bf16_f32 v{t}, v{va}, v{vb}'); unpack(oa, ob, t)
        for o in (oa, ob): I(f'v_add_f32 v{o}, {f2u(1e-5)}, v{o}')
        rne2(oa, ob, t)
        for o in (oa, ob): I(f'v_sqrt_f32 v{o}, v{o}')
        rne2(oa, ob, t)
        for o in (oa, ob): I(f'v_rcp_f32 v{o}, v{o}')
    I(f'v_cvt_pk_bf16_f32 v{t}, v{s0}, v{s1}'); unpack(MR0, MR1, t)
    rstd(q0, q1, MR0+1, MR1+1)
    for s_, q_, M in ((s0, q0, MR0), (s1, q1, MR1)):
        I(f'v_sub_f32 v{s_}, v{s_}, v{M}'); I(f'v_mul_f32 v{q_}, v{q_}, v{M+1}')
    for s_, q_, M in ((s0, q0, MR0), (s1, q1, MR1)):
        I(f'v_mul_f32 v{s_}, v{s_}, v{M+1}'); I(f'v_mul_f32 v{q_}, v{q_}, v{M+1}')
    rne2(s0, s1, t)
    rstd(q0, q1, AB0+1, AB1+1)
    for s_, M, AB in ((s0, MR0, AB0), (s1, MR1, AB1)):
        I(f'v_mul_f32 v{AB}, v{M+1}, v{AB+1}'); I(f'v_mul_f32 v{s_}, v{s_}, v{AB+1}')
    for s_, M, AB in ((s0, MR0, AB0), (s1, MR1, AB1)):
        I(f'v_fma_f32 v{AB+1}, -v{M}, v{AB}, -v{s_}')
    a.flush(); stamp(4)
    for O, M, off, Z in ((X0, MR0, 0, 96), (X1, MR1, 8*144, 100)):
        for e in range(4): unpack(t+2*e, t+2*e+1, O+e)
        for e in range(4): I(f'v_pk_add_f32 {V(t+2*e,2)}, {V(t+2*e,2)}, {V(M,2)} op_sel_hi:[1,0] neg_lo:[0,1] neg_hi:[0,1]')
        for e in range(4): I(f'v_cvt_pk_bf16_f32 v{Z+e}, v{t+2*e}, v{t+2*e+1}')
        for e in range(4): unpack(t+2*e, t+2*e+1, Z+e)
        for e in range(4): I(f'v_pk_mul_f32 {V(t+2*e,2)}, {V(t+2*e,2)}, {V(M,2)} op_sel:[0,1] op_sel_hi:[1,1]')
        for e in range(4): I(f'v_cvt_pk_bf16_f32 v{Z+e}, v{t+2*e}, v{t+2*e+1}')
        I(f'ds_write_b128 v{wxn}, {V(Z,4)} offset:{off}')
        if off:
            for q in range(2):
                for z in range(2): I(f'ds_read_b64_tr_b16 {V(112+4*q+2*z,2)}, v{xr} offset:{64*q + 576*z}')
        hook()
    tk = {}; stamp(4)
    I(f's_add_u32 s{sT0}, s{sXT}, {32*4096}')
    for i in range(7):
        if i in (1, 3, 5): stamp(4)
        I(f'v_add_u32 v{104+i}, s{sXC+i}, v{wy}')
        for n, (X, AB, off) in enumerate(((X0, AB0, 0), (X1, AB1, 8*Y2S))):
            tt = t + 8*n
            for e in range(4): unpack(tt+2*e, tt+2*e+1, X+4*i+e)
            for e in range(4): I(f'v_pk_fma_f32 {V(tt+2*e,2)}, {V(tt+2*e,2)}, {V(AB,2)}, {V(AB,2)} op_sel:[0,0,1] op_sel_hi:[1,0,1]')
            for e in range(4): I(f'v_cvt_pk_bf16_f32 v{X+4*i+e}, v{tt+2*e}, v{tt+2*e+1}')
            I(f'ds_write_b128 v{104+i}, {V(X+4*i,4)} offset:{off}')
            if i == 0: tk['xn'] = I(f'buffer_store_dwordx4 {V(112+4*n,4)}, v{xs}, {WS}, s{(sXT, sT0)[n]} offen sc1')
            hook()
    for q in range(2): I(f'ds_write_b128 v{xk}, {A(KD+8+4*q,4)} offset:{1024*q}')
    assert not sched, sched
    for fb in range(2):
        for e in range(8): unpack(CB+16*fb+2*e, CB+16*fb+2*e+1, B1R+8*fb+e)
    stamp(4, nm='y2')
    def cm(): I(f'v_readfirstlane_b32 s{sNON}, v{vNON}'); I(f's_cmp_eq_u32 s{sNON}, 0')
    poll(ldNON, cm)
    stamp(3)
    a.wait(tk['xn']); a.barrier()
    stamp()
    late_[0] = 1
    ACC = 64
    def gemm(base, FA, bfrag, breads, cinit, va, extra, nstep=28, npre=0, dm=None):
        def reads(k):
            ex_, so = slot(base + k)
            r = [f'ds_read_b64_tr_b16 {A(FA(k)+o,2)}, v{v_} offset:{so+x}' for v_, o0 in ((va[ex_][0], 0), (va[ex_][1], 4)) for o, x in ((o0, 0), (o0+2, 512))]
            b = breads(k)
            return r[:2] + b[:1] + r[2:] + b[1:]
        if nstep == 0: return reads
        for k in range(npre, 2):
            a.wait(dtok[base+k])
            for x in reads(k): I(x)
        for f in extra.get((-1, 0), []): f()
        for k in range(nstep):
            nx = reads(k+2) if npre <= k + 2 < nstep else []
            nd = base + k + NSLOT - (k < 2)
            for mi, (fb, tb) in enumerate(((0, 0), (1, 0), (0, 1), (1, 1))):
                d = V(ACC + 32*tb + 16*fb, 16)
                I(f'v_mfma_f32_32x32x16_bf16 {d}, {A(FA(k)+4*fb,4)}, {bfrag(k, tb)}, {cinit(fb) if k == 0 else d}')
                if mi == 0 and nx:
                    a.wait(dtok[base+k+2])
                    for x in nx[:len(nx)//2]: I(x)
                if mi == 1:
                    for x in nx[len(nx)//2:]: I(x)
                if mi >= 2 and not base: dma1(nd, mi - 2)
                for f in extra.get((k, mi), []): f()
            if k in (3, 9, 17): stamp(3)
            if LVL < 3: stamp(9, nm=('g' if base else 'f') + str(k))
    ex = defaultdict(list)
    def place(fns, k, mi, skip=()):
        for f in fns:
            while (k, mi) in skip or (k, mi) in ex:
                mi += 1
                if mi == 4: k += 1; mi = 0
            ex[(k, mi)].append(f)
        return k, mi
    def e_xe(i):
        return seq([f'ds_read_b128 {A(192+4*i,4)}, v{(wst, wstn)[i>>1]} offset:{16*(i&1)}'])
    KE, KO, KT = 128, 136, 144
    def e_kr(): I(f'ds_read_b128 {V(KE,4)}, v{xp}'); tk['kr'] = I(f'ds_read_b128 {V(KE+4,4)}, v{xp} offset:1024')
    ex[(0, 0)].append(lambda: flag_store(sXF)); ex[(0, 1)].append(e_kr)
    ex[(2, 0)].append(lambda: (bar(tk['kr']), dma1(11, 0))); ex[(2, 1)].append(lambda: dma1(11, 1))
    for i in range(4): ex[(3 + i, 1)].append(e_xe(i))
    l = chunks([f'v_accvgpr_read_b32 v{KO+e}, a{KD+e}' for e in range(8)], 3)
    l += chunks([f'v_add_f32 v{KE+e}, v{KE+e}, v{KO+e}' for e in range(8)] + [f'v_mov_b32 v{KT+16+e}, 0' for e in range(4)]
              + [f'v_cvt_pk_bf16_f32 v{KT+e}, v{KE+7-2*e}, v{KE+6-2*e}' for e in range(4)]
              + [f'v_cvt_pk_bf16_f32 v{KT+4+e}, v{KE+x}, v{KE+y}' for e, (x, y) in enumerate(((2, 2), (1, 1), (1, 0), (0, 0)))]
              + [f'v_and_b32 v{bm}, 1, v0', f'v_add_u32 v{bm}, -1, v{bm}'], 3)
    l2 = []
    for z, v0_ in enumerate((KE+3, KE+5)):
        tt = KT + 8 + 4*z
        l2 += [f'v_bfi_b32 v{KO}, v{bm}, v{v0_}, v{v0_+1}', f'v_cvt_pk_bf16_f32 v{tt}, v{v0_+1}, v{v0_+1}', f'v_cvt_pk_bf16_f32 v{tt+2}, v{v0_}, v{v0_}',
               f'v_cvt_pk_bf16_f32 v{tt+1}, v{v0_+1}, v{KO}', f'v_mov_b32 v{tt+3}, v{tt+2}']
    kconv = l + chunks(l2, 3)
    late = []; sA, sB, sD = 38, 39, sXO
    late += [f's_mov_b32 s{SOUT}, s32', f's_mov_b32 s{SOUT+1}, s33', f's_mov_b32 s{SOUT+2}, {2048*896}', f's_mov_b32 s{SOUT+3}, 0x00020000']
    late += [f's_mul_i32 s{sA}, s{sW}, {64*896}', f's_add_u32 s{sA}, s{sA}, s{sRK}', f'v_add_u32 v{vD2}, s{sA}, v{vD2}', f's_mul_i32 s{sB}, s{sR}, 28']
    late += [f's_add_u32 s{sB}, s{sB}, s{sW}', f's_lshl_b32 s{sB}, s{sB}, 13', f's_add_u32 s{sB}, s{sB}, {HB}']
    late = chunks(late, 4)
    for n in range(7):
        late += [seq([f's_add_u32 s{sA}, s{sJ}, {n}', f's_cmp_ge_u32 s{sA}, 7', f's_cselect_b32 s{sD}, 7, 0', f's_sub_u32 s{sA}, s{sA}, s{sD}']),
                 seq([f's_mul_i32 s{sW2+n}, s{sA}, {256*896}', f's_lshl_b32 s{sA}, s{sA}, 15', f's_add_u32 s{sH+n}, s{sA}, s{sB}'])]
    bef = set(ex); kk = place(late, 0, 2); assert kk[0] < 17, kk
    keep1 = set(ex) - bef
    vXF, vXFa, vHF, vHFa, vH2 = 14, 15, 16, 17, 18
    uE, uA, u3, uw, u3w, cu0, ck, ys, vL4 = 19, 20, 21, 22, 23, 24, 25, 26, 27
    xc, xq, vSH, vE2, vE3, vG3 = 28, 29, 30, 31, 32, 33
    m0_, m1_, m2_ = 57, 58, 59
    ad = [f's_lshr_b32 s{sT1}, s2, 5', f's_lshl_b32 s{sT1}, s{sT1}, 9', f's_add_u32 s{sT1}, s{sT1}, {XF}', f'v_and_b32 v{vXFa}, 31, v0',
          f'v_lshl_add_u32 v{vXFa}, v{vXFa}, 4, s{sT1}',
          f's_lshl_b32 s{sT1}, s{sR}, 2', f's_add_u32 s{sT1}, s{sT1}, s{sW}', f's_lshl_b32 s{sT1}, s{sT1}, 10', f's_add_u32 s{sT1}, s{sT1}, {HF}',
          f'v_and_b32 v{vHFa}, 7, v0', f'v_min_u32 v{vHFa}, 6, v{vHFa}', f'v_lshlrev_b32 v{vHFa}, 7, v{vHFa}', f'v_add_u32 v{vHFa}, s{sT1}, v{vHFa}',
          f's_add_u32 s{sHF0}, s{sRK}, s{sT1}',
          f's_lshl_b32 s{sT1}, s2, 1', f's_add_u32 s{sT1}, s{sT1}, s{sC}', f's_lshl_b32 s{sT1}, s{sT1}, 12', '',
          f's_add_u32 s{SU}, s36, s{sT1}', f's_addc_u32 s{SU+1}, s37, 0', f's_mov_b32 s{SU+2}, 4096', f's_mov_b32 s{SU+3}, 0x00020000',
          f's_lshl_b32 s{sT0}, s{sP}, 11', f's_add_u32 s{sY}, s{sT1}, s{sT0}', f's_add_u32 s{sY}, s{sY}, {YT}',
          f'v_add_u32 v{uE}, s{sT0}, v{vL16}', f'v_add_u32 v{uA}, -16, v{uE}', '',
          f's_cmp_eq_u32 s{sP}, 0', f's_cselect_b32 s{sT1}, -16, 4080', f'v_and_b32 v{u3}, 2, v0', f'v_mul_u32_u24 v{u3}, s{sP}, v{u3}', f'v_lshl_add_u32 v{u3}, v{u3}, 1, s{sT1}',
          f'v_and_b32 v{vSH}, 1, v0', f'v_lshlrev_b32 v{vSH}, 4, v{vSH}',
          f's_mul_i32 s{sUB}, s{sC}, {UCH}', f's_add_u32 s{sT1}, s{sUB}, 16', f'v_add_u32 v{uw}, s{sT1}, v{uE}',
          f's_mul_i32 s{sT1}, s{sP}, {257*16}', f's_add_u32 s{sT1}, s{sT1}, s{sUB}', f'v_and_b32 v{u3w}, 3, v0', f'v_mul_u32_u24 v{u3w}, 4160, v{u3w}', f'v_add_u32 v{u3w}, s{sT1}, v{u3w}',
          f's_mul_i32 s{sKB}, s{sC}, 4608', f's_add_u32 s{sKB}, s{sKB}, {LB}',
          f'v_and_b32 v{m0_}, 15, v0', f'v_add_u32 v{m1_}, 1, v{m0_}', f'v_and_b32 v{m2_}, 3, v{m1_}', f'v_sub_u32 v{m1_}, v{m1_}, v{m2_}',
          f'v_mul_u32_u24 v{m2_}, 4160, v{m2_}', f'v_lshl_add_u32 v{m2_}, v{m1_}, 1, v{m2_}', f'v_lshrrev_b32 v{m1_}, 4, v0', f'v_lshl_add_u32 v{m2_}, v{m1_}, 4, v{m2_}',
          f's_lshl_b32 s{sT1}, s{sP}, 8', f's_add_u32 s{sT1}, s{sT1}, s{sUB}', f'v_add_u32 v{cu0}, s{sT1}, v{m2_}',
          f'v_and_b32 v{m1_}, 1, v{m1_}', f'v_sub_u32 v{m2_}, v{hb}, v{m0_}', f'v_add_u32 v{m2_}, 15, v{m2_}', f'v_mul_u32_u24 v{ck}, 2304, v{m1_}',
          f'v_lshl_add_u32 v{ck}, v{m2_}, 4, v{ck}', f's_lshl_b32 s{sT1}, s{sP}, 7', f's_add_u32 s{sT1}, s{sT1}, s{sKB}', f'v_add_u32 v{ck}, s{sT1}, v{ck}',
          f'v_lshlrev_b32 v{ys}, 9, v{m1_}', f'v_lshl_add_u32 v{ys}, v{m0_}, 5, v{ys}', f'v_lshl_add_u32 v{ys}, v{hb}, 4, v{ys}', f'v_add_u32 v{vL4}, 4096, v{vL16}',
          f'v_and_b32 v{m2_}, 31, v0', f'v_sub_u32 v{m2_}, 255, v{m2_}', f'v_and_b32 v{k1}, 1, v{m2_}', f'v_lshrrev_b32 v{m2_}, 1, v{m2_}',
          f'v_mul_u32_u24 v{k1}, 2304, v{k1}', f'v_lshl_add_u32 v{k1}, v{m2_}, 4, v{k1}', f's_sub_u32 s{sT1}, s{sKB}, 512', f'v_add_u32 v{k1}, s{sT1}, v{k1}',
          f'v_lshlrev_b32 v{m2_}, 8, v{hb}', f'v_sub_u32 v{k1}, v{k1}, v{m2_}', f'v_sub_u32 v{k2}, v{k1}, v{m2_}', f'v_add_u32 v{k2}, -768, v{k2}',
          f'v_mul_u32_u24 v{kz}, 2304, v{m1_}', f'v_lshl_add_u32 v{kz}, v{m0_}, 4, v{kz}', f'v_add_u32 v{kz}, s{sKB}, v{kz}',
          f's_lshl_b32 s{sT1}, s{sW}, 12', f'v_add_u32 v{xc}, s{sT1}, v{vL16}', f'v_xor_b32 v{xq}, 4096, v{xc}',
          f's_lshl_b32 s{sT1}, s{sW}, 13', f's_add_u32 s{sEXT}, s{sT1}, {LEXT}', f's_sub_u32 s{sT1}, s{sEXT}, s{sRING}', f'v_xor_b32 v{vG3}, 64, v{vG2}',
          f'v_add_u32 v{vE2}, s{sT1}, v{vG2}', f'v_add_u32 v{vE3}, s{sT1}, v{vG3}',
          f'v_add_u32 v8, s{sRING}, v{vL16}', f'v_add_u32 v9, s{sEXT}, v{vL16}',
          f's_lshl_b32 s{sYF}, s2, 2', f's_add_u32 s{sYF}, s{sYF}, s{sW}', f's_lshl_b32 s{sYF}, s{sYF}, 4', f's_add_u32 s{sYF}, s{sYF}, {YF}']
    grp = [[]]
    for x in ad:
        if x == '' or len(grp[-1]) >= E_('ADC', '2') + 2*all(y[0] == 's' for y in grp[-1]): grp.append([])
        if x: grp[-1].append(x)
    kk = place([seq(x) for x in grp if x], kk[0], kk[1]); assert kk[0] < 21, kk; print('ad end', kk)
    kk = place(kconv, max(kk[0], E_('KCS', '18')), 0); print('kconv end', kk); assert kk[0] < 28
    ldXF = lambda: I(f'buffer_load_dword v{vXF}, v{vXFa}, {WS}, 0 offen sc1')
    XP = E_('XPS', '27')
    ex[(XP - 5, 1)].append(ldXF); ex[(XP, 3)].append(lambda: poll(ldXF, cmp_flag(vXF)))
    U0 = 40; UU = f's[{SU}:{SU+3}]'
    ul = [f'buffer_load_dwordx4 {V(U0,4)}, v{uA}, {UU}, 0 offen sc1', f'buffer_load_dwordx2 {V(U0+4,2)}, v{uE}, {UU}, 0 offen sc1',
          f'buffer_load_dwordx4 {V(U0+6,4)}, v{uE}, {UU}, 0 offen offset:1008 sc1', f'buffer_load_dwordx2 {V(U0+10,2)}, v{uE}, {UU}, 0 offen offset:1024 sc1',
          f'buffer_load_dwordx4 {V(U0+12,4)}, v{u3}, {UU}, 0 offen sc1']
    F1 = lambda k: 16*(k % 3)
    gemm(0, F1, lambda k, tb: A(F1(k)+8+4*tb, 4),
         lambda k: [f'ds_read_b128 {A(F1(k)+8+4*tb,4)}, v{vb} offset:{32*k}' for tb, vb in ((0, vB0), (1, vB1))],
         lambda fb: V(CB+16*fb, 16), [(vA0, vA1)], ex)
    a._emit('s_barrier')
    stamp()
    k0 = -2*math.sqrt(2/math.pi)*math.log2(math.e)
    I(f's_mov_b32 s{sK}, {f2u(k0*0.044715)}'); I(f's_mov_b32 s{sK+1}, {f2u(k0)}')
    for x in ul: I(x)
    def copies(d, off):
        c = 164
        def f0(): I(f'ds_write_b128 v{uw}, {V(d,4)} offset:{off}')
        def f1():
            for e in range(4): I(f'v_alignbit_b32 v{c+e}, v{d+e+1}, v{d+e}, 16')
            for e in range(4): I(f'v_mov_b32 v{c+4+e}, v{d+e+1}')
            for e in range(4): I(f'v_alignbit_b32 v{c+8+e}, v{d+e+2}, v{d+e+1}, 16')
        return f0, f1, [seq([f'ds_write_b128 v{uw}, {V(c-4+4*s_,4)} offset:{off + 4160*s_}']) for s_ in range(1, 4)]
    def e_kw():
        I(f's_cmp_eq_u32 s{sP}, 1')
        a.ifelse('KE', seq([f'ds_write_b128 v{k1}, {V(KT,4)} offset:512', f'ds_write_b128 v{kz}, {V(KT+16,4)} offset:2048', f'ds_write_b128 v{kz}, {V(KT+16,4)} offset:2048']),
                 seq([f'ds_write_b128 v{k1}, {V(KT+4,4)}', f'ds_write_b128 v{k2}, {V(KT+8,4)} offset:256', f'ds_write_b128 v{k2}, {V(KT+12,4)}']))
    def e_u3():
        for e in range(4): I(f'v_alignbit_b32 v{176+e}, {"v%d" % (U0+13+e) if e < 3 else 0}, v{U0+12+e}, v{vSH}')
        I('s_mov_b64 exec, 15'); I(f'ds_write_b128 v{u3w}, {V(176,4)}'); I('s_mov_b64 exec, -1')
    ca, cb_ = copies(U0, 0), copies(U0+6, 1024)
    exd = lambda i: [lambda: dma1(38 + i, 0), lambda: dma1(38 + i, 1)]
    gx = {3: [ca[0], cb_[0], ca[1]], 4: ca[2] + [e_kw], 5: [cb_[1]], 6: cb_[2] + [e_u3]}
    for i in range(NEXT): gx[i + E_('EXF', '0')] = exd(i) + gx.get(i + E_('EXF', '0'), [])
    wq = [wld(st_, hh) for st_ in range(WS0, 56) for hh in range(2)] if WL else []
    for f in [int(c) for c in os.environ.get('WGL', '012345')][:len(wq)]: gx[f] = gx.get(f, []) + [wq.pop(0)]
    GX = E_('GX', '1')
    if GX:
        wq = [wld(st_, hh) for st_ in range(WS0, 56) for hh in range(2)]
        vm = [f_ for i in range(NEXT) for f_ in exd(i)] + [wq.pop(0) for _ in range(E_('GW', '12'))]
        gx = {f: [vm.pop(0)] for f in range(E_('GE', '7'))}
        ls = [ca[0], ca[1], cb_[0]] + ca[2] + [cb_[1], e_kw] + cb_[2] + [e_u3]; o_ = []
        while ls or vm:
            if ls: o_.append(ls.pop(0))
            if vm: o_.append(vm.pop(0))
        gx[7] = gx.get(7, []) + o_
    t = 128
    for tb in range(2):
        for sg in range(4):
            x = ACC + 32*tb + 8*sg; Pp = lambda e: V(t+2*e, 2); Xp = lambda e: V(x+2*e, 2)
            for e in range(4): I(f'v_pk_mul_f32 {Pp(e)}, {Xp(e)}, {Xp(e)}')
            for e in range(4): I(f'v_pk_fma_f32 {Pp(e)}, {Pp(e)}, s[{sK}:{sK+1}], s[{sK}:{sK+1}] op_sel:[0,0,1] op_sel_hi:[1,0,1]')
            for e in range(4): I(f'v_pk_mul_f32 {Pp(e)}, {Pp(e)}, {Xp(e)}')
            for e in range(8): I(f'v_exp_f32 v{t+e}, v{t+e}')
            for e in range(4): I(f'v_pk_add_f32 {Pp(e)}, {Pp(e)}, 1.0 op_sel_hi:[1,0]')
            for e in range(8): I(f'v_rcp_f32 v{t+e}, v{t+e}')
            for e in range(4): I(f'v_pk_mul_f32 {Pp(e)}, {Pp(e)}, {Xp(e)}')
            f = 4*tb + sg
            for e in range(4): I(f'v_cvt_pk_bf16_f32 v{HOWN+4*f+e}, v{t+2*e}, v{t+2*e+1}')
            if f == E_('HF0', '7') and not E_('ONEF', '1'): a.wait(tk['h0']); flag_store(sHF0)
            tk['h%d' % tb] = I(f'buffer_store_dwordx4 {V(HOWN+4*f,4)}, v{vL16 if tb == 0 else vL4}, {WS}, s{sH} offen offset:{1024*sg} sc1')
            DS_ = E_('DS', '0')
            if DS_ == 1: tk['h%d' % tb] = I(f'buffer_store_dwordx4 {V(HOWN+4*f,4)}, v{vL16 if tb == 0 else vL4}, {WS}, s{sH} offen offset:{1024*sg}')
            if DS_ == 2 and f > 0: I(f'buffer_store_dwordx4 {V(HOWN+4*f-4,4)}, v{vL16 if f <= 4 else vL4}, {WS}, s{sH} offen offset:{1024*((f-1)&3)}')
            if DS_ == 2 and f == 7: I(f'buffer_store_dwordx4 {V(HOWN+4*f,4)}, v{vL4}, {WS}, s{sH} offen offset:{1024*3}')
            for g_ in gx.get(f, []): g_()
            if f < 7: stamp(4)
    stamp()
    a.barrier()
    stamp()
    if stop == 2:
        I(f's_mul_i32 s{sT0}, s2, 9216'); I(f's_add_u32 s{sT0}, s{sT0}, 0xD00000'); I(f'v_add_u32 v40, {LB}, v{vL16}')
        for i in range(9):
            I(f'ds_read_b128 v[64:67], v40 offset:{1024*i}'); I(f'buffer_store_dwordx4 v[64:67], v{vL16}, {WS}, s{sT0} offen'); I(f's_add_u32 s{sT0}, s{sT0}, 1024')
            a.waitcnt(vm=0)
        fin(); return a
    CA, CBf, CC = [64, 96], [128, 160], 192
    hreg = lambda n, f: (208 + 4*(f-2) if f < 6 else 248 + 4*(f-6)) if (n == 6 and f >= 2 and NW == 9) else 32*(n-1) + 4*f
    hld = lambda n, f: (lambda: I(f'buffer_load_dwordx4 {A(hreg(n, f),4)}, v{vL16 if f < 4 else vL4}, {WS}, s{sH+n} offen offset:{1024*(f&3)} sc1'))
    if E_('NOH', '0') in (1, 2): hld = lambda n, f: (lambda: None)
    if E_('NOH', '0') == 4: hld = lambda n, f: (lambda: I(f'buffer_load_dwordx4 {A(32*(n-1)+4*f,4)}, v{vL16 if f < 4 else vL4}, s[{SX}:{SX+3}], 0 offen offset:{1024*(f&3)} sc1'))
    if E_('NOH', '0') >= 2: poll_ = lambda *x: None
    else: poll_ = poll
    ldH0 = lambda: I(f'buffer_load_dword v{vHF}, v{vHFa}, {WS}, 0 offen sc1')
    ldH1 = lambda: I(f'buffer_load_dword v{vH2}, v{vHFa}, {WS}, 0 offen offset:64 sc1')
    cx = defaultdict(list)
    c_l0, c_p0, c_f1, c_l1, c_p1, hev = E_('CL0', '44'), E_('CP0', '80'), E_('CF1', '6'), E_('CL1', '104'), E_('CP1', '143'), E_('HEV', '5')
    ONEF = E_('ONEF', '1')
    if ONEF: c_l1, c_p1 = E_('CL', '40'), E_('CP', '76'); c_p0 = c_p1
    else: cx[c_l0].append(ldH0); cx[c_p0].append(lambda: (poll_(ldH0, cmp_flag(vHF)), stamp(3)))
    cx[c_f1].append(lambda: (a.wait(tk['h1']), flag_store(sHF0, 64), stamp(3)))
    if E_('HF0', '7') == 8: cx[E_('CF0', '3')].append(lambda: (a.wait(tk['h0']), flag_store(sHF0)))
    cx[c_l1].append(ldH1); cx[c_p1].append(lambda: (poll_(ldH1, cmp_flag(vH2)), stamp(3)))
    NPRE = E_('NPRE', '5')
    F2 = lambda k: 208 + 8*(k - 3) if 3 <= k < NPRE else 224 + 8*(k % 3)
    VA2 = [(vG2, vG3), (vE2, vE3)]
    rd2 = gemm(28, F2, None, lambda k: [], None, VA2, None, nstep=0)
    def e_pre(k):
        def f():
            a.wait(dtok[28 + k])
            for x in rd2(k): tk['pre%d' % k] = I(x)
        return f
    def e_pd(k, hh): return lambda: (a.wait(tk['pre%d' % k]), dma1(38 + NEXT + k, hh))
    for k in range(NPRE):
        cx[k if k < 3 else 28 + 2*k].append(e_pre(k))
    its = [(0 if i < 6 else 44, e_pd(i // 2, i & 1)) for i in range(2*NPRE)]; its = its[:6] + [(0, w_) for w_ in wq] + its[6:]; wq = []
    c = E_('C0', '9'); SP = float(os.environ.get('SP', '4.5'))
    while its:
        ci = int(c)
        while ci in cx: ci += 1
        ok = [x for x in its if x[0] <= ci]; ok = [x for x in ok if x[0]] or ok
        if ok: cx[ci].append(ok[0][1]); its.remove(ok[0])
        c += SP
    print('conv pre items end', ci); c_h0 = max(c_p0 + 1, int(c))
    hq0 = [(n, f) for n in range(1, 7) for f in range(4)]; hq1 = [(n, f+4) for n in range(1, 7) for f in range(4)]
    c = E_('WC0', '5')
    while wq:
        while any(c + d_ in cx for d_ in (0, 1, -1)): c += 1
        cx[c].append(wq.pop(0))
    print('w loads end', c)
    wsl = sorted([(k_, 2 if E_('GL', '0') else 3) for k_ in range(2, 22)] + [(int(k_), 1) for k_ in os.environ.get('WX', '').split(',') if k_]); wt = {}
    for s_ in range(WS0, 56):
        for hh in range(2):
            while wsl[0][0] < s_ - 44: wsl.pop(0)
            wt[(s_, hh)] = wsl.pop(0)
    rel = lambda n, f: 4.5 if hreg(n, f) >= 208 else (wt[(WS0 + (32*(n-1) + 4*f - WB)//8, f & 1)][0] + 0.5) if 32*(n-1) + 4*f >= WB else -1
    hlate = [x for x in hq0 + hq1 if rel(*x) >= 0]; hq0 = [x for x in hq0 if rel(*x) < 0]; hq1 = [x for x in hq1 if rel(*x) < 0]
    c = c_h0
    while c < 144:
        if c <= c_p1:
            if hq0: cx[c].append(hld(*hq0.pop(0)))
        else:
            q = hq1 if (not hq0 or hq1[0][0] < hq0[0][0] + (not ONEF)) else hq0
            cx[c].append(hld(*q.pop(0)))
        c += hev
    hrest = sorted(hq0 + hq1 + hlate); print('h loads left', len(hrest))
    def creads(st):
        r = []
        for i in range(8):
            o = 64*st + 512*i
            r.append(f'ds_read_b64 {V(CA[st&1]+4*i,2)}, v{cu0} offset:{o}'); r.append(f'ds_read_b64 {V(CA[st&1]+4*i+2,2)}, v{cu0} offset:{o+8}')
        b = [f'ds_read_b128 {V(CBf[st&1]+4*i,4)}, v{ck} offset:{256*(7-i) + 32*st}' for i in range(8)]
        return r[:2] + b + r[2:]
    ml = [(st, i, cb) for st in range(4) for i in range(8) for cb in range(i, 8)]
    idx = lambda st, pr: [n for n, m in enumerate(ml) if m[0] == st and pr(m)]
    rq = []
    for st in range(4):
        for i in range(8):
            o = 64*st + 512*i; fu = idx(st, lambda m: m[1] == i)[0]; fr = idx(st-2, lambda m: m[1] == i)[-1] if st >= 2 else -1
            rq += [(fu, fr, f'ds_read_b64 {V(CA[st&1]+4*i,2)}, v{cu0} offset:{o}'), (fu, fr, f'ds_read_b64 {V(CA[st&1]+4*i+2,2)}, v{cu0} offset:{o+8}')]
            fu = idx(st, lambda m: m[2]-m[1] == i)[0]; fr = idx(st-2, lambda m: m[2]-m[1] == i)[-1] if st >= 2 else -1
            rq.append((fu, fr, f'ds_read_b128 {V(CBf[st&1]+4*i,4)}, v{ck} offset:{256*(7-i) + 32*st}'))
    rq.sort(key=lambda x: x[0]); LAT = E_('CLAT', '9'); maxa = E_('CMAX', '40')
    while rq[0][0] < E_('CPRE', '8') + 1: I(rq.pop(0)[2])
    for cg, (st, i, cb) in enumerate(ml):
        d = V(CC+4*cb, 4)
        I(f'v_mfma_f32_16x16x32_bf16 {d}, {V(CA[st&1]+4*i,4)}, {V(CBf[st&1]+4*(cb-i),4)}, {0 if (st == 0 and i == 0) else d}')
        n_ = 0
        while rq and rq[0][1] <= cg and (rq[0][0] - cg <= LAT + (n_ == 0 and cg in cx)*(-3) or (n_ == 0 and cg not in cx and rq[0][0] - cg <= maxa)):
            I(rq.pop(0)[2]); n_ += 1
        assert not rq or rq[0][0] > cg + 1
        for f in cx.get(cg, []): f()
        if str(cg) in os.environ.get('CST', '').split(','): stamp(1)
    a._emit('s_barrier')
    stamp()
    ex = defaultdict(list)
    E1, T = 128, 160
    def e_cw(h_):
        def w(o):
            def f():
                for q in (2*h_, 2*h_+1): tk['cw'] = I(f'ds_write_b128 v{xc}, {V(CC+o+4*q,4)} offset:{1024*q}')
            return f
        return lambda: (I(f's_cmp_eq_u32 s{sP}, 1'), a.ifelse(f'CS{h_}', w(16), w(0)))
    def e_ca(q):
        def f():
            I(f's_cmp_eq_u32 s{sP}, 1'); a.wait(tk['cr%d' % q])
            a._emit(f's_cbranch_scc1 CA{q}_b'); st = a.snap()
            for e in range(4*q, 4*q+4): I(f'v_add_f32 v{E1+e}, v{E1+e}, v{CC+e}')
            a._emit(f's_branch CA{q}_j'); a.label(f'CA{q}_b'); a.restore(st)
            for e in range(4*q, 4*q+4): I(f'v_add_f32 v{E1+e}, v{E1+e}, v{CC+16+e}')
            a.label(f'CA{q}_j')
        return f
    def e_cr():
        for q in range(4): tk['cr%d' % q] = I(f'ds_read_b128 {V(E1+4*q,4)}, v{xq} offset:{1024*q}')
    DCW = E_('DCW', '0')
    if DCW:
        ex[(0, 0)].append(e_cw(0)); ex[(0, 1)].append(e_cw(1)); ex[(1, 0)].append(lambda: (bar(tk['cw']), e_cr()))
        for q in range(4): ex[(2, q)].append(e_ca(q))
    else:
        ex[(-1, 0)].append(e_cw(0)); ex[(-1, 0)].append(e_cw(1)); ex[(0, 2)].append(lambda: (bar(tk['cw']), e_cr()))
        for q in range(4): ex[(1 + (q+2)//4, (q+2) % 4)].append(e_ca(q))
    l = chunks([f'v_cvt_pk_bf16_f32 v{T+e}, v{E1+2*e}, v{E1+2*e+1}' for e in range(8)], 4)
    def e_ys(pr):
        def f(): tk['y'] = I(f'buffer_store_dwordx4 {V(T+4*pr,4)}, v{ys}, {WS}, s{sY} offen offset:{1024*pr} sc1')
        return f
    l += [seq([f'v_permlane16_swap_b32 v{T+4*pr+e}, v{T+4*pr+2+e}' for pr in range(2) for e in range(2)]), e_ys(0), e_ys(1)]
    kk = place(l, 3 if DCW else 2, 0 if DCW else 2); print('ys end', kk)
    vYF, vYFa, vX, vBD = 14, 15, 16, 19
    B2, DS, YR, XF32, XN, t = 128, 136, 144, 152, 208, 28
    ya, yw, yr, rw = 20, 21, 22, 4
    ldYF = lambda: I(f'buffer_load_dword v{vYF}, v{vYFa}, {WS}, 0 offen sc1')
    ex[(E_('YFS', '10'), 3 if E_('GL', '0') else 1)].append(lambda: (a.wait(tk['y']), flag_store(sYF)))
    l = [[f's_lshl_b32 s{sT2}, s{sJ}, 1', f's_add_u32 s{sT2}, s{sT2}, s{sP}', f's_lshl_b32 s{sT1}, s{sR}, 1', f's_add_u32 s{sT1}, s{sT1}, s{sC}'],
         [f's_mul_i32 s{sXO}, s{sT1}, {32*896}', f's_lshl_b32 s{sK}, s{sT2}, 6', f's_add_u32 s{sXO}, s{sXO}, s{sK}'],
         [f'v_and_b32 v{vX}, 31, v0', f'v_mul_u32_u24 v{vX}, 896, v{vX}', f'v_lshl_add_u32 v{vX}, v{hb}, 5, v{vX}'],
         [f'v_lshl_add_u32 v{vBD}, v{hb}, 5, s{sK}', f's_lshl_b32 s{sK}, s{sT2}, 10', f's_add_u32 s{sK}, s{sK}, {YF}', f'v_lshl_add_u32 v{vYFa}, v0, 4, s{sK}'],
         [f's_lshl_b32 s{sT2}, s{sT2}, 17', f's_lshl_b32 s{sK}, s{sT1}, 6', f's_add_u32 s{sT2}, s{sT2}, s{sK}', f's_add_u32 s{sT2}, s{sT2}, {YT}'],
         [f'v_lshrrev_b32 v{ya}, 2, v0', f'v_lshlrev_b32 v{ya}, 12, v{ya}', f'v_and_b32 v{yw}, 3, v0', f'v_lshl_add_u32 v{ya}, v{yw}, 4, v{ya}'],
         [f's_lshl_b32 s{sK}, s{sW}, 11', f's_add_u32 s{sK}, s{sK}, {LB}', f'v_add_u32 v{yw}, s{sK}, v{vL16}'],
         [f'v_bfe_u32 v{yr}, v0, 2, 2', f'v_lshl_add_u32 v{yr}, v{hb}, 4, v{yr}', f'v_lshl_add_u32 v{yr}, v{yr}, 6, v{vTR}', f'v_add_u32 v{yr}, s{sK}, v{yr}'],
         [f'v_add_u32 v{rw}, s{sRING}, v{vL16}', f'v_add_u32 v{rw+1}, {LRING}, v{vL16}']]
    for x in (3, 2, 1): l.append([f's_xor_b32 s{sK}, s{sW}, {x}', f's_mul_i32 s{sK}, s{sK}, {NSLOT*2048}', f'v_add_u32 v{rw+x}, s{sK}, v{rw+1}'])
    l[-1].append(f's_add_u32 s{sK}, s{sT2}, 65536')
    for i, f in enumerate(l): ex[(6 + i, 3 if E_('GL', '0') else 1)].append(seq(f))
    ex[(18, 2)].append(seq([f'global_load_dwordx4 {V(B2+4*q,4)}, v{vBD}, s[30:31] offset:{16*q}' for q in range(2)]))
    ex[(18, 3)].append(seq([f'global_load_dwordx4 {V(DS+4*q,4)}, v{vBD}, s[20:21] offset:{16*q}' for q in range(2)]))
    ex[(E_('YL', '22'), 2)].append(ldYF)
    for i in range(4): ex[(19 + i//2, 3*(i & 1))].append(seq([f'v_accvgpr_read_b32 v{44+4*i+e}, a{192+4*i+e}' for e in range(4)]))
    def e_unp(dst, src): return lambda: [unpack(dst+2*e, dst+2*e+1, src+e) for e in range(2)]
    l = [e_unp(XF32 + 4*i, 44 + 2*i) for i in range(4)] + [e_unp(XN + 4*i, 52 + 2*i) for i in range(4)]
    for i, f in enumerate(l): ex[(21 + i//3, 1 + i % 3)].append(f)
    def e_yl():
        poll(ldYF, cmp_flag(vYF))
        I(f'buffer_load_dwordx4 {V(YR,4)}, v{ya}, {WS}, s{sT2} offen sc1'); I(f'buffer_load_dwordx4 {V(YR+4,4)}, v{ya}, {WS}, s{sK} offen sc1')
    YTP = E_('YTP', '14')
    if YTP < 0: ex[(23, 3)].append(e_yl)
    items = [(4*n - 5, rel(n, f), hld(n, f)) for n, f in hrest] + [(s_ - 28 - 7, s_ - 28 - NSLOT - NEXT, (lambda s_=s_, hh=hh: dma1(s_, hh))) for s_ in range(38 + NEXT + NPRE, WS0) for hh in range(2)]
    items.sort(key=lambda x: x[0])
    for s_ in range(WS0, 56):
        dtok[s_] = None; ex_, so = slot(s_)
        for hh in range(2): ex[wt[(s_, hh)]].insert(0, seq([f'ds_write_b128 v{8+ex_}, {A(WB+8*(s_-WS0)+4*hh,4)} offset:{so + 1024*hh}']))
    busy = ({(0, 0), (3, 2), (4, 0), (4, 2)} if DCW else {(0, 2), (3, 2)}) if not E_('NOYG', '0') else set()
    VP = E_('VP', '2')
    xs_ = [int(x) for x in os.environ.get('VX', '1,3,5').split(',') if x]
    for sh in sorted([x - (x % 4 == 2 and x > 16 and E_('GL', '0')) for x in range(0, 96, VP)] + xs_):
        k_, mi = divmod(sh, 4)
        if (k_, mi) in busy: continue
        for it in items:
            if it[1] < k_ or (it[1] == k_ and mi >= 2):
                ex[(k_, mi)].insert(0, it[2]); items.remove(it)
                if k_ > it[0] + 3: print('late item', it[:2], k_)
                break
    assert not items, len(items)
    def hfrag(k, tb):
        n, sg = divmod(k, 4)
        return V(HOWN + 16*tb + 4*sg, 4) if n == 0 else A(hreg(n, 4*tb + sg), 4)
    FT = 168
    def e_ft(s_):
        def f():
            a.wait(dtok[52 + s_]); ex_, so = slot(52 + s_)
            for fb in (1, 0):
                for o in (0, 2): I(f'ds_read_b64_tr_b16 {V(FT+16*fb+4*s_+o,2)}, v{[(vG2, vG3), (vE2, vE3)][ex_][fb]} offset:{so + 256*o}')
        return f
    for s_ in range(4): ex[(22 + s_//2, s_ & 1)].insert(0, e_ft(s_))
    gemm(28, F2, hfrag, lambda k: [], lambda fb: '0', VA2, ex, nstep=24, npre=NPRE)
    stamp()
    fill = []
    for e in range(8): fill += [f'v_lshlrev_b32 v{t+2*e}, 16, v{DS+e}', f'v_and_b32 v{t+2*e+1}, s{sHI}, v{DS+e}']
    for e in range(16): fill.append(f'v_mul_f32 v{XN+e}, v{XN+e}, v{t+e}')
    for e in range(8): fill += [f'v_lshlrev_b32 v{t+2*e}, 16, v{B2+e}', f'v_and_b32 v{t+2*e+1}, s{sHI}, v{B2+e}']
    prev = None; n_ = 0
    for x in (3, 2, 1, 0):
        fb, tb = x & 1, x >> 1; d = V(ACC + 16*x, 16)
        for s_ in range(4):
            I(f'v_mfma_f32_32x32x16_bf16 {d}, {V(FT+16*fb+4*s_,4)}, {hfrag(24+s_, tb)}, {d}')
            if prev:
                for q in ((), (0,), (1,), (2, 3))[s_] if E_('TW', '1') else ((), (), (0, 1), (2, 3))[s_]: I(f'ds_write_b128 v{rw}, {V(ACC+16*prev+4*q,4)} offset:{4096*(prev-1) + 1024*q}')
            if n_ == YTP: e_yl()
            elif not prev or s_ < 3:
                for _ in range((4 if not prev else (5, 3, 3)[s_])):
                    if fill: I(fill.pop(0))
            n_ += 1
        prev = x
    for f in fill: I(f)
    stamp(3, nm='t1')
    a.barrier()
    stamp(3, nm='t2')
    for hf in range(2):
        for x in range(1, 4):
            for q in (2*hf, 2*hf+1): I(f'ds_read_b128 {V(ACC+16*x+4*q,4)}, v{rw+x} offset:{4096*(x-1) + 1024*q}')
    I(f's_mov_b32 s{sK}, {f2u(-math.log2(math.e))}')
    for e in range(8): I(f'v_pk_add_f32 {V(ACC+2*e,2)}, {V(ACC+2*e,2)}, {V(t+2*e,2)}')
    OSC = os.environ.get('OSC', ''); ty = 44
    for hf in range(2):
        R8 = range(4*hf, 4*hf+4)
        for x in range(1, 4):
            for e in R8: I(f'v_pk_add_f32 {V(ACC+2*e,2)}, {V(ACC+2*e,2)}, {V(ACC+16*x+2*e,2)}')
        def ytr():
            I(f'ds_write_b128 v{yw}, {V(YR,4)}'); I(f'ds_write_b128 v{yw}, {V(YR+4,4)} offset:1024')
            for q in range(4): I(f'ds_read_b64_tr_b16 {V(YR+2*q,2)}, v{yr} offset:{256*q}')
        if hf == E_('YW', '1'): ytr()
        for e in R8: I(f'v_pk_mul_f32 {V(t+2*e,2)}, {V(ACC+2*e,2)}, s[{sK}:{sK+1}] op_sel_hi:[1,0]')
        for e in range(8*hf, 8*hf+8): I(f'v_exp_f32 v{t+e}, v{t+e}')
        if hf + 1 == E_('YW', '1') == 2: ytr()
        for e in R8: I(f'v_pk_add_f32 {V(t+2*e,2)}, {V(t+2*e,2)}, 1.0 op_sel_hi:[1,0]')
        for e in range(8*hf, 8*hf+8): I(f'v_rcp_f32 v{t+e}, v{t+e}')
        for e in R8: I(f'v_pk_mul_f32 {V(t+2*e,2)}, {V(t+2*e,2)}, {V(ACC+2*e,2)}')
    for hf in range(2):
        R8 = range(4*hf, 4*hf+4)
        for e in R8: unpack(ty+2*e, ty+2*e+1, YR+e)
        for e in R8: I(f'v_pk_add_f32 {V(XN+2*e,2)}, {V(XN+2*e,2)}, {V(ty+2*e,2)}')
        for e in R8: I(f'v_pk_fma_f32 {V(XN+2*e,2)}, {V(XN+2*e,2)}, {V(t+2*e,2)}, {V(XF32+2*e,2)}')
        for e in R8: I(f'v_cvt_pk_bf16_f32 v{YR+e}, v{XN+2*e}, v{XN+2*e+1}')
        I(f'buffer_store_dwordx4 {V(YR+4*hf,4)}, v{vX}, s[{SOUT}:{SOUT+3}], s{sXO} offen offset:{16*hf} {OSC}')
    stamp()
    fin()
    return a

def build(stop=99, stamps=False):
    a = gen(stop, stamps)
    ref = open(f'cdna_kernels/{NAME}.s.ref').read()
    head = ref[:ref.index('; @launch')]
    txt = head + f'; @launch grid=(224,1,1) block=(256,1,1) lds={LEND}\n'
    txt += f'.amdgcn_target "amdgcn-amd-amdhsa--gfx950"\n.text\n.globl {NAME}_kernel\n.p2align 8\n.type {NAME}_kernel,@function\n{NAME}_kernel:\n'
    pre = txt
    tail = 'END:\n    s_endpgm\nEND0:\n    s_waitcnt lgkmcnt(0)\n    s_endpgm\n'
    sz = sizes(pre + a.text() + tail)
    if ALIGN:
        a.out, tot, np_, nn = align(a.out, sz); print('align: residual', tot, 'promoted', np_, 'nops', nn, 'bytes', sum(sz))
    txt += a.text() + tail
    txt += f'''.section .rodata,"a"
.p2align 6
.amdhsa_kernel {NAME}_kernel
  .amdhsa_next_free_vgpr 512
  .amdhsa_next_free_sgpr 102
  .amdhsa_accum_offset 256
  .amdhsa_group_segment_fixed_size 0
  .amdhsa_kernarg_size 136
  .amdhsa_user_sgpr_count 2
  .amdhsa_user_sgpr_kernarg_segment_ptr 1
  .amdhsa_system_sgpr_workgroup_id_x 1
.end_amdhsa_kernel
'''
    return txt, a
if __name__ == '__main__':
    stop = int(sys.argv[2]) if len(sys.argv) > 2 else 99
    stamps = int(sys.argv[3]) if len(sys.argv) > 3 else 0
    txt, a = build(stop, stamps)
    open(sys.argv[1], 'w').write(txt)
    print('instrs', a.n, 'nops', a.nops)
```

```python
import sys, struct, math, os
from collections import defaultdict
sys.path.insert(0, 'work')
from asmlib import *
NAME = 'recurrent_scan__ssm_conv_s4__mixer_channel_mlp__prompt'
def f2u(x): return '0x%08x' % struct.unpack('<I', struct.pack('<f', x))[0]
E_ = lambda k, d: int(os.environ.get(k, d))
LA, LB, LRING, LEND = 0, 69888, 79104, 161024
WR = 17408; LXS = 14592
UCH = 16656; LEXT = 33312
Y2S = 912; NSLOT = 10; NEXT = E_('NEXT', '4')
XNT, YT, HB, FL, STAMP = 0, 0x200000, 0x400000, 0xB00000, 0xC00000
XF, HF, YF = FL, FL + 0x20000, FL + 0x40000
SX, SW1, SW2, SWS, SOUT, SU, SDBG = 40, 44, 48, 52, 56, 60, 64
sJ, sR, sW, sNON, sRING, sT0, sT1, sT2 = 68, 69, 70, 71, 72, 73, 74, 75
sW2 = 76; sH = 83; sK = 90; sXO = 92; sLD = 93; sP = 94; sC = 95; sHI = 3; sST = 96
sXF, sXT, sPF2, sHF0, sY, sKB, sYF, sUB, sEXT, sDM, sRK, sDL, sY8 = 4, 5, 6, 7, 8, 9, 10, 11, 12, 13, 14, 15, 89
vD1, vD2, vA0, vA1, vB0, vB1, vPAR, vL16 = 1, 2, 3, 4, 5, 6, 7, 13
xa, xb, p1, p2, vb1, wy, wx, wxn, wst, wstn, xr, xs = 14, 15, 16, 18, 20, 21, 22, 23, 24, 25, 26, 27
xk, xp, k1, k2, kz, bm = 28, 29, 35, 36, 37, 34
tw, twA, twB, tr, dt = 35, 36, 37, 38, 39
vG2, vTR = 60, 61
HOWN = 224
ALIGN = E_('ALIGN', '1'); LVL = E_('LVL', '1')
WS = f's[{SWS}:{SWS+3}]'

def gen(stop=99, stamps=False):
    a = Asm(); I = a
    nst = [0]; late_ = [0]
    def stamp(lvl=1, pre=None, nm=None):
        if nm in os.environ.get('ST', '').split(','): lvl = 1
        if not stamps or lvl > LVL: return
        if LVL == 4 and lvl == 3 and late_[0]: return
        inf = a.infill; a.infill = True
        if pre is None: I(f's_memtime s[{sST}:{sST+1}]'); a.waitcnt(lg=0)
        else: I(f's_mov_b32 s{sST}, s{pre}')
        I(f'v_mov_b32 v63, s{sST}'); I(f's_lshl_b32 s{sST+2}, s2, 2'); I(f's_add_u32 s{sST+2}, s{sST+2}, s{sW}')
        I(f's_lshl_b32 s{sST+2}, s{sST+2}, 7'); I(f's_add_u32 s{sST+2}, s{sST+2}, {STAMP + 4*nst[0]}')
        I('s_mov_b64 exec, 1'); I(f'buffer_store_dword v63, off, {WS}, s{sST+2}'); I('s_mov_b64 exec, -1')
        nst[0] += 1; a.infill = inf; assert nst[0] <= 30
    def srd(d, b, n):
        I(f's_mov_b32 s{d}, s{b}'); I(f's_mov_b32 s{d+1}, s{b+1}'); I(f's_mov_b32 s{d+2}, {n}'); I(f's_mov_b32 s{d+3}, 0x00020000')
    def fin():
        if stamps:
            I('v_mov_b32 v62, s22'); I('s_memrealtime s[96:97]'); I('v_mov_b32 v63, s96'); I(f's_lshl_b32 s98, s2, 2'); I(f's_add_u32 s98, s98, s{sW}')
            I('s_lshl_b32 s98, s98, 7'); I(f's_add_u32 s98, s98, {STAMP + 120}'); I(f'buffer_store_dwordx2 v[62:63], off, {WS}, s98')
            a.label('PCL'); I('s_getpc_b64 s[96:97]'); I('s_sub_u32 s96, s96, PCL+4-%s_kernel' % NAME); I('s_subb_u32 s97, s97, 0')
            I('v_mov_b32 v62, s96'); I('v_mov_b32 v63, s97'); I('s_mov_b32 s96, 0xCF0000')
            I(f'buffer_store_dwordx2 v[62:63], off, {WS}, s96')
        a.waitcnt(vm=0, lg=0); a._emit('s_endpgm')
    lab = [0]
    def poll(reload, cmp, more=()):
        lab[0] += 1; n = f'P{lab[0]}'; inf = a.infill; a.infill = True
        cmp(); a.settle(); a._emit(f's_cbranch_scc0 {n}_ok'); st = a.snap()
        for c_ in more: c_(); a.settle(); a._emit(f's_cbranch_scc0 {n}_ok')
        I(f's_mov_b32 s{sST+3}, 0x40000'); a.label(f'{n}_lp')
        reload(); a._emit('s_waitcnt vmcnt(0)'); a.vm = []
        I(f's_sub_u32 s{sST+3}, s{sST+3}, 1'); a._emit(f's_cbranch_scc1 {n}_ok')
        cmp(); a.settle(); a._emit(f's_cbranch_scc1 {n}_lp')
        a.label(f'{n}_ok'); a.restore(st); a.infill = inf
    def cmp_flag(vf):
        def f(): I(f'v_cmp_ne_u32 vcc, s{sNON}, v{vf}'); I('s_and_b64 vcc, vcc, exec')
        return f
    def flag_store(soff, off=0):
        I(f'v_mov_b32 v62, s{sNON}'); I('s_mov_b64 exec, 1')
        I(f'buffer_store_dword v62, off, {WS}, s{soff} offset:{off} sc1'); I('s_mov_b64 exec, -1')
    def unpack(dlo, dhi, src):
        I(f'v_lshlrev_b32 v{dlo}, 16, v{src}'); I(f'v_and_b32 v{dhi}, s{sHI}, v{src}')
    def rne2(x, y, t):
        I(f'v_cvt_pk_bf16_f32 v{t}, v{x}, v{y}'); unpack(x, y, t)
    def bar(*toks):
        a.wait(*toks); a._emit('s_barrier')
    seq = lambda l: (lambda: [I(x) for x in l] and None)
    def chunks(l, n=4): return [seq(l[i:i+n]) for i in range(0, len(l), n)]

    I('s_load_dwordx16 s[4:19], s[0:1], 0'); I('s_load_dwordx16 s[20:35], s[0:1], 64'); I('s_load_dwordx2 s[36:37], s[0:1], 128')
    I('s_cmp_ge_u32 s2, 224'); a._emit('s_cbranch_scc1 END0')
    I('s_getpc_b64 s[98:99]'); a.label('PC0')
    I(f's_lshl_b32 s{sT0}, s2, 11'); I(f's_and_b32 s{sT0}, s{sT0}, 0x4000'); I(f'v_lshl_add_u32 v1, v0, 6, s{sT0}'); I('v_min_u32 v1, END-PC0, v1')
    I('v_mov_b32 v3, s99'); I('v_add_co_u32 v2, vcc, s98, v1'); I('v_addc_co_u32 v3, vcc, 0, v3, vcc')
    a.pf('global_load_dword a255, v[2:3], off')
    if stamps: I('s_memtime s[100:101]'); I('s_memrealtime s[96:97]')
    rho, c8, hb, q0_, q1_, q2_ = 54, 55, 56, 57, 58, 59
    I(f's_lshl_b32 s{sT0}, s2, 10'); I(f'v_lshl_add_u32 v{q0_}, v0, 2, s{sT0}')
    I('v_lshrrev_b32 v1, 6, v0'); I('v_and_b32 v0, 63, v0'); I(f'v_readfirstlane_b32 s{sW}, v1')
    MAP = E_('MAP', '0')
    if MAP:
        I(f's_lshr_b32 s{sT1}, s2, 3'); I(f's_mul_i32 s{sK}, s{sT1}, 37'); I(f's_lshr_b32 s{sK}, s{sK}, 8'); I(f's_mul_i32 s{sT0}, s{sK}, 7')
        I(f's_sub_u32 s{sJ}, s{sT1}, s{sT0}'); I(f's_and_b32 s{sT1}, s2, 7'); I(f's_lshl_b32 s{sT1}, s{sT1}, 2'); I(f's_add_u32 s{sR}, s{sK}, s{sT1}')
    else:
        I(f's_and_b32 s{sT0}, s2, 1'); I(f's_mul_i32 s{sT0}, s{sT0}, 28'); I(f's_lshr_b32 s{sT1}, s2, 3'); I(f's_add_u32 s{sT0}, s{sT0}, s{sT1}')
        I(f's_lshr_b32 s{sJ}, s{sT0}, 3'); I(f's_and_b32 s{sK}, s{sT0}, 7'); I(f's_and_b32 s{sT1}, s2, 6'); I(f's_lshl_b32 s{sT1}, s{sT1}, 2')
        I(f's_add_u32 s{sR}, s{sK}, s{sT1}')
    I(f'v_lshrrev_b32 v{rho}, 3, v0'); I(f'v_and_b32 v{c8}, 7, v0')
    I(f'v_mul_u32_u24 v{xa}, 896, v{rho}'); I(f'v_lshl_add_u32 v{xa}, v{c8}, 4, v{xa}')
    I(f's_lshl_b32 s{sT0}, s{sR}, 2'); I(f's_add_u32 s{sT0}, s{sT0}, s{sW}'); I(f's_mul_i32 s{sT0}, s{sT0}, {16*896}')
    I(f'v_add_u32 v{xa}, s{sT0}, v{xa}'); I(f'v_add_u32 v{xb}, 7168, v{xa}')
    sXC = 76
    I(f's_lshl_b32 s{sXC}, s{sJ}, 7')
    for i in range(1, 7):
        I(f's_add_u32 s{sXC+i}, s{sXC+i-1}, 384'); I(f's_cmp_ge_u32 s{sXC+i}, 896'); I(f's_cselect_b32 s{sT1}, 896, 0'); I(f's_sub_u32 s{sXC+i}, s{sXC+i}, s{sT1}')
    I(f'v_mul_u32_u24 v{vD1}, 3584, v{rho}'); I(f'v_lshl_add_u32 v{p1}, v{c8}, 6, v{vD1}')
    assert not MAP
    PFO = E_('PFO', '0')
    if PFO:
        I(f's_lshl_b32 s{sT2}, s{sK}, 2'); I(f's_add_u32 s{sT2}, s{sT2}, s{sW}'); I(f's_mul_i32 s{sT0}, s{sT2}, {14*3584}')
        I(f's_lshl_b32 s{sT1}, s{sJ}, 9'); I(f's_add_u32 s{sT0}, s{sT0}, s{sT1}'); I(f'v_add_u32 v{p1}, s{sT0}, v{p1}')
        I(f's_cmp_ge_u32 s{sK}, 4'); I(f's_cselect_b32 s{sT0}, {(-224*3584) & 0xffffffff}, 0'); I(f's_cselect_b32 s{sT1}, 0, {224*3584}')
        I(f's_add_u32 s{sT0}, s{sT0}, s{sT1}'); I(f'v_add_u32 v{p1+1}, s{sT0}, v{p1}'); I(f's_mov_b32 s{sY8}, {8*3584}')
    else:
        sQ, sJS = 38, 39
        I(f's_lshr_b32 s{sT1}, s2, 3'); I(f's_mul_i32 s{sJS}, s{sT1}, 37'); I(f's_lshr_b32 s{sJS}, s{sJS}, 8'); I(f's_mul_i32 s{sT0}, s{sJS}, 7')
        I(f's_sub_u32 s{sT1}, s{sT1}, s{sT0}'); I(f's_lshl_b32 s{sT1}, s{sT1}, 2'); I(f's_add_u32 s{sQ}, s{sT1}, s{sW}')
        I(f's_and_b32 s{sT0}, s2, 1'); I(f's_mul_i32 s{sT0}, s{sT0}, 3'); I(f's_add_u32 s{sJS}, s{sJS}, s{sT0}')
        I(f's_mul_i32 s{sT0}, s{sQ}, {8*3584}'); I(f's_lshl_b32 s{sT1}, s{sJS}, 9'); I(f's_add_u32 s{sT0}, s{sT0}, s{sT1}'); I(f'v_add_u32 v{p1}, s{sT0}, v{p1}')
        I(f's_mul_i32 s{sT0}, s{sQ}, {32*896}'); I(f's_lshl_b32 s{sT1}, s{sJS}, 7'); I(f's_add_u32 s{sT2}, s{sT0}, s{sT1}'); I(f's_mov_b32 s{sY8}, {224*3584}')
    I(f's_mov_b32 s{SW1+2}, {448*3584}'); I(f's_mov_b32 s{SW1+3}, 0x00020000')
    I(f's_mov_b32 s{SX+2}, {2048*896}'); I(f's_mov_b32 s{SX+3}, 0x00020000'); I(f's_lshl_b32 s{sT1}, s2, 2')
    for i in range(6): I(f'global_load_dword v{vPAR+i}, v{q0_}, s[{6+2*i}:{7+2*i}]')
    I(f's_load_dword s{sLD}, s[18:19], s{sT1}')
    I(f's_mov_b32 s{SX}, s4'); I(f's_mov_b32 s{SX+1}, s5'); I(f's_mov_b32 s{SW1}, s24'); I(f's_mov_b32 s{SW1+1}, s25')
    X0, X1 = 192, 220
    if PFO:
        def wpf(p, S_, so, nm):
            def g():
                I(f's_cmp_lg_u32 s{sJ}, 3'); a._emit(f's_cbranch_scc1 {nm}')
                a._emit(f'buffer_load_dword a255, v{p+1}, s[{S_}:{S_+3}], 0 offen'); a._emit(f'buffer_load_dword a255, v{p+1}, s[{S_}:{S_+3}], s{so} offen')
                a.label(nm)
            return [lambda: a.pf(f'buffer_load_dword a255, v{p}, s[{S_}:{S_+3}], 0 offen'), lambda: a.pf(f'buffer_load_dword a255, v{p}, s[{S_}:{S_+3}], s{so} offen'), g]
    else:
        def wpf(p, S_, so, nm): return [(lambda o=o: a.pf(f'buffer_load_dword a255, v{p}, s[{S_}:{S_+3}], {o} offen')) for o in ('0', f's{so}')]
    B1R = 176; CB = 144
    src = {'x': [seq([f'buffer_load_dwordx4 {V(X+4*i,4)}, v{v_}, s[{SX}:{SX+3}], s{sXC+i} offen']) for i in range(7) for X, v_ in ((X0, xa), (X1, xb))],
           'f': wpf(p1, SW1, sY8, 'NOPF1'), 'h': wpf(p2, SW2, sPF2, 'NOPF2'),
           'r': [(lambda k=k, hh=hh: dma1(k, hh)) for k in range(NSLOT) for hh in range(2)],
           'b': [seq([f'global_load_dwordx4 {V(B1R+8*fb+4*q,4)}, v{vb1}, s[26:27] offset:{64*fb+16*q}']) for fb in range(2) for q in range(2)]}
    NW = E_('NW', '9'); WB = 192 - 8*NW; WS0 = 56 - NW
    def wld(st_, hh):
        def f():
            n, sg = divmod(st_ - 28, 4)
            I(f's_add_u32 s{sDM}, s{sW2+n if WL else 12+n}, {(32*(sg>>1) + 8*(sg&1) + 16*hh)*896}')
            I(f'buffer_load_dwordx4 {A(WB+8*(st_-WS0)+4*hh,4)}, v{vD2}, s[{SW2}:{SW2+3}], s{sDM} offen')
        return f
    WL = E_('WL', '1')
    src['w'] = [] if WL else [wld(st_, hh) for st_ in list(range(max(48, WS0), 56)) + list(range(WS0, 48)) for hh in range(2)]
    src['r'] = src['r'][:18]; vNON = 57
    ldNON = lambda: I(f'buffer_load_dword v{vNON}, off, s[{SDBG}:{SDBG+3}], 0 sc1')
    src['n'] = [ldNON]
    sched = {}
    for it in os.environ.get('KS', ('p:x6f,0:f,1:x,2:fx,3:x,4:x,5:x,6:x,7:x,a2:x,a6:h,9:h2,12:b4,15:n,' if PFO else 'p:x6f,0:f,1:x,2:x,3:x,4:x,5:x,6:x,7:x,a2:x,a6:h,10:h,12:b4,15:n,') + ','.join([f'{i}:r' for i in (11,13,14)]+[f'c{i}:r' for i in range(9)]+[f'{17+i}:r' for i in (0,1,3,5,7,8)]) + ''.join(f',{40-len(src["w"])+i}:w' if len(src['w']) - i <= 14 else f',m{i}:w' for i in range(len(src['w'])))).split(','):
        k_, v_ = it.split(':'); sched[k_] = sched.get(k_, []) + [src[c].pop(0) for c, n in re.findall(r'([a-z])(\d*)', v_) for _ in range(int(n or 1))]
    assert not any(src.values()), src
    hk = [0]
    def hook(nm=None):
        for f in sched.pop(nm or str(hk[0]), []): f()
        if not nm: hk[0] += 1
    sched.pop('z', None)
    for f in sched.pop('p', []): f()
    I('s_memrealtime s[38:39]')
    if stamps:
        I('s_mov_b32 s22, s96')
        if LVL >= 3: I('s_memtime s[96:97]'); I('s_mov_b32 s23, s96')
    I(f's_mov_b32 s{sHI}, 0xffff0000')
    I(f's_and_b32 s{sP}, s{sW}, 1'); I(f's_lshr_b32 s{sC}, s{sW}, 1'); I(f'v_lshlrev_b32 v{vL16}, 4, v0'); I(f'v_lshrrev_b32 v{hb}, 5, v0')
    I(f's_lshl_b32 s{sRK}, s{sJ}, 7'); srd(SWS, 36, 0x1000000); srd(SDBG, 34, 256); srd(SW2, 28, 1792*896)
    I(f's_or_b32 s{sNON}, s2, s{sW}'); I(f's_cmp_lg_u32 s{sNON}, 0'); a.settle(); a._emit('s_cbranch_scc1 NONCE')
    st = a.snap(); I('s_or_b32 s38, s38, 1'); I('v_mov_b32 v62, s38'); I('s_mov_b64 exec, 1')
    I(f'buffer_store_dword v62, off, s[{SDBG}:{SDBG+3}], 0 sc1'); I('s_mov_b64 exec, -1'); a.settle()
    a.label('NONCE'); a.restore(st)
    I(f'v_lshrrev_b32 v{p2}, 1, v0'); I(f'v_mul_u32_u24 v{p2}, 896, v{p2}'); I(f'v_and_b32 v{q0_}, 1, v0'); I(f'v_lshl_add_u32 v{p2}, v{q0_}, 6, v{p2}')
    if PFO:
        I(f's_mul_i32 s{sT0}, s{sT2}, {56*896}'); I(f's_add_u32 s{sT0}, s{sT0}, s{sRK}'); I(f'v_add_u32 v{p2}, s{sT0}, v{p2}')
        I(f's_cmp_ge_u32 s{sK}, 4'); I(f's_cselect_b32 s{sT0}, {(-896*896) & 0xffffffff}, 0'); I(f's_cselect_b32 s{sT1}, 0, {896*896}'); I(f's_add_u32 s{sT0}, s{sT0}, s{sT1}')
        I(f'v_add_u32 v{p2+1}, s{sT0}, v{p2}'); I(f's_mov_b32 s{sPF2}, {32*896}')
    else:
        I(f'v_add_u32 v{p2}, s{sT2}, v{p2}'); I(f's_mov_b32 s{sPF2}, {896*896}')
    I(f'v_lshrrev_b32 v{q0_}, 2, v0'); I(f'v_and_b32 v{q0_}, 4, v{q0_}'); I(f'v_xor_b32 v{q0_}, v{q0_}, v{c8}'); I(f'v_lshlrev_b32 v{q0_}, 4, v{q0_}')
    I(f'v_mul_u32_u24 v{vD2}, 896, v{rho}'); I(f'v_add_u32 v{vD2}, v{vD2}, v{q0_}')
    I(f's_lshl_b32 s{sT2}, s{sJ}, 2'); I(f's_add_u32 s{sT2}, s{sT2}, s{sW}'); I(f's_lshl_b32 s{sT0}, s{sT2}, 7')
    I(f'v_add3_u32 v{vD1}, s{sT0}, v{vD1}, v{q0_}')
    I(f'v_lshl_add_u32 v{vb1}, v{hb}, 5, s{sT0}')
    I(f's_mul_i32 s{sT0}, s{sW}, {64*896}'); I(f's_add_u32 s{sT0}, s{sT0}, s{sRK}')
    for n in ((4, 5, 6) if not WL else ()):
        I(f's_add_u32 s{sT1}, s{sJ}, {n}'); I(f's_cmp_ge_u32 s{sT1}, 7'); I(f's_cselect_b32 s{12+n}, 7, 0'); I(f's_sub_u32 s{sT1}, s{sT1}, s{12+n}')
        I(f's_mul_i32 s{sT1}, s{sT1}, {256*896}'); I(f's_add_u32 s{12+n}, s{sT1}, s{sT0}')
    I(f's_mul_i32 s{sRING}, s{sW}, {NSLOT*2048}'); I(f's_add_u32 s{sRING}, s{sRING}, {LRING}')
    I(f's_lshl_b32 s{sXF}, s{sJ}, 5'); I(f's_add_u32 s{sXF}, s{sXF}, s{sR}'); I(f's_lshl_b32 s{sXF}, s{sXF}, 4'); I(f's_add_u32 s{sXF}, s{sXF}, {XF}')
    I(f's_lshl_b32 s{sXT}, s{sJ}, 18'); I(f's_lshl_b32 s{sT0}, s{sR}, 7'); I(f's_add_u32 s{sXT}, s{sXT}, s{sT0}'); I(f's_lshl_b32 s{sT0}, s{sW}, 5'); I(f's_add_u32 s{sXT}, s{sXT}, s{sT0}')
    dtok = {}
    def slot(step):
        cyc = [0, 1, 9, 2, 3, 4, 5, 6, 7, 8]
        if step < 28: return 0, (step if step < 9 else cyc[(step - 9) % 10]) * 2048
        q = (step - 28) % (NSLOT + NEXT)
        return (0, cyc[(28 + q - 9) % 10] * 2048) if q < NSLOT else (1, (q - NSLOT) * 2048)
    def dma1(step, hh):
        ex_, so = slot(step)
        I(f's_add_u32 m0, s{sEXT if ex_ else sRING}, {so + hh*1024}')
        if step < 28:
            I(f's_mov_b32 s{sDM}, {(16*step + 8*hh)*3584}')
            dtok[step if hh else -1] = I(f'buffer_load_dwordx4 v{vD1}, s[{SW1}:{SW1+3}], s{sDM} offen lds')
        else:
            n, sg = divmod(step - 28, 4)
            I(f's_add_u32 s{sDM}, s{sW2+n}, {(32*(sg>>1) + 8*(sg&1) + 16*hh)*896}')
            dtok[step if hh else -1] = I(f'buffer_load_dwordx4 v{vD2}, s[{SW2}:{SW2+3}], s{sDM} offen lds')
    g, r4, c4 = q0_, q1_, q2_
    I(f'v_bfe_u32 v{g}, v0, 4, 1'); I(f'v_bfe_u32 v{r4}, v0, 2, 2'); I(f'v_and_b32 v{c4}, 3, v0')
    I(f'v_lshlrev_b32 v{vTR}, 5, v{g}'); I(f'v_lshl_add_u32 v{vTR}, v{c4}, 3, v{vTR}')
    u, w_ = 40, 41
    I(f'v_and_b32 v{u}, 1, v0'); I(f'v_lshlrev_b32 v{u}, 5, v{u}'); I(f'v_lshl_or_b32 v{u}, v{g}, 4, v{u}'); I(f'v_bfe_u32 v{w_}, v0, 1, 1'); I(f'v_lshl_or_b32 v{u}, v{w_}, 3, v{u}')
    I(f'v_bfe_u32 v{w_}, v0, 3, 1'); I(f'v_lshl_or_b32 v{u}, v{w_}, 6, v{u}')
    I(f'v_lshl_add_u32 v{u}, v{r4}, 7, v{u}'); I(f'v_add_u32 v{u}, s{sRING}, v{u}')
    I(f'v_lshl_add_u32 v{vA0}, v{hb}, 10, v{u}'); I(f'v_xor_b32 v{vA1}, 64, v{vA0}')
    I(f's_lshl_b32 s{sT0}, s{sP}, 6'); I(f'v_xor_b32 v{vG2}, s{sT0}, v{vA0}')
    I(f'v_and_b32 v{u}, 15, v0'); I(f'v_mul_u32_u24 v{vB0}, {Y2S}, v{u}'); I(f'v_mul_u32_u24 v{wst}, 144, v{u}'); I(f'v_mul_u32_u24 v{w_}, {WR}, v{g}')
    I(f'v_add_u32 v{vB0}, v{vB0}, v{w_}'); I(f'v_lshl_add_u32 v{vB0}, v{hb}, 4, v{vB0}')
    I(f's_mul_i32 s{sT0}, s{sC}, {2*WR}'); I(f's_sub_u32 s{sT1}, {2*WR}, s{sT0}'); I(f'v_add_u32 v{vB1}, s{sT1}, v{vB0}'); I(f'v_add_u32 v{vB0}, s{sT0}, v{vB0}')
    I(f'v_lshl_add_u32 v{wst}, v{hb}, 5, v{wst}'); I(f's_lshl_b32 s{sT1}, s{sP}, 6'); I(f's_add_u32 s{sT0}, s{sT0}, s{sT1}'); I(f's_add_u32 s{sT0}, s{sT0}, {LXS}')
    I(f'v_mul_u32_u24 v{wstn}, {16*144}, v{g}'); I(f'v_add_u32 v{wstn}, v{wstn}, v{wst}'); I(f'v_add3_u32 v{wst}, v{wst}, v{w_}, s{sT0}')
    I(f's_mul_i32 s{sT0}, s{sC}, {32*144}'); I(f's_add_u32 s{sT0}, s{sT0}, s{sT1}'); I(f's_add_u32 s{sT0}, s{sT0}, {LB}'); I(f'v_add_u32 v{wstn}, s{sT0}, v{wstn}')
    I(f's_mul_i32 s{sT2}, s{sW}, {WR}')
    I(f'v_mul_u32_u24 v{wy}, {Y2S}, v{rho}'); I(f'v_lshl_add_u32 v{wy}, v{c8}, 4, v{wy}'); I(f'v_add_u32 v{wy}, s{sT2}, v{wy}')
    I(f'v_mul_u32_u24 v{wx}, 144, v{rho}'); I(f'v_lshl_add_u32 v{wx}, v{c8}, 4, v{wx}')
    I(f's_mul_i32 s{sT0}, s{sW}, {16*144}'); I(f's_add_u32 s{sT0}, s{sT0}, {LB}'); I(f'v_add_u32 v{wxn}, s{sT0}, v{wx}')
    I(f's_add_u32 s{sT0}, s{sT2}, {LXS}'); I(f'v_add_u32 v{wx}, s{sT0}, v{wx}')
    I(f's_add_u32 s{sT0}, s{sRING}, {9*2048}'); I(f'v_add_u32 v{xk}, s{sT0}, v{vL16}'); I(f's_xor_b32 s{sT1}, s{sW}, 1'); I(f's_mul_i32 s{sT1}, s{sT1}, {NSLOT*2048}')
    I(f's_add_u32 s{sT1}, s{sT1}, {LRING + 9*2048}'); I(f'v_add_u32 v{xp}, s{sT1}, v{vL16}')
    I(f'v_lshl_add_u32 v{xr}, v{g}, 3, v{r4}'); I(f'v_mul_u32_u24 v{xr}, 144, v{xr}'); I(f'v_lshl_add_u32 v{xr}, v{c4}, 3, v{xr}'); I(f'v_lshl_add_u32 v{xr}, v{hb}, 5, v{xr}')
    I(f's_mul_i32 s{sT0}, s{sW}, {16*144}'); I(f's_add_u32 s{sT0}, s{sT0}, {LB}'); I(f'v_add_u32 v{xr}, s{sT0}, v{xr}')
    I(f'v_lshl_add_u32 v{xs}, v{hb}, 4, v{u}'); I(f'v_lshlrev_b32 v{xs}, 12, v{xs}'); I(f'v_lshl_add_u32 v{xs}, v{g}, 4, v{xs}')
    I(f'v_mul_u32_u24 v{tw}, 272, v0'); I(f'v_add_u32 v{tw}, s{sT2}, v{tw}')
    I(f's_lshl_b32 s{sT0}, s{sP}, 5'); I(f'v_add_u32 v{twA}, s{sT0}, v{tw}'); I(f'v_subrev_u32 v{twB}, s{sT0}, v{tw}')
    I(f'v_bfe_u32 v{w_}, v0, 3, 1'); I(f'v_lshl_add_u32 v{w_}, v{hb}, 2, v{w_}'); I(f'v_mul_u32_u24 v{w_}, {8*272}, v{w_}')
    I(f'v_bfe_u32 v{tr}, v0, 2, 1'); I(f'v_lshl_add_u32 v{tr}, v{tr}, 6, v{vTR}'); I(f'v_add3_u32 v{tr}, v{tr}, v{w_}, s{sT2}')
    I(f's_lshl_b32 s{sT1}, s{sC}, 4'); I(f's_lshr_b32 s{sT1}, s{sLD}, s{sT1}'); I(f's_lshl_b32 s{sT1}, s{sT1}, 16')
    I(f'v_mov_b32 v{dt}, {f2u(math.log2(math.e))}'); I(f'v_mul_f32 v{dt}, s{sT1}, v{dt}'); I(f'v_exp_f32 v{dt}, v{dt}')
    I(f'v_cvt_pk_bf16_f32 v{dt}, v{dt}, v{dt}'); I(f'v_lshlrev_b32 v{dt}, 16, v{dt}')
    stamp(1, 100); stamp(3, 23); stamp(3, nm='ad')

    def cmuls(lst):
        for d, p, q in lst: I(f'v_pk_mul_f32 {V(d,2)}, {V(p,2)}, {V(q,2)} op_sel:[0,0] op_sel_hi:[0,1]')
        for d, p, q in lst: I(f'v_pk_fma_f32 {V(d,2)}, {V(p,2)}, {V(q,2)}, {V(d,2)} op_sel:[1,1,0] op_sel_hi:[1,0,1] neg_lo:[1,0,0]')
    G = lambda b: 64 + 2*b
    Sx = lambda i: 128 + 2*i
    HH = {i: Sx(i) for i in range(9)}
    for n, o in enumerate((256, 258, 260, 262, 264)): HH[o] = 146 + 2*n
    for n, o in enumerate((512, 516, 520, 768, 772, 776)): HH[o] = G(1 + n)
    for n, o in enumerate((1024, 1032, 1280, 1288, 1536, 1544, 1792, 1800)): HH[o] = G(8 + n)
    g1, g256, g2 = 40, 42, 44; er, ph = 46, 47; P = 48; PK = 156; KD = 208
    h0 = [0,1,2,3,4,5,6,7, 512,516,520, 1024,1032,1280,1288, None]
    h1 = [256,256,258,260,260,260,262,264, 768,772,776, 1536,1544,1792,1800, None]
    pkn = [0]; kq = []
    def kread(bt, s_):
        for o, x in ((0, 0), (2, 16*272), (4, 128), (6, 16*272+128)): I(f'ds_read_b64_tr_b16 {A(64*bt+8*s_+o,2)}, v{tr} offset:{x + 272*s_}')
    kmf = lambda bt, s_: (lambda: I(f'v_mfma_f32_32x32x16_bf16 {A(KD,16)}, {A(64*bt+8*s_,4)}, {A(64*bt+8*s_+4,4)}, {0 if (bt == 0 and s_ == 0) else A(KD,16)}'))
    def wr8(srcs, ad, off, neg):
        n_ = pkn[0]; p = PK + 8*(n_ & 1); pkn[0] += 1
        for comp in range(2):
            n = '-' if (neg and comp) else ''
            for e in range(4):
                x, y = srcs[2*e], srcs[2*e+1]
                if y is None: y = x
                I(f'v_cvt_pk_bf16_f32 v{p+4*comp+e}, {n}v{x+comp}, {n}v{y+comp}')
        for comp in range(2): I(f'ds_write_b128 v{ad}, {V(p+4*comp,4)} offset:{off + 64*comp}')
        hook()
    def preamble(bt):
        l = [f'v_lshlrev_b32 v{P+i}, 16, v{vPAR+i}' if bt == 0 else f'v_and_b32 v{P+i}, s{sHI}, v{vPAR+i}' for i in range(6)]
        l += [f'v_mul_f32 v{P+i}, v{dt}, v{P+i}' for i in range(4)]
        l += [f'v_mul_f32 v{er}, {f2u(math.log2(math.e))}, v{P}', f'v_mul_f32 v{ph}, 0.15915494, v{P+1}']
        d, p, q = Sx(0), P+4, P+2
        l += [f'v_mul_f32 v{d}, v{p}, v{q}', f'v_mul_f32 v{d+1}, v{p}, v{q+1}', f'v_fma_f32 v{d}, -v{p+1}, v{q+1}, v{d}', f'v_fma_f32 v{d+1}, v{p+1}, v{q}, v{d+1}']
        T3 = ((g1, 1.0, er, ph), (G(1), 8.0, P, P+1), (g256, 256.0, P+2, P+3))
        for d, sc, m_, f_ in T3[1:]: l += [f'v_mul_f32 v{m_}, {f2u(sc)}, v{er}', f'v_mul_f32 v{f_}, {f2u(sc)}, v{ph}']
        for d, sc, m_, f_ in T3: l += [f'v_fract_f32 v{f_}, v{f_}', f'v_exp_f32 v{m_}, v{m_}']
        for d, sc, m_, f_ in T3: l += [f'v_cos_f32 v{d}, v{f_}', f'v_sin_f32 v{d+1}, v{f_}']
        for d, sc, m_, f_ in T3: l += [f'v_mul_f32 v{d}, v{d}, v{m_}', f'v_mul_f32 v{d+1}, v{d+1}, v{m_}']
        return l
    for bt in range(2):
        l = preamble(bt)
        if bt == 0:
            [I(l.pop(0)) for _ in range(6)]; stamp(3, nm='pw'); hook('q')
        else:
            kread(0, 0); kread(0, 1)
            for _ in range(E_('PA0', '12')): I(l.pop(0))
            for s_ in range(8):
                kmf(0, s_)()
                if s_ < 6: kread(0, s_ + 2)
                hook(f'a{s_}')
                for _ in range(E_('PA1', '3') + 2*(s_ >= 6)):
                    if l: I(l.pop(0))
            stamp(3, nm='ba')
        for x in l: I(x)
        if bt == 0: I(f'v_mov_b32 v{G(0)}, 1.0'); I(f'v_mov_b32 v{G(0)+1}, 0')
        cmuls([(G(2), G(1), G(1)), (g2, g1, g1), (Sx(1), Sx(0), g1), (Sx(8), Sx(0), G(1))])
        cmuls([(G(3), G(2), G(1)), (G(4), G(2), G(2)), (Sx(2), Sx(0), g2), (Sx(3), Sx(1), g2)])
        cmuls([(G(5), G(4), G(1)), (G(6), G(4), G(2)), (G(7), G(4), G(3)), (G(8), G(4), G(4)), (Sx(4), Sx(2), g2), (Sx(5), Sx(3), g2)])
        wr8([G(b) for b in range(8)], tw, 128, False)
        cmuls([(G(8+i), G(8), G(i)) for i in range(1, 9)] + [(Sx(6), Sx(4), g2), (Sx(7), Sx(5), g2)])
        wr8([G(b) for b in range(8, 16)], tw, 144, False)
        cmuls([(G(16+i), G(16), G(i)) for i in range(1, 8)] + [(HH[256+i], Sx(i), g256) for i in (0, 2, 4, 6, 8)])
        wr8([G(b) for b in range(16, 24)], tw, 160, False)
        cmuls([(G(16+i), G(16), G(i)) for i in range(8, 16)] + [(HH[512+i], HH[256+i], g256) for i in (0, 4, 8)])
        wr8([G(b) for b in range(24, 32)], tw, 176, False)
        cmuls([(HH[768+i], HH[512+i], g256) for i in (0, 4, 8)])
        wr8([HH[o] for o in h0[0:4] + h1[0:4]], twA, 0, True)
        cmuls([(HH[1024+i], HH[768+i], g256) for i in (0, 8)])
        cmuls([(HH[1280+i], HH[1024+i], g256) for i in (0, 8)])
        wr8([HH[o] for o in h0[4:8] + h1[4:8]], twA, 16, True)
        cmuls([(HH[1536+i], HH[1280+i], g256) for i in (0, 8)])
        wr8([HH.get(o) for o in h0[8:12] + h1[8:12]], twB, 32, True)
        cmuls([(HH[1792+i], HH[1536+i], g256) for i in (0, 8)])
        wr8([HH.get(o) for o in h0[12:16] + h1[12:16]], twB, 48, True)
        stamp(2, nm='k%d' % bt)
    s0, s1, q0, q1 = 64, 80, 66, 67; ON = 84; mk = 38
    KA = E_('KA', '3')
    for s_ in range(KA): kread(1, s_)
    I(f's_mov_b32 s{mk}, 0x22221111'); I(f's_mov_b32 s{mk+1}, 0x88884444'); I(f'v_mov_b32 v{ON+1}, 0x3f803f80'); I(f'v_cndmask_b32 v{ON}, 0, v{ON+1}, s[{mk}:{mk+1}]')
    for e in range(1, 4): I(f'v_mov_b32 v{ON+e}, v{ON}')
    sm = [f'v_mfma_f32_16x16x32_bf16 {V(D,4)}, {V(ON,4)}, {V(X+4*i,4)}, {0 if i == 0 else V(D,4)}' for i in range(7) for D, X in ((s0, X0), (s1, X1))]
    for x in sm[:6]: I(x)
    hook('c8'); sm = sm[6:]
    for s_ in range(8):
        kmf(1, s_)()
        if s_ + KA < 8: kread(1, s_ + KA)
        if s_ >= 6: I(f'ds_write_b128 v{wx}, {V((X0, X1)[s_-6],4)} offset:{8*144*(s_-6)}')
        hook(f'c{s_}')
        if s_ < 4:
            for _ in range(2): I(sm.pop(0))
        if s_ in (5, 6, 7):
            e = s_ - 4
            I(f's_mov_b32 s{mk}, {"0xffff0000" if e == 1 else 0}'); I(f's_mov_b32 s{mk+1}, {(0, 0, "0xffff", "0xffff0000")[e]}')
            for D in (s0, s1): I(f'v_cndmask_b32 v{D}, v{D}, v{D+e}, s[{mk}:{mk+1}]')
    assert not sm
    stamp(3, nm='bb')
    for r in (q0, q1): I(f'v_mov_b32 v{r}, 0')
    hk[0] = 17
    for i in range(7):
        for e in range(4):
            for X, q_ in ((X0, q0), (X1, q1)): I(f'v_dot2c_f32_bf16 v{q_}, v{X+4*i+e}, v{X+4*i+e}')
        hook()
    stamp(2, nm='dot')
    for m in ('quad_perm:[1,0,3,2]', 'quad_perm:[2,3,0,1]', 'row_half_mirror'):
        for r in (s0, s1, q0, q1): I(f'v_add_f32_dpp v{r}, v{r}, v{r} {m} row_mask:0xf bank_mask:0xf')
    MR0, MR1, AB0, AB1 = 68, 70, 72, 74
    t = 76
    for r in (s0, s1, q0, q1): I(f'v_mul_f32 v{r}, {f2u(1/448)}, v{r}')
    for s_, q_ in ((s0, q0), (s1, q1)): I(f'v_fma_f32 v{q_}, -v{s_}, v{s_}, v{q_}')
    for q_ in (q0, q1): I(f'v_max_f32 v{q_}, 0, v{q_}')
    def rstd(va, vb, oa, ob):
        I(f'v_cvt_pk_bf16_f32 v{t}, v{va}, v{vb}'); unpack(oa, ob, t)
        for o in (oa, ob): I(f'v_add_f32 v{o}, {f2u(1e-5)}, v{o}')
        rne2(oa, ob, t)
        for o in (oa, ob): I(f'v_sqrt_f32 v{o}, v{o}')
        rne2(oa, ob, t)
        for o in (oa, ob): I(f'v_rcp_f32 v{o}, v{o}')
    I(f'v_cvt_pk_bf16_f32 v{t}, v{s0}, v{s1}'); unpack(MR0, MR1, t)
    rstd(q0, q1, MR0+1, MR1+1)
    for s_, q_, M in ((s0, q0, MR0), (s1, q1, MR1)):
        I(f'v_sub_f32 v{s_}, v{s_}, v{M}'); I(f'v_mul_f32 v{q_}, v{q_}, v{M+1}')
    for s_, q_, M in ((s0, q0, MR0), (s1, q1, MR1)):
        I(f'v_mul_f32 v{s_}, v{s_}, v{M+1}'); I(f'v_mul_f32 v{q_}, v{q_}, v{M+1}')
    rne2(s0, s1, t)
    rstd(q0, q1, AB0+1, AB1+1)
    for s_, M, AB in ((s0, MR0, AB0), (s1, MR1, AB1)):
        I(f'v_mul_f32 v{AB}, v{M+1}, v{AB+1}'); I(f'v_mul_f32 v{s_}, v{s_}, v{AB+1}')
    for s_, M, AB in ((s0, MR0, AB0), (s1, MR1, AB1)):
        I(f'v_fma_f32 v{AB+1}, -v{M}, v{AB}, -v{s_}')
    a.flush(); stamp(4)
    for O, M, off, Z in ((X0, MR0, 0, 96), (X1, MR1, 8*144, 100)):
        for e in range(4): unpack(t+2*e, t+2*e+1, O+e)
        for e in range(4): I(f'v_pk_add_f32 {V(t+2*e,2)}, {V(t+2*e,2)}, {V(M,2)} op_sel_hi:[1,0] neg_lo:[0,1] neg_hi:[0,1]')
        for e in range(4): I(f'v_cvt_pk_bf16_f32 v{Z+e}, v{t+2*e}, v{t+2*e+1}')
        for e in range(4): unpack(t+2*e, t+2*e+1, Z+e)
        for e in range(4): I(f'v_pk_mul_f32 {V(t+2*e,2)}, {V(t+2*e,2)}, {V(M,2)} op_sel:[0,1] op_sel_hi:[1,1]')
        for e in range(4): I(f'v_cvt_pk_bf16_f32 v{Z+e}, v{t+2*e}, v{t+2*e+1}')
        I(f'ds_write_b128 v{wxn}, {V(Z,4)} offset:{off}')
        if off:
            for q in range(2):
                for z in range(2): I(f'ds_read_b64_tr_b16 {V(112+4*q+2*z,2)}, v{xr} offset:{64*q + 576*z}')
        hook()
    tk = {}; stamp(4)
    I(f's_add_u32 s{sT0}, s{sXT}, {32*4096}')
    for i in range(7):
        if i in (1, 3, 5): stamp(4)
        I(f'v_add_u32 v{104+i}, s{sXC+i}, v{wy}')
        for n, (X, AB, off) in enumerate(((X0, AB0, 0), (X1, AB1, 8*Y2S))):
            tt = t + 8*n
            for e in range(4): unpack(tt+2*e, tt+2*e+1, X+4*i+e)
            for e in range(4): I(f'v_pk_fma_f32 {V(tt+2*e,2)}, {V(tt+2*e,2)}, {V(AB,2)}, {V(AB,2)} op_sel:[0,0,1] op_sel_hi:[1,0,1]')
            for e in range(4): I(f'v_cvt_pk_bf16_f32 v{X+4*i+e}, v{tt+2*e}, v{tt+2*e+1}')
            I(f'ds_write_b128 v{104+i}, {V(X+4*i,4)} offset:{off}')
            if i == 0: tk['xn'] = I(f'buffer_store_dwordx4 {V(112+4*n,4)}, v{xs}, {WS}, s{(sXT, sT0)[n]} offen sc1')
            hook()
    for q in range(2): I(f'ds_write_b128 v{xk}, {A(KD+8+4*q,4)} offset:{1024*q}')
    assert not sched, sched
    for fb in range(2):
        for e in range(8): unpack(CB+16*fb+2*e, CB+16*fb+2*e+1, B1R+8*fb+e)
    stamp(4, nm='y2')
    def cm(): I(f'v_readfirstlane_b32 s{sNON}, v{vNON}'); I(f's_cmp_eq_u32 s{sNON}, 0')
    poll(ldNON, cm)
    stamp(3)
    a.wait(tk['xn']); a.barrier()
    stamp()
    late_[0] = 1
    ACC = 64
    def gemm(base, FA, bfrag, breads, cinit, va, extra, nstep=28, npre=0, dm=None):
        def reads(k):
            ex_, so = slot(base + k)
            r = [f'ds_read_b64_tr_b16 {A(FA(k)+o,2)}, v{v_} offset:{so+x}' for v_, o0 in ((va[ex_][0], 0), (va[ex_][1], 4)) for o, x in ((o0, 0), (o0+2, 512))]
            b = breads(k)
            return r[:2] + b[:1] + r[2:] + b[1:]
        if nstep == 0: return reads
        for k in range(npre, 2):
            a.wait(dtok[base+k])
            for x in reads(k): I(x)
        for f in extra.get((-1, 0), []): f()
        for k in range(nstep):
            nx = reads(k+2) if npre <= k + 2 < nstep else []
            nd = base + k + NSLOT - (k < 2)
            for mi, (fb, tb) in enumerate(((0, 0), (1, 0), (0, 1), (1, 1))):
                d = V(ACC + 32*tb + 16*fb, 16)
                I(f'v_mfma_f32_32x32x16_bf16 {d}, {A(FA(k)+4*fb,4)}, {bfrag(k, tb)}, {cinit(fb) if k == 0 else d}')
                if mi == 0 and nx:
                    a.wait(dtok[base+k+2])
                    for x in nx[:len(nx)//2]: I(x)
                if mi == 1:
                    for x in nx[len(nx)//2:]: I(x)
                if mi >= 2 and not base: dma1(nd, mi - 2)
                for f in extra.get((k, mi), []): f()
            if k in (3, 9, 17): stamp(3)
            if LVL < 3: stamp(9, nm=('g' if base else 'f') + str(k))
    ex = defaultdict(list)
    def place(fns, k, mi, skip=()):
        for f in fns:
            while (k, mi) in skip or (k, mi) in ex:
                mi += 1
                if mi == 4: k += 1; mi = 0
            ex[(k, mi)].append(f)
        return k, mi
    def e_xe(i):
        return seq([f'ds_read_b128 {A(192+4*i,4)}, v{(wst, wstn)[i>>1]} offset:{16*(i&1)}'])
    KE, KO, KT = 128, 136, 144
    def e_kr(): I(f'ds_read_b128 {V(KE,4)}, v{xp}'); tk['kr'] = I(f'ds_read_b128 {V(KE+4,4)}, v{xp} offset:1024')
    ex[(0, 0)].append(lambda: flag_store(sXF)); ex[(0, 1)].append(e_kr)
    ex[(2, 0)].append(lambda: (bar(tk['kr']), dma1(11, 0))); ex[(2, 1)].append(lambda: dma1(11, 1))
    for i in range(4): ex[(3 + i, 1)].append(e_xe(i))
    l = chunks([f'v_accvgpr_read_b32 v{KO+e}, a{KD+e}' for e in range(8)], 3)
    l += chunks([f'v_add_f32 v{KE+e}, v{KE+e}, v{KO+e}' for e in range(8)] + [f'v_mov_b32 v{KT+16+e}, 0' for e in range(4)]
              + [f'v_cvt_pk_bf16_f32 v{KT+e}, v{KE+7-2*e}, v{KE+6-2*e}' for e in range(4)]
              + [f'v_cvt_pk_bf16_f32 v{KT+4+e}, v{KE+x}, v{KE+y}' for e, (x, y) in enumerate(((2, 2), (1, 1), (1, 0), (0, 0)))]
              + [f'v_and_b32 v{bm}, 1, v0', f'v_add_u32 v{bm}, -1, v{bm}'], 3)
    l2 = []
    for z, v0_ in enumerate((KE+3, KE+5)):
        tt = KT + 8 + 4*z
        l2 += [f'v_bfi_b32 v{KO}, v{bm}, v{v0_}, v{v0_+1}', f'v_cvt_pk_bf16_f32 v{tt}, v{v0_+1}, v{v0_+1}', f'v_cvt_pk_bf16_f32 v{tt+2}, v{v0_}, v{v0_}',
               f'v_cvt_pk_bf16_f32 v{tt+1}, v{v0_+1}, v{KO}', f'v_mov_b32 v{tt+3}, v{tt+2}']
    kconv = l + chunks(l2, 3)
    late = []; sA, sB, sD = 38, 39, sXO
    late += [f's_mov_b32 s{SOUT}, s32', f's_mov_b32 s{SOUT+1}, s33', f's_mov_b32 s{SOUT+2}, {2048*896}', f's_mov_b32 s{SOUT+3}, 0x00020000']
    late += [f's_mul_i32 s{sA}, s{sW}, {64*896}', f's_add_u32 s{sA}, s{sA}, s{sRK}', f'v_add_u32 v{vD2}, s{sA}, v{vD2}', f's_mul_i32 s{sB}, s{sR}, 28']
    late += [f's_add_u32 s{sB}, s{sB}, s{sW}', f's_lshl_b32 s{sB}, s{sB}, 13', f's_add_u32 s{sB}, s{sB}, {HB}']
    late = chunks(late, 4)
    for n in range(7):
        late += [seq([f's_add_u32 s{sA}, s{sJ}, {n}', f's_cmp_ge_u32 s{sA}, 7', f's_cselect_b32 s{sD}, 7, 0', f's_sub_u32 s{sA}, s{sA}, s{sD}']),
                 seq([f's_mul_i32 s{sW2+n}, s{sA}, {256*896}', f's_lshl_b32 s{sA}, s{sA}, 15', f's_add_u32 s{sH+n}, s{sA}, s{sB}'])]
    bef = set(ex); kk = place(late, 0, 2); assert kk[0] < 17, kk
    keep1 = set(ex) - bef
    vXF, vXFa, vHF, vHFa, vH2 = 14, 15, 16, 17, 18
    uE, uA, u3, uw, u3w, cu0, ck, ys, vL4 = 19, 20, 21, 22, 23, 24, 25, 26, 27
    xc, xq, vSH, vE2, vE3, vG3 = 28, 29, 30, 31, 32, 33
    m0_, m1_, m2_ = 57, 58, 59
    ad = [f's_lshr_b32 s{sT1}, s2, 5', f's_lshl_b32 s{sT1}, s{sT1}, 9', f's_add_u32 s{sT1}, s{sT1}, {XF}', f'v_and_b32 v{vXFa}, 31, v0',
          f'v_lshl_add_u32 v{vXFa}, v{vXFa}, 4, s{sT1}',
          f's_lshl_b32 s{sT1}, s{sR}, 2', f's_add_u32 s{sT1}, s{sT1}, s{sW}', f's_lshl_b32 s{sT1}, s{sT1}, 10', f's_add_u32 s{sT1}, s{sT1}, {HF}',
          f'v_and_b32 v{vHFa}, 7, v0', f'v_min_u32 v{vHFa}, 6, v{vHFa}', f'v_lshlrev_b32 v{vHFa}, 7, v{vHFa}', f'v_add_u32 v{vHFa}, s{sT1}, v{vHFa}',
          f's_add_u32 s{sHF0}, s{sRK}, s{sT1}',
          f's_lshl_b32 s{sT1}, s2, 1', f's_add_u32 s{sT1}, s{sT1}, s{sC}', f's_lshl_b32 s{sT1}, s{sT1}, 12', '',
          f's_add_u32 s{SU}, s36, s{sT1}', f's_addc_u32 s{SU+1}, s37, 0', f's_mov_b32 s{SU+2}, 4096', f's_mov_b32 s{SU+3}, 0x00020000',
          f's_lshl_b32 s{sT0}, s{sP}, 11', f's_add_u32 s{sY}, s{sT1}, s{sT0}', f's_add_u32 s{sY}, s{sY}, {YT}',
          f'v_add_u32 v{uE}, s{sT0}, v{vL16}', f'v_add_u32 v{uA}, -16, v{uE}', '',
          f's_cmp_eq_u32 s{sP}, 0', f's_cselect_b32 s{sT1}, -16, 4080', f'v_and_b32 v{u3}, 2, v0', f'v_mul_u32_u24 v{u3}, s{sP}, v{u3}', f'v_lshl_add_u32 v{u3}, v{u3}, 1, s{sT1}',
          f'v_and_b32 v{vSH}, 1, v0', f'v_lshlrev_b32 v{vSH}, 4, v{vSH}',
          f's_mul_i32 s{sUB}, s{sC}, {UCH}', f's_add_u32 s{sT1}, s{sUB}, 16', f'v_add_u32 v{uw}, s{sT1}, v{uE}',
          f's_mul_i32 s{sT1}, s{sP}, {257*16}', f's_add_u32 s{sT1}, s{sT1}, s{sUB}', f'v_and_b32 v{u3w}, 3, v0', f'v_mul_u32_u24 v{u3w}, 4160, v{u3w}', f'v_add_u32 v{u3w}, s{sT1}, v{u3w}',
          f's_mul_i32 s{sKB}, s{sC}, 4608', f's_add_u32 s{sKB}, s{sKB}, {LB}',
          f'v_and_b32 v{m0_}, 15, v0', f'v_add_u32 v{m1_}, 1, v{m0_}', f'v_and_b32 v{m2_}, 3, v{m1_}', f'v_sub_u32 v{m1_}, v{m1_}, v{m2_}',
          f'v_mul_u32_u24 v{m2_}, 4160, v{m2_}', f'v_lshl_add_u32 v{m2_}, v{m1_}, 1, v{m2_}', f'v_lshrrev_b32 v{m1_}, 4, v0', f'v_lshl_add_u32 v{m2_}, v{m1_}, 4, v{m2_}',
          f's_lshl_b32 s{sT1}, s{sP}, 8', f's_add_u32 s{sT1}, s{sT1}, s{sUB}', f'v_add_u32 v{cu0}, s{sT1}, v{m2_}',
          f'v_and_b32 v{m1_}, 1, v{m1_}', f'v_sub_u32 v{m2_}, v{hb}, v{m0_}', f'v_add_u32 v{m2_}, 15, v{m2_}', f'v_mul_u32_u24 v{ck}, 2304, v{m1_}',
          f'v_lshl_add_u32 v{ck}, v{m2_}, 4, v{ck}', f's_lshl_b32 s{sT1}, s{sP}, 7', f's_add_u32 s{sT1}, s{sT1}, s{sKB}', f'v_add_u32 v{ck}, s{sT1}, v{ck}',
          f'v_lshlrev_b32 v{ys}, 9, v{m1_}', f'v_lshl_add_u32 v{ys}, v{m0_}, 5, v{ys}', f'v_lshl_add_u32 v{ys}, v{hb}, 4, v{ys}', f'v_add_u32 v{vL4}, 4096, v{vL16}',
          f'v_and_b32 v{m2_}, 31, v0', f'v_sub_u32 v{m2_}, 255, v{m2_}', f'v_and_b32 v{k1}, 1, v{m2_}', f'v_lshrrev_b32 v{m2_}, 1, v{m2_}',
          f'v_mul_u32_u24 v{k1}, 2304, v{k1}', f'v_lshl_add_u32 v{k1}, v{m2_}, 4, v{k1}', f's_sub_u32 s{sT1}, s{sKB}, 512', f'v_add_u32 v{k1}, s{sT1}, v{k1}',
          f'v_lshlrev_b32 v{m2_}, 8, v{hb}', f'v_sub_u32 v{k1}, v{k1}, v{m2_}', f'v_sub_u32 v{k2}, v{k1}, v{m2_}', f'v_add_u32 v{k2}, -768, v{k2}',
          f'v_mul_u32_u24 v{kz}, 2304, v{m1_}', f'v_lshl_add_u32 v{kz}, v{m0_}, 4, v{kz}', f'v_add_u32 v{kz}, s{sKB}, v{kz}',
          f's_lshl_b32 s{sT1}, s{sW}, 12', f'v_add_u32 v{xc}, s{sT1}, v{vL16}', f'v_xor_b32 v{xq}, 4096, v{xc}',
          f's_lshl_b32 s{sT1}, s{sW}, 13', f's_add_u32 s{sEXT}, s{sT1}, {LEXT}', f's_sub_u32 s{sT1}, s{sEXT}, s{sRING}', f'v_xor_b32 v{vG3}, 64, v{vG2}',
          f'v_add_u32 v{vE2}, s{sT1}, v{vG2}', f'v_add_u32 v{vE3}, s{sT1}, v{vG3}',
          f'v_add_u32 v8, s{sRING}, v{vL16}', f'v_add_u32 v9, s{sEXT}, v{vL16}',
          f's_lshl_b32 s{sYF}, s2, 2', f's_add_u32 s{sYF}, s{sYF}, s{sW}', f's_lshl_b32 s{sYF}, s{sYF}, 4', f's_add_u32 s{sYF}, s{sYF}, {YF}']
    grp = [[]]
    for x in ad:
        if x == '' or len(grp[-1]) >= E_('ADC', '2') + 2*all(y[0] == 's' for y in grp[-1]): grp.append([])
        if x: grp[-1].append(x)
    kk = place([seq(x) for x in grp if x], kk[0], kk[1]); assert kk[0] < 21, kk; print('ad end', kk)
    kk = place(kconv, max(kk[0], E_('KCS', '18')), 0); print('kconv end', kk); assert kk[0] < 28
    ldXF = lambda: I(f'buffer_load_dword v{vXF}, v{vXFa}, {WS}, 0 offen sc1')
    XP = E_('XPS', '27')
    ex[(XP - 5, 1)].append(ldXF); ex[(XP, 3)].append(lambda: poll(ldXF, cmp_flag(vXF)))
    U0 = 40; UU = f's[{SU}:{SU+3}]'
    ul = [f'buffer_load_dwordx4 {V(U0,4)}, v{uA}, {UU}, 0 offen sc1', f'buffer_load_dwordx2 {V(U0+4,2)}, v{uE}, {UU}, 0 offen sc1',
          f'buffer_load_dwordx4 {V(U0+6,4)}, v{uE}, {UU}, 0 offen offset:1008 sc1', f'buffer_load_dwordx2 {V(U0+10,2)}, v{uE}, {UU}, 0 offen offset:1024 sc1',
          f'buffer_load_dwordx4 {V(U0+12,4)}, v{u3}, {UU}, 0 offen sc1']
    F1 = lambda k: 16*(k % 3)
    gemm(0, F1, lambda k, tb: A(F1(k)+8+4*tb, 4),
         lambda k: [f'ds_read_b128 {A(F1(k)+8+4*tb,4)}, v{vb} offset:{32*k}' for tb, vb in ((0, vB0), (1, vB1))],
         lambda fb: V(CB+16*fb, 16), [(vA0, vA1)], ex)
    a._emit('s_barrier')
    stamp()
    k0 = -2*math.sqrt(2/math.pi)*math.log2(math.e)
    I(f's_mov_b32 s{sK}, {f2u(k0*0.044715)}'); I(f's_mov_b32 s{sK+1}, {f2u(k0)}')
    if E_('GQ', '0'): I(f's_mov_b32 s{sT0}, 0x4e800000')
    for x in ul: I(x)
    def copies(d, off):
        c = 164
        def f0(): I(f'ds_write_b128 v{uw}, {V(d,4)} offset:{off}')
        def f1():
            for e in range(4): I(f'v_alignbit_b32 v{c+e}, v{d+e+1}, v{d+e}, 16')
            for e in range(4): I(f'v_mov_b32 v{c+4+e}, v{d+e+1}')
            for e in range(4): I(f'v_alignbit_b32 v{c+8+e}, v{d+e+2}, v{d+e+1}, 16')
        return f0, f1, [seq([f'ds_write_b128 v{uw}, {V(c-4+4*s_,4)} offset:{off + 4160*s_}']) for s_ in range(1, 4)]
    def e_kw():
        I(f's_cmp_eq_u32 s{sP}, 1')
        a.ifelse('KE', seq([f'ds_write_b128 v{k1}, {V(KT,4)} offset:512', f'ds_write_b128 v{kz}, {V(KT+16,4)} offset:2048', f'ds_write_b128 v{kz}, {V(KT+16,4)} offset:2048']),
                 seq([f'ds_write_b128 v{k1}, {V(KT+4,4)}', f'ds_write_b128 v{k2}, {V(KT+8,4)} offset:256', f'ds_write_b128 v{k2}, {V(KT+12,4)}']))
    def e_u3():
        for e in range(4): I(f'v_alignbit_b32 v{176+e}, {"v%d" % (U0+13+e) if e < 3 else 0}, v{U0+12+e}, v{vSH}')
        I('s_mov_b64 exec, 15'); I(f'ds_write_b128 v{u3w}, {V(176,4)}'); I('s_mov_b64 exec, -1')
    ca, cb_ = copies(U0, 0), copies(U0+6, 1024)
    exd = lambda i: [lambda: dma1(38 + i, 0), lambda: dma1(38 + i, 1)]
    gx = {3: [ca[0], cb_[0], ca[1]], 4: ca[2] + [e_kw], 5: [cb_[1]], 6: cb_[2] + [e_u3]}
    for i in range(NEXT): gx[i + E_('EXF', '0')] = exd(i) + gx.get(i + E_('EXF', '0'), [])
    wq = [wld(st_, hh) for st_ in range(WS0, 56) for hh in range(2)] if WL else []
    for f in [int(c) for c in os.environ.get('WGL', '012345')][:len(wq)]: gx[f] = gx.get(f, []) + [wq.pop(0)]
    GX = E_('GX', '1')
    if GX:
        wq = [wld(st_, hh) for st_ in range(WS0, 56) for hh in range(2)]
        vm = [f_ for i in range(NEXT) for f_ in exd(i)] + [wq.pop(0) for _ in range(E_('GW', '10'))]
        gx = {f: [vm.pop(0)] for f in range(E_('GE', '7'))}
        ls = [ca[0], ca[1], cb_[0]] + ca[2] + [cb_[1], e_kw] + cb_[2] + [e_u3]; o_ = []
        while ls or vm:
            if ls: o_.append(ls.pop(0))
            if vm: o_.append(vm.pop(0))
        gx[7] = gx.get(7, []) + o_
    t = 128
    for tb in range(2):
        for sg in range(4):
            x = ACC + 32*tb + 8*sg; Pp = lambda e: V(t+2*e, 2); Xp = lambda e: V(x+2*e, 2)
            for e in range(4): I(f'v_pk_mul_f32 {Pp(e)}, {Xp(e)}, {Xp(e)}')
            for e in range(4): I(f'v_pk_fma_f32 {Pp(e)}, {Pp(e)}, s[{sK}:{sK+1}], s[{sK}:{sK+1}] op_sel:[0,0,1] op_sel_hi:[1,0,1]')
            for e in range(4): I(f'v_pk_mul_f32 {Pp(e)}, {Pp(e)}, {Xp(e)}')
            for e in range(8): I(f'v_exp_f32 v{t+e}, v{t+e}')
            for e in range(4): I(f'v_pk_add_f32 {Pp(e)}, {Pp(e)}, 1.0 op_sel_hi:[1,0]')
            if E_('GQ', '0'):
                u, w = 136, 140
                mn = lambda e: f'v_min_f32 v{t+e}, s{sT0}, v{t+e}'
                pp = lambda q: f'v_pk_mul_f32 {V(u+2*q,2)}, {Pp(2*q)}, {Pp(2*q+1)}'
                mu = lambda q: f'v_mul_f32 v{w+2*q}, v{u+2*q}, v{u+2*q+1}'
                rc = lambda q: f'v_rcp_f32 v{w+2*q}, v{w+2*q}'
                xx = lambda e: f'v_pk_mul_f32 {Xp(e)}, {Xp(e)}, {Pp(e^1)}'
                sw = lambda q: f'v_pk_mul_f32 {V(u+2*q,2)}, {V(w+2*q,2)}, {V(u+2*q,2)} op_sel:[0,1] op_sel_hi:[0,0]'
                gg = lambda e: f'v_pk_mul_f32 {Pp(e)}, {Xp(e)}, {V(u+2*(e>>1),2)}'
                for x_ in [mn(0), mn(1), mn(2), mn(3), mn(4), mn(5), pp(0), mn(6), mn(7), mu(0), xx(0), pp(1), rc(0), xx(1), mu(1), xx(2), sw(0), rc(1), xx(3), gg(0), sw(1), gg(1), gg(2), gg(3)]: I(x_)
            else:
                for e in range(8): I(f'v_rcp_f32 v{t+e}, v{t+e}')
                for e in range(4): I(f'v_pk_mul_f32 {Pp(e)}, {Pp(e)}, {Xp(e)}')
            f = 4*tb + sg
            for e in range(4): I(f'v_cvt_pk_bf16_f32 v{HOWN+4*f+e}, v{t+2*e}, v{t+2*e+1}')
            if f == E_('HF0', '7') and not E_('ONEF', '1'): a.wait(tk['h0']); flag_store(sHF0)
            tk['h%d' % tb] = I(f'buffer_store_dwordx4 {V(HOWN+4*f,4)}, v{vL16 if tb == 0 else vL4}, {WS}, s{sH} offen offset:{1024*sg} sc1')
            DS_ = E_('DS', '0')
            if DS_ == 1: tk['h%d' % tb] = I(f'buffer_store_dwordx4 {V(HOWN+4*f,4)}, v{vL16 if tb == 0 else vL4}, {WS}, s{sH} offen offset:{1024*sg}')
            if DS_ == 2 and f > 0: I(f'buffer_store_dwordx4 {V(HOWN+4*f-4,4)}, v{vL16 if f <= 4 else vL4}, {WS}, s{sH} offen offset:{1024*((f-1)&3)}')
            if DS_ == 2 and f == 7: I(f'buffer_store_dwordx4 {V(HOWN+4*f,4)}, v{vL4}, {WS}, s{sH} offen offset:{1024*3}')
            for g_ in gx.get(f, []): g_()
            if f < 7: stamp(4)
    stamp()
    a.barrier()
    stamp()
    if stop == 2:
        I(f's_mul_i32 s{sT0}, s2, 9216'); I(f's_add_u32 s{sT0}, s{sT0}, 0xD00000'); I(f'v_add_u32 v40, {LB}, v{vL16}')
        for i in range(9):
            I(f'ds_read_b128 v[64:67], v40 offset:{1024*i}'); I(f'buffer_store_dwordx4 v[64:67], v{vL16}, {WS}, s{sT0} offen'); I(f's_add_u32 s{sT0}, s{sT0}, 1024')
            a.waitcnt(vm=0)
        fin(); return a
    CA, CBf, CC = [64, 96], [128, 160], 192
    hreg = lambda n, f: (208 + 4*(f-2) if f < 6 else 248 + 4*(f-6)) if (n == 6 and f >= 2 and NW == 9) else 32*(n-1) + 4*f
    hld = lambda n, f: (lambda: I(f'buffer_load_dwordx4 {A(hreg(n, f),4)}, v{vL16 if f < 4 else vL4}, {WS}, s{sH+n} offen offset:{1024*(f&3)} sc1'))
    if E_('NOH', '0') in (1, 2): hld = lambda n, f: (lambda: None)
    if E_('NOH', '0') == 4: hld = lambda n, f: (lambda: I(f'buffer_load_dwordx4 {A(32*(n-1)+4*f,4)}, v{vL16 if f < 4 else vL4}, s[{SX}:{SX+3}], 0 offen offset:{1024*(f&3)} sc1'))
    if E_('NOH', '0') >= 2: poll_ = lambda *x: None
    else: poll_ = poll
    ldH0 = lambda: I(f'buffer_load_dword v{vHF}, v{vHFa}, {WS}, 0 offen sc1')
    ldH1 = lambda: I(f'buffer_load_dword v{vH2}, v{vHFa}, {WS}, 0 offen offset:64 sc1')
    cx = defaultdict(list)
    c_l0, c_p0, c_f1, c_l1, c_p1, hev = E_('CL0', '44'), E_('CP0', '80'), E_('CF1', '6'), E_('CL1', '104'), E_('CP1', '143'), E_('HEV', '5')
    ONEF = E_('ONEF', '1')
    if ONEF: c_l1, c_p1 = E_('CL', '44'), E_('CP', '80'); c_p0 = c_p1
    else: cx[c_l0].append(ldH0); cx[c_p0].append(lambda: (poll_(ldH0, cmp_flag(vHF)), stamp(3)))
    cx[c_f1].append(lambda: (a.wait(tk['h1']), flag_store(sHF0, 64), stamp(3)))
    if E_('HF0', '7') == 8: cx[E_('CF0', '3')].append(lambda: (a.wait(tk['h0']), flag_store(sHF0)))
    CL2 = [int(x) for x in os.environ.get('CL2', '18').split(',') if x]; vHB = [vHF, 14, 15]
    for i_, o_ in enumerate(CL2): cx[c_l1 + o_].append(lambda i_=i_: I(f'buffer_load_dword v{vHB[i_]}, v{vHFa}, {WS}, 0 offen offset:64 sc1'))
    cx[c_l1].append(ldH1); cx[c_p1].append(lambda: (poll_(ldH1, cmp_flag(vH2), [cmp_flag(vHB[i_]) for i_ in range(len(CL2))]), stamp(3)))
    NPRE = E_('NPRE', '5')
    F2 = lambda k: 208 + 8*(k - 3) if 3 <= k < NPRE else 224 + 8*(k % 3)
    VA2 = [(vG2, vG3), (vE2, vE3)]
    rd2 = gemm(28, F2, None, lambda k: [], None, VA2, None, nstep=0)
    def e_pre(k):
        def f():
            a.wait(dtok[28 + k])
            for x in rd2(k): tk['pre%d' % k] = I(x)
        return f
    def e_pd(k, hh): return lambda: (a.wait(tk['pre%d' % k]), dma1(38 + NEXT + k, hh))
    for k in range(NPRE):
        cx[k if k < 3 else 28 + 2*k].append(e_pre(k))
    its = [(0 if i < 6 else 44, e_pd(i // 2, i & 1)) for i in range(2*NPRE)]; its = its[:6] + [(0, w_) for w_ in wq] + its[6:]; wq = []
    c = E_('C0', '9'); SP = float(os.environ.get('SP', '4'))
    while its:
        ci = int(c)
        while ci in cx: ci += 1
        ok = [x for x in its if x[0] <= ci]; ok = [x for x in ok if x[0]] or ok
        if ok: cx[ci].append(ok[0][1]); its.remove(ok[0])
        c += SP
    print('conv pre items end', ci); c_h0 = max(c_p0 + 1, int(c))
    hq0 = [(n, f) for n in range(1, 7) for f in range(4)]; hq1 = [(n, f+4) for n in range(1, 7) for f in range(4)]
    c = E_('WC0', '5')
    while wq:
        while any(c + d_ in cx for d_ in (0, 1, -1)): c += 1
        cx[c].append(wq.pop(0))
    print('w loads end', c)
    wsl = sorted([(k_, 2 if E_('GL', '0') else 3) for k_ in range(2, 22)] + [(int(k_), 1) for k_ in os.environ.get('WX', '').split(',') if k_]); wt = {}
    for s_ in range(WS0, 56):
        for hh in range(2):
            while wsl[0][0] < s_ - 44: wsl.pop(0)
            wt[(s_, hh)] = wsl.pop(0)
    rel = lambda n, f: 4.5 if hreg(n, f) >= 208 else (wt[(WS0 + (32*(n-1) + 4*f - WB)//8, f & 1)][0] + 0.5) if 32*(n-1) + 4*f >= WB else -1
    hlate = [x for x in hq0 + hq1 if rel(*x) >= 0]; hq0 = [x for x in hq0 if rel(*x) < 0]; hq1 = [x for x in hq1 if rel(*x) < 0]
    c = c_h0
    while c < 144:
        if c <= c_p1:
            if hq0: cx[c].append(hld(*hq0.pop(0)))
        else:
            q = hq1 if (not hq0 or hq1[0][0] < hq0[0][0] + (not ONEF)) else hq0
            cx[c].append(hld(*q.pop(0)))
        c += hev
    hrest = sorted(hq0 + hq1 + hlate); print('h loads left', len(hrest))
    def creads(st):
        r = []
        for i in range(8):
            o = 64*st + 512*i
            r.append(f'ds_read_b64 {V(CA[st&1]+4*i,2)}, v{cu0} offset:{o}'); r.append(f'ds_read_b64 {V(CA[st&1]+4*i+2,2)}, v{cu0} offset:{o+8}')
        b = [f'ds_read_b128 {V(CBf[st&1]+4*i,4)}, v{ck} offset:{256*(7-i) + 32*st}' for i in range(8)]
        return r[:2] + b + r[2:]
    ml = [(st, i, cb) for st in range(4) for i in range(8) for cb in range(i, 8)]
    idx = lambda st, pr: [n for n, m in enumerate(ml) if m[0] == st and pr(m)]
    rq = []
    for st in range(4):
        for i in range(8):
            o = 64*st + 512*i; fu = idx(st, lambda m: m[1] == i)[0]; fr = idx(st-2, lambda m: m[1] == i)[-1] if st >= 2 else -1
            rq += [(fu, fr, f'ds_read_b64 {V(CA[st&1]+4*i,2)}, v{cu0} offset:{o}'), (fu, fr, f'ds_read_b64 {V(CA[st&1]+4*i+2,2)}, v{cu0} offset:{o+8}')]
            fu = idx(st, lambda m: m[2]-m[1] == i)[0]; fr = idx(st-2, lambda m: m[2]-m[1] == i)[-1] if st >= 2 else -1
            rq.append((fu, fr, f'ds_read_b128 {V(CBf[st&1]+4*i,4)}, v{ck} offset:{256*(7-i) + 32*st}'))
    rq.sort(key=lambda x: x[0]); LAT = E_('CLAT', '9'); maxa = E_('CMAX', '40')
    while rq[0][0] < E_('CPRE', '8') + 1: I(rq.pop(0)[2])
    for cg, (st, i, cb) in enumerate(ml):
        d = V(CC+4*cb, 4)
        I(f'v_mfma_f32_16x16x32_bf16 {d}, {V(CA[st&1]+4*i,4)}, {V(CBf[st&1]+4*(cb-i),4)}, {0 if (st == 0 and i == 0) else d}')
        n_ = 0
        while rq and rq[0][1] <= cg and (rq[0][0] - cg <= LAT + (n_ == 0 and cg in cx)*(-3) or (n_ == 0 and cg not in cx and rq[0][0] - cg <= maxa)):
            I(rq.pop(0)[2]); n_ += 1
        assert not rq or rq[0][0] > cg + 1
        for f in cx.get(cg, []): f()
        if str(cg) in os.environ.get('CST', '').split(','): stamp(1)
    a._emit('s_barrier')
    stamp()
    ex = defaultdict(list)
    E1, T = 128, 160
    def e_cw(h_):
        def w(o):
            def f():
                for q in (2*h_, 2*h_+1): tk['cw'] = I(f'ds_write_b128 v{xc}, {V(CC+o+4*q,4)} offset:{1024*q}')
            return f
        return lambda: (I(f's_cmp_eq_u32 s{sP}, 1'), a.ifelse(f'CS{h_}', w(16), w(0)))
    def e_ca(q):
        def f():
            I(f's_cmp_eq_u32 s{sP}, 1'); a.wait(tk['cr%d' % q])
            a._emit(f's_cbranch_scc1 CA{q}_b'); st = a.snap()
            for e in range(4*q, 4*q+4): I(f'v_add_f32 v{E1+e}, v{E1+e}, v{CC+e}')
            a._emit(f's_branch CA{q}_j'); a.label(f'CA{q}_b'); a.restore(st)
            for e in range(4*q, 4*q+4): I(f'v_add_f32 v{E1+e}, v{E1+e}, v{CC+16+e}')
            a.label(f'CA{q}_j')
        return f
    def e_cr():
        for q in range(4): tk['cr%d' % q] = I(f'ds_read_b128 {V(E1+4*q,4)}, v{xq} offset:{1024*q}')
    DCW = E_('DCW', '0')
    if DCW:
        ex[(0, 0)].append(e_cw(0)); ex[(0, 1)].append(e_cw(1)); ex[(1, 0)].append(lambda: (bar(tk['cw']), e_cr()))
        for q in range(4): ex[(2, q)].append(e_ca(q))
    else:
        ex[(-1, 0)].append(e_cw(0)); ex[(-1, 0)].append(e_cw(1)); ex[(0, 2)].append(lambda: (bar(tk['cw']), e_cr()))
        for q in range(4): ex[(1 + (q+2)//4, (q+2) % 4)].append(e_ca(q))
    l = chunks([f'v_cvt_pk_bf16_f32 v{T+e}, v{E1+2*e}, v{E1+2*e+1}' for e in range(8)], 4)
    def e_ys(pr):
        def f(): tk['y'] = I(f'buffer_store_dwordx4 {V(T+4*pr,4)}, v{ys}, {WS}, s{sY} offen offset:{1024*pr} sc1')
        return f
    l += [seq([f'v_permlane16_swap_b32 v{T+4*pr+e}, v{T+4*pr+2+e}' for pr in range(2) for e in range(2)]), e_ys(0), e_ys(1)]
    kk = place(l, 3 if DCW else 2, 0 if DCW else 2); print('ys end', kk)
    vYF, vYFa, vX, vBD = 14, 15, 16, 19
    B2, DS, YR, XF32, XN, t = 128, 136, 144, 152, 208, 28
    ya, yw, yr, rw = 20, 21, 22, 4
    ldYF = lambda: I(f'buffer_load_dword v{vYF}, v{vYFa}, {WS}, 0 offen sc1')
    ex[(E_('YFS', '10'), 3 if E_('GL', '0') else 1)].append(lambda: (a.wait(tk['y']), flag_store(sYF)))
    l = [[f's_lshl_b32 s{sT2}, s{sJ}, 1', f's_add_u32 s{sT2}, s{sT2}, s{sP}', f's_lshl_b32 s{sT1}, s{sR}, 1', f's_add_u32 s{sT1}, s{sT1}, s{sC}'],
         [f's_mul_i32 s{sXO}, s{sT1}, {32*896}', f's_lshl_b32 s{sK}, s{sT2}, 6', f's_add_u32 s{sXO}, s{sXO}, s{sK}'],
         [f'v_and_b32 v{vX}, 31, v0', f'v_mul_u32_u24 v{vX}, 896, v{vX}', f'v_lshl_add_u32 v{vX}, v{hb}, 5, v{vX}'],
         [f'v_lshl_add_u32 v{vBD}, v{hb}, 5, s{sK}', f's_lshl_b32 s{sK}, s{sT2}, 10', f's_add_u32 s{sK}, s{sK}, {YF}', f'v_lshl_add_u32 v{vYFa}, v0, 4, s{sK}'],
         [f's_lshl_b32 s{sT2}, s{sT2}, 17', f's_lshl_b32 s{sK}, s{sT1}, 6', f's_add_u32 s{sT2}, s{sT2}, s{sK}', f's_add_u32 s{sT2}, s{sT2}, {YT}'],
         [f'v_lshrrev_b32 v{ya}, 2, v0', f'v_lshlrev_b32 v{ya}, 12, v{ya}', f'v_and_b32 v{yw}, 3, v0', f'v_lshl_add_u32 v{ya}, v{yw}, 4, v{ya}'],
         [f's_lshl_b32 s{sK}, s{sW}, 11', f's_add_u32 s{sK}, s{sK}, {LB}', f'v_add_u32 v{yw}, s{sK}, v{vL16}'],
         [f'v_bfe_u32 v{yr}, v0, 2, 2', f'v_lshl_add_u32 v{yr}, v{hb}, 4, v{yr}', f'v_lshl_add_u32 v{yr}, v{yr}, 6, v{vTR}', f'v_add_u32 v{yr}, s{sK}, v{yr}'],
         [f'v_add_u32 v{rw}, s{sRING}, v{vL16}', f'v_add_u32 v{rw+1}, {LRING}, v{vL16}']]
    for x in (3, 2, 1): l.append([f's_xor_b32 s{sK}, s{sW}, {x}', f's_mul_i32 s{sK}, s{sK}, {NSLOT*2048}', f'v_add_u32 v{rw+x}, s{sK}, v{rw+1}'])
    l[-1].append(f's_add_u32 s{sK}, s{sT2}, 65536')
    for i, f in enumerate(l): ex[(6 + i, 3 if E_('GL', '0') else 1)].append(seq(f))
    ex[(18, 2)].append(seq([f'global_load_dwordx4 {V(B2+4*q,4)}, v{vBD}, s[30:31] offset:{16*q}' for q in range(2)]))
    ex[(18, 3)].append(seq([f'global_load_dwordx4 {V(DS+4*q,4)}, v{vBD}, s[20:21] offset:{16*q}' for q in range(2)]))
    ex[(E_('YL', '22'), 2)].append(ldYF)
    for i in range(4): ex[(19 + i//2, 3*(i & 1))].append(seq([f'v_accvgpr_read_b32 v{44+4*i+e}, a{192+4*i+e}' for e in range(4)]))
    def e_unp(dst, src): return lambda: [unpack(dst+2*e, dst+2*e+1, src+e) for e in range(2)]
    l = [e_unp(XF32 + 4*i, 44 + 2*i) for i in range(4)] + [e_unp(XN + 4*i, 52 + 2*i) for i in range(4)]
    for i, f in enumerate(l): ex[(21 + i//3, 1 + i % 3)].append(f)
    YL2 = [int(x) for x in os.environ.get('YL2', '').split(',') if x]
    def e_yl():
        poll(ldYF, cmp_flag(vYF), [cmp_flag(17 + i_) for i_ in range(len(YL2))])
        I(f'buffer_load_dwordx4 {V(YR,4)}, v{ya}, {WS}, s{sT2} offen sc1'); I(f'buffer_load_dwordx4 {V(YR+4,4)}, v{ya}, {WS}, s{sK} offen sc1')
    YTP = E_('YTP', '14')
    if YTP < 0: ex[(23, 3)].append(e_yl)
    items = [(4*n - 5, rel(n, f), hld(n, f)) for n, f in hrest] + [(s_ - 28 - 7, s_ - 28 - NSLOT - NEXT, (lambda s_=s_, hh=hh: dma1(s_, hh))) for s_ in range(38 + NEXT + NPRE, WS0) for hh in range(2)]
    items.sort(key=lambda x: x[0])
    for s_ in range(WS0, 56):
        dtok[s_] = None; ex_, so = slot(s_)
        for hh in range(2): ex[wt[(s_, hh)]].insert(0, seq([f'ds_write_b128 v{8+ex_}, {A(WB+8*(s_-WS0)+4*hh,4)} offset:{so + 1024*hh}']))
    busy = ({(0, 0), (3, 2), (4, 0), (4, 2)} if DCW else {(0, 2), (3, 2)}) if not E_('NOYG', '0') else set()
    VP = E_('VP', '2')
    xs_ = [int(x) for x in os.environ.get('VX', '1,3,5').split(',') if x]
    for sh in sorted([x - (x % 4 == 2 and x > 16 and E_('GL', '0')) for x in range(0, 96, VP)] + xs_):
        k_, mi = divmod(sh, 4)
        if (k_, mi) in busy: continue
        for it in items:
            if it[1] < k_ or (it[1] == k_ and mi >= 2):
                ex[(k_, mi)].insert(0, it[2]); items.remove(it)
                if k_ > it[0] + 3: print('late item', it[:2], k_)
                break
    assert not items, len(items)
    def hfrag(k, tb):
        n, sg = divmod(k, 4)
        return V(HOWN + 16*tb + 4*sg, 4) if n == 0 else A(hreg(n, 4*tb + sg), 4)
    FT = 168
    def e_ft(s_):
        def f():
            a.wait(dtok[52 + s_]); ex_, so = slot(52 + s_)
            for fb in (1, 0):
                for o in (0, 2): I(f'ds_read_b64_tr_b16 {V(FT+16*fb+4*s_+o,2)}, v{[(vG2, vG3), (vE2, vE3)][ex_][fb]} offset:{so + 256*o}')
        return f
    for s_ in range(4): ex[(22 + s_//2, s_ & 1)].insert(0, e_ft(s_))
    gemm(28, F2, hfrag, lambda k: [], lambda fb: '0', VA2, ex, nstep=24, npre=NPRE)
    stamp()
    fill = []
    for e in range(8): fill += [f'v_lshlrev_b32 v{t+2*e}, 16, v{DS+e}', f'v_and_b32 v{t+2*e+1}, s{sHI}, v{DS+e}']
    for e in range(16): fill.append(f'v_mul_f32 v{XN+e}, v{XN+e}, v{t+e}')
    for e in range(8): fill += [f'v_lshlrev_b32 v{t+2*e}, 16, v{B2+e}', f'v_and_b32 v{t+2*e+1}, s{sHI}, v{B2+e}']
    prev = None; n_ = 0
    for x in (3, 2, 1, 0):
        fb, tb = x & 1, x >> 1; d = V(ACC + 16*x, 16)
        for s_ in range(4):
            I(f'v_mfma_f32_32x32x16_bf16 {d}, {V(FT+16*fb+4*s_,4)}, {hfrag(24+s_, tb)}, {d}')
            if prev:
                for q in ((), (0,), (1,), (2, 3))[s_] if E_('TW', '1') else ((), (), (0, 1), (2, 3))[s_]: I(f'ds_write_b128 v{rw}, {V(ACC+16*prev+4*q,4)} offset:{4096*(prev-1) + 1024*q}')
            if n_ in YL2: I(f'buffer_load_dword v{17 + YL2.index(n_)}, v{vYFa}, {WS}, 0 offen sc1')
            if n_ == YTP: e_yl()
            elif not prev or s_ < 3:
                for _ in range((4 if not prev else (5, 3, 3)[s_])):
                    if fill: I(fill.pop(0))
            n_ += 1
        prev = x
    for f in fill: I(f)
    stamp(3, nm='t1')
    a.barrier()
    stamp(3, nm='t2')
    for hf in range(2):
        for x in range(1, 4):
            for q in (2*hf, 2*hf+1): I(f'ds_read_b128 {V(ACC+16*x+4*q,4)}, v{rw+x} offset:{4096*(x-1) + 1024*q}')
    I(f's_mov_b32 s{sK}, {f2u(-math.log2(math.e))}')
    for e in range(8): I(f'v_pk_add_f32 {V(ACC+2*e,2)}, {V(ACC+2*e,2)}, {V(t+2*e,2)}')
    OSC = os.environ.get('OSC', ''); ty = 44
    for hf in range(2):
        R8 = range(4*hf, 4*hf+4)
        for x in range(1, 4):
            for e in R8: I(f'v_pk_add_f32 {V(ACC+2*e,2)}, {V(ACC+2*e,2)}, {V(ACC+16*x+2*e,2)}')
        def ytr():
            I(f'ds_write_b128 v{yw}, {V(YR,4)}'); I(f'ds_write_b128 v{yw}, {V(YR+4,4)} offset:1024')
            for q in range(4): I(f'ds_read_b64_tr_b16 {V(YR+2*q,2)}, v{yr} offset:{256*q}')
        if hf == E_('YW', '1'): ytr()
        for e in R8: I(f'v_pk_mul_f32 {V(t+2*e,2)}, {V(ACC+2*e,2)}, s[{sK}:{sK+1}] op_sel_hi:[1,0]')
        for e in range(8*hf, 8*hf+8): I(f'v_exp_f32 v{t+e}, v{t+e}')
        if hf + 1 == E_('YW', '1') == 2: ytr()
        for e in R8: I(f'v_pk_add_f32 {V(t+2*e,2)}, {V(t+2*e,2)}, 1.0 op_sel_hi:[1,0]')
        for e in range(8*hf, 8*hf+8): I(f'v_rcp_f32 v{t+e}, v{t+e}')
        for e in R8: I(f'v_pk_mul_f32 {V(t+2*e,2)}, {V(t+2*e,2)}, {V(ACC+2*e,2)}')
    for hf in range(2):
        R8 = range(4*hf, 4*hf+4)
        for e in R8: unpack(ty+2*e, ty+2*e+1, YR+e)
        for e in R8: I(f'v_pk_add_f32 {V(XN+2*e,2)}, {V(XN+2*e,2)}, {V(ty+2*e,2)}')
        for e in R8: I(f'v_pk_fma_f32 {V(XN+2*e,2)}, {V(XN+2*e,2)}, {V(t+2*e,2)}, {V(XF32+2*e,2)}')
        for e in R8: I(f'v_cvt_pk_bf16_f32 v{YR+e}, v{XN+2*e}, v{XN+2*e+1}')
        I(f'buffer_store_dwordx4 {V(YR+4*hf,4)}, v{vX}, s[{SOUT}:{SOUT+3}], s{sXO} offen offset:{16*hf} {OSC}')
    stamp()
    fin()
    return a

def build(stop=99, stamps=False):
    a = gen(stop, stamps)
    ref = open(f'cdna_kernels/{NAME}.s.ref').read()
    head = ref[:ref.index('; @launch')]
    txt = head + f'; @launch grid=(224,1,1) block=(256,1,1) lds={LEND}\n'
    txt += f'.amdgcn_target "amdgcn-amd-amdhsa--gfx950"\n.text\n.globl {NAME}_kernel\n.p2align 8\n.type {NAME}_kernel,@function\n{NAME}_kernel:\n'
    pre = txt
    tail = 'END:\n    s_endpgm\nEND0:\n    s_waitcnt lgkmcnt(0)\n    s_endpgm\n'
    sz = sizes(pre + a.text() + tail)
    if ALIGN:
        a.out, tot, np_, nn = align(a.out, sz); print('align: residual', tot, 'promoted', np_, 'nops', nn, 'bytes', sum(sz))
    txt += a.text() + tail
    txt += f'''.section .rodata,"a"
.p2align 6
.amdhsa_kernel {NAME}_kernel
  .amdhsa_next_free_vgpr 512
  .amdhsa_next_free_sgpr 102
  .amdhsa_accum_offset 256
  .amdhsa_group_segment_fixed_size 0
  .amdhsa_kernarg_size 136
  .amdhsa_user_sgpr_count 2
  .amdhsa_user_sgpr_kernarg_segment_ptr 1
  .amdhsa_system_sgpr_workgroup_id_x 1
.end_amdhsa_kernel
'''
    return txt, a
if __name__ == '__main__':
    stop = int(sys.argv[2]) if len(sys.argv) > 2 else 99
    stamps = int(sys.argv[3]) if len(sys.argv) > 3 else 0
    txt, a = build(stop, stamps)
    open(sys.argv[1], 'w').write(txt)
    print('instrs', a.n, 'nops', a.nops)
```
